```python
import torch

def _softmax(x, axis=-1):
    return torch.softmax(x, dim=axis)
def _gelu(x):
    return torch.nn.functional.gelu(x, approximate="tanh")
def _silu(x):
    return torch.nn.functional.silu(x)
def _sigmoid(x):
    return torch.sigmoid(x)
def _layernorm(x, axis=-1, eps=1e-5):
    m = x.mean(dim=axis, keepdim=True)
    v = x.var(dim=axis, keepdim=True, unbiased=False)
    return (x - m) / torch.sqrt(v + eps)
def _scatter_add(tgt, idx, src, axis=0):
    return tgt.clone().index_add_(axis, idx, src)
def _segment_sum(src, seg, n):
    out = torch.zeros((n,) + src.shape[1:], dtype=src.dtype)
    return out.index_add_(0, seg, src)
def _pad(x, pw):
    flat = tuple(v for pair in reversed(pw) for v in pair)
    return torch.nn.functional.pad(x, flat)

kernel_name = 'parallel_sum__spectral_gfnet__mixer_channel_mlp__prompt'

def setup_inputs():

    _w = (lambda a: (lambda t: t.to(torch.bfloat16) if t.is_floating_point() else t)(torch.as_tensor(a)))
    def _A_setup():
        B, S, D = 1, 2048, 512
        Df = D // 2 + 1
        return {
            "x": _w((lambda *s: torch.randn(*s, dtype=torch.bfloat16) * 0.05)(B, S, D)),
            "w_r": _w((lambda *s: torch.randn(*s, dtype=torch.bfloat16) * 0.8)(S, Df) * 0.02),
            "w_i": _w((lambda *s: torch.randn(*s, dtype=torch.bfloat16) * 0.8)(S, Df) * 0.02),
        }
    _A_in = _A_setup()

    def _B_setup():
        B, S, D, F = 1, 2048, 512, 1792
        return {
            "x": _w((lambda *s: torch.randn(*s, dtype=torch.bfloat16) * 0.05)(B, S, D)),
            "w1": _w((lambda *s: torch.randn(*s, dtype=torch.bfloat16) * 0.8)(D, F) * (D ** -0.5)),
            "b1": _w((lambda *s: torch.randn(*s, dtype=torch.bfloat16) * 0.4)(F)),
            "w2": _w((lambda *s: torch.randn(*s, dtype=torch.bfloat16) * 0.05)(F, D) * (F ** -0.5)),
            "b2": _w((lambda *s: torch.randn(*s, dtype=torch.bfloat16) * 0.05)(D)),
        }
    _B_in = _B_setup()

    return {
        "A_x": _A_in["x"],
        "A_w_r": _A_in["w_r"],
        "A_w_i": _A_in["w_i"],
        "B_x": _B_in["x"],
        "B_w1": _B_in["w1"],
        "B_b1": _B_in["b1"],
        "B_w2": _B_in["w2"],
        "B_b2": _B_in["b2"],
    }

def reference(A_x, A_w_r, A_w_i, B_x, B_w1, B_b1, B_w2, B_b2):
    def _A_ref(x, w_r, w_i):
        B, S, D = x.shape
        X = (lambda x, axes=(-2,-1): torch.fft.rfft2(x.float(), dim=axes))(x, axes=(-2, -1))
        W = w_r + 1j * w_i
        X = X * W
        y = (lambda x, s, axes=(-2,-1): torch.fft.irfft2(x, s=s, dim=axes).to(torch.bfloat16))(X, (S, D), axes=(-2, -1))
        return y

    def _B_ref(x, w1, b1, w2, b2):
        y = _layernorm(x, axis=-1)
        h = _gelu(torch.einsum("bsd,df->bsf", y, w1) + b1)
        return torch.einsum("bsf,fd->bsd", h, w2) + b2

    x = A_x
    xn = _layernorm(x, axis=-1)
    return x + _A_ref(xn, A_w_r, A_w_i) + _B_ref(xn, B_w1, B_b1, B_w2, B_b2)
```

```python
import re
TRANS = ("v_exp_f32","v_log_f32","v_rcp_f32","v_rsq_f32","v_sqrt_f32","v_sin_f32","v_cos_f32")
def regs_of(tok):
    tok = tok.strip()
    tok = re.sub(r"^-", "", tok); tok = re.sub(r"^(abs|neg)\((.*)\)$", r"\2", tok); tok = tok.strip("|")
    m = re.fullmatch(r"([vsa])(\d+)", tok)
    if m: return {(m.group(1), int(m.group(2)))}
    m = re.fullmatch(r"([vsa])\[(\d+):(\d+)\]", tok)
    if m: return {(m.group(1), i) for i in range(int(m.group(2)), int(m.group(3)) + 1)}
    if tok in ("vcc", "vcc_lo", "vcc_hi"): return {("x", "vcc")}
    if tok in ("exec", "exec_lo", "exec_hi"): return {("x", "exec")}
    if tok == "m0": return {("x", "m0")}
    return set()
class Ins:
    def __init__(self, text):
        self.text = text
        t = text.split(";")[0].strip()
        self.label = t.endswith(":")
        self.directive = t.startswith(".")
        self.op = ""; self.w = set(); self.r = set(); self.cls = "none"
        self.srcc = set(); self.ab = set(); self.data = set(); self.passes = 0
        if self.label or self.directive or not t: return
        parts = t.split(None, 1); op = parts[0]; self.op = op
        rest = parts[1] if len(parts) > 1 else ""
        ops = []; cur = ""; depth = 0
        for ch in rest:
            if ch in "[(": depth += 1
            if ch in "])": depth -= 1
            if ch == "," and depth == 0: ops.append(cur); cur = ""
            else: cur += ch
        ops.append(cur)
        last = ops[-1].strip().split()
        self.mods = " ".join(last[1:]) if last else ""
        if last: ops[-1] = last[0]
        ops = [o.strip() for o in ops if o.strip()]
        self.ops = ops
        R = [regs_of(o) for o in ops]
        base = re.sub(r"_(e32|e64|dpp|sdwa)$", "", op); self.base = base
        if op.startswith("v_mfma"):
            self.cls = "mfma"; self.w = R[0]; self.ab = R[1] | R[2]; self.srcc = R[3]; self.r = self.ab | self.srcc
            self.passes = 8 if "32x32x16" in op else 4 if "16x16x32" in op else None
            assert self.passes, op
        elif op.startswith("v_"):
            self.cls = "valu"
            nw = 1
            if base.startswith("v_cmp"): nw = 1
            if base in ("v_add_co_u32","v_sub_co_u32","v_addc_co_u32","v_subb_co_u32","v_mad_u64_u32"): nw = 2
            for x in R[:nw]: self.w |= x
            for x in R[nw:]: self.r |= x
            if base in ("v_fmac_f32","v_dot2c_f32_bf16","v_writelane_b32","v_pk_fmac_f16") or "dpp" in op or "row_" in self.mods or "quad_perm" in self.mods: self.r |= R[0]
            if base.startswith("v_permlane") or base == "v_swap_b32": self.w |= R[1]; self.r |= R[0]
            if base == "v_cndmask_b32" and len(ops) == 3: self.r |= {("x","vcc")}
            self.dpp = ("row_" in self.mods or "quad_perm" in self.mods)
        elif op.startswith("ds_"):
            self.cls = "ds"
            if op.startswith("ds_read") or op.startswith("ds_bpermute") or op.startswith("ds_permute") or op.startswith("ds_swizzle"):
                self.w = R[0]
                for x in R[1:]: self.r |= x
                if "d16" in op: self.r |= R[0]
            else:
                for x in R: self.r |= x
        elif op.startswith("buffer_") or op.startswith("global_"):
            self.cls = "vmem"
            self.lds = " lds" in (" " + self.mods)
            if "load" in op and not self.lds:
                self.w = R[0]
                for x in R[1:]: self.r |= x
                if "d16" in op: self.r |= R[0]
            else:
                for x in R: self.r |= x
                if self.lds: self.r |= {("x","m0")}
                if "store" in op:
                    self.data = R[0] if op.startswith("buffer_") else R[1]
        elif op.startswith("s_load") or op.startswith("s_memtime") or op.startswith("s_memrealtime") or op.startswith("s_buffer_load"):
            self.cls = "smem"; self.w = R[0]
            for x in R[1:]: self.r |= x
        elif op.startswith("s_"):
            self.cls = "salu"
            if op in ("s_waitcnt","s_nop","s_barrier","s_endpgm","s_branch","s_sleep","s_setprio") or op.startswith("s_cbranch"): pass
            elif op.startswith("s_cmp") or op.startswith("s_bitcmp"):
                for x in R: self.r |= x
            else:
                self.w = R[0]
                for x in R[1:]: self.r |= x
                if "saveexec" in op: self.w |= {("x","exec")}
        else:
            raise ValueError("unknown op " + text)
    def states(self):
        if self.op == "s_nop": return int(self.ops[0], 0) + 1
        return 0 if (self.label or self.directive or not self.op) else 1
def vonly(s): return {x for x in s if x[0] in "va"}
def sonly(s): return {x for x in s if x[0] == "s" or x == ("x","vcc")}
def need(p, c):
    n = 0
    if p.cls == "valu":
        pv = vonly(p.w); ps = sonly(p.w)
        isdot = p.base.startswith("v_dot")
        if c.cls == "mfma" and pv & c.r: n = max(n, 3 if isdot else 2)
        if c.cls == "valu":
            if p.base in TRANS and c.base not in TRANS and pv & c.r: n = max(n, 1)
            if (c.base.startswith("v_permlane") or c.dpp) and pv & c.r: n = max(n, 2)
            if c.base in ("v_readlane_b32","v_readfirstlane_b32") and pv & c.r: n = max(n, 1)
            if ps & c.r:
                n = max(n, 4 if c.base in ("v_readlane_b32","v_writelane_b32") else 2)
            if isdot:
                if c.base == p.base:
                    ab = set()
                    for o in c.ops[1:3]: ab |= regs_of(o)
                    if pv & ab: n = max(n, 3)
                elif pv & (c.r | c.w): n = max(n, 3)
        if isdot and c.cls in ("ds","vmem") and pv & (c.r | c.w): n = max(n, 3)
        if c.cls == "vmem" and ps & c.r: n = max(n, 5)
        if c.cls in ("salu","smem") and ps & c.r: n = max(n, 1)
    elif p.cls == "mfma":
        big = p.passes == 8
        if c.cls == "mfma":
            if p.w & c.ab: n = max(n, 12 if big else 8)
            if p.w & c.srcc and not (p.w == c.srcc and p.passes == c.passes): n = max(n, 10 if big else 6)
            if p.w & c.w and not (p.w & c.srcc): n = max(n, 10 if big else 6)
        elif c.cls in ("valu","ds","vmem"):
            if p.w & (c.r | c.w): n = max(n, 12 if big else 8)
            if c.cls == "valu" and p.srcc & c.w: n = max(n, 7 if big else 3)
    elif p.cls == "salu":
        if ("x","m0") in p.w and c.cls == "vmem" and getattr(c, "lds", False): n = max(n, 1)
    elif p.cls == "vmem":
        if p.data and len(p.data) >= 3 and p.data & c.w: n = max(n, 2)
    return n
class Asm:
    def __init__(self): self.L = []
    def __call__(self, text):
        for line in text.split("\n"):
            line = line.strip()
            if line: self.L.append(Ins(line))
    def label(self, n): self.L.append(Ins(n + ":"))
    def fix(self):
        out = []
        for ins in self.L:
            if ins.op:
                req = 0; dist = 0
                for p in reversed(out):
                    if dist >= 12: break
                    if p.op in ("s_branch", "s_endpgm"): break
                    if p.op:
                        k = need(p, ins) - dist
                        if k > req: req = k
                    dist += p.states()
                if req > 0: out.append(Ins(f"s_nop {req-1}"))
            out.append(ins)
        self.L = out
    def check_edges(self):
        idx = {i.text.split(";")[0].strip()[:-1]: k for k, i in enumerate(self.L) if i.label}
        bad = 0
        for k, b in enumerate(self.L):
            if b.op == "s_branch" or b.op.startswith("s_cbranch"):
                t = idx[b.ops[0]]
                tail = []; d = 0
                for p in reversed(self.L[:k+1]):
                    if d >= 12: break
                    if p.op: tail.append((p, d))
                    d += p.states()
                hd = 0
                for c in self.L[t:]:
                    if hd >= 12: break
                    if c.op:
                        for p, dd in tail:
                            if need(p, c) > dd + hd:
                                print("EDGE HAZARD:", p.text, "->", c.text, "need", need(p, c), "have", dd + hd); bad += 1
                        if c.op in ("s_branch","s_endpgm"): break
                    hd += c.states()
        return bad
    def check_waits(self, seq=None):
        vm = []; lg = []; bad = 0
        for ins in (seq or self.L):
            if not ins.op: continue
            if ins.op in ("s_branch", "s_endpgm") and seq is None: vm = []; lg = []; continue
            if ins.op == "s_waitcnt":
                t = ins.text
                m = re.search(r"vmcnt\((\d+)\)", t)
                if m: n = int(m.group(1)); vm = vm[len(vm)-n:] if n < len(vm) else vm; vm = vm if n else []
                m = re.search(r"lgkmcnt\((\d+)\)", t)
                if m:
                    n = int(m.group(1))
                    if n == 0: lg = []
                    else:
                        sm = [x for x in lg if x.cls == "smem"]; dd = [x for x in lg if x.cls != "smem"]
                        lg = sm + (dd[len(dd)-n:] if n < len(dd) else dd)
                continue
            for p in vm + lg:
                if p.w & (ins.r | ins.w) and not (("d16" in ins.op) and ("d16" in p.op) and p.cls == ins.cls):
                    print("WAIT MISSING:", p.text, "->", ins.text); bad += 1
            if ins.cls == "vmem": vm.append(ins)
            if ins.cls in ("ds", "smem"): lg.append(ins)
        return bad
    def path(self, dec):
        idx = {i.text.split(";")[0].strip()[:-1]: k for k, i in enumerate(self.L) if i.label}
        dec = {k: list(v) for k, v in dec.items()}
        seq = []; k = 0
        while True:
            i = self.L[k]
            if i.op: seq.append(i)
            if i.op == "s_endpgm": break
            if i.op == "s_branch": k = idx[i.ops[0]]; continue
            if i.op.startswith("s_cbranch"):
                d = dec.get(i.ops[0])
                if d and d.pop(0): k = idx[i.ops[0]]; continue
            k += 1
        return seq
    def text(self):
        return "\n".join((i.text if (i.label or i.directive) else "    " + i.text) for i in self.L)
```

```python
import sys, math, struct
sys.path.insert(0, "work")
from asmlib import *
NAME = "parallel_sum__spectral_gfnet__mixer_channel_mlp__prompt_kernel"
DEBUG = "--stamps" in sys.argv
def f2u(x): return "0x%08x" % struct.unpack("<I", struct.pack("<f", x))[0]

TAG = 0x0
F1, FW, F2, F3, F4 = 0x1000, 0x3000, 0x4000, 0x6000, 0x8000
STAMPS = 0x20000
ZB, WT, YB, HB, PB = 0x100000, 0x300000, 0x500000, 0x800000, 0x1000000
WS_BYTES = 0x1800000
XR = 131072
ST = XR + 8192
ST2 = ST + 8192
LDS_BYTES = 163840
SPIN_MAX = 400000

a = Asm()
sX, sW, sWS, sOUT = "s[4:7]", "s[8:11]", "s[12:15]", "s[16:19]"
sTAG = "s[42:43]"
XCD, IDX, WAVE, R_, JL, HF, RHO, KAP = "s44", "s45", "s46", "s47", "s48", "s49", "s50", "s51"
ONES = "s56"
nstamp = [0]
def stamp(i):
    if DEBUG:
        a(f"s_memrealtime s[{70+2*i}:{71+2*i}]")
def dump_stamps(role):
    if not DEBUG: return
    lbl = f"Lds{role}_{len(a.L)}"
    a(f"s_cmp_lg_u32 {WAVE}, {0 if role == 0 else 4}")
    a(f"s_cbranch_scc1 {lbl}")
    a("s_waitcnt lgkmcnt(0)")
    for i in range(32): a(f"v_mov_b32 v{32+i}, s{70+i}")
    a("v_mov_b32 v2, 0")
    a(f"s_lshl_b32 s57, s2, 7")
    a(f"s_add_u32 s57, s57, {STAMPS + role*0x8000}")
    a("s_mov_b64 exec, 1")
    for i in range(8): a(f"buffer_store_dwordx4 v[{32+4*i}:{35+4*i}], v2, {sWS}, s57 offen offset:{16*i}")
    a("s_mov_b64 exec, -1")
    a.label(lbl)
def vr(b, n): return f"v[{b}:{b+n-1}]"
uid = [0]
def newlbl(p): uid[0] += 1; return f"L{p}{uid[0]}"

def flag_store(soff_reg, vtmp):
    a(f"v_mov_b32 v{vtmp}, s42"); a(f"v_mov_b32 v{vtmp+1}, s43"); a(f"v_mov_b32 v{vtmp+2}, 0")
    a("s_mov_b64 exec, 1")
    a(f"buffer_store_dwordx2 {vr(vtmp,2)}, v{vtmp+2}, {sWS}, {soff_reg} offen sc1")
    a("s_mov_b64 exec, -1")
def poll_issue(vaddr, soff, vd):
    a(f"buffer_load_dwordx2 {vr(vd,2)}, v{vaddr}, {sWS}, {soff} offen sc1")
def poll_check(vaddr, soff, vd, vmwait):
    again = newlbl("pa"); done = newlbl("pd"); chk = newlbl("pc")
    a("s_mov_b32 s58, 0")
    a(f"s_waitcnt vmcnt({vmwait})")
    a(f"s_branch {chk}")
    a.label(again)
    a("s_sleep 1")
    poll_issue(vaddr, soff, vd)
    a("s_add_u32 s58, s58, 1")
    a("s_waitcnt vmcnt(0)")
    a(f"s_cmp_ge_u32 s58, {SPIN_MAX}")
    a(f"s_cbranch_scc1 {done}")
    a.label(chk)
    a(f"v_cmp_ne_u64 vcc, {sTAG}, {vr(vd,2)}")
    a("s_nop 1")
    a("s_cmp_lg_u64 vcc, 0")
    a(f"s_cbranch_scc1 {again}")
    a.label(done)

a("s_load_dwordx16 s[20:35], s[0:1], 0")
a("s_load_dwordx2 s[40:41], s[0:1], 80")
a("s_load_dwordx2 s[36:37], s[0:1], 64")
if DEBUG:
    a("s_memrealtime s[70:71]")
    for i in range(72, 102): a(f"s_mov_b32 s{i}, 0")
a("s_cmp_ge_u32 s2, 256")
a("s_cbranch_scc1 Lend")
a("s_getpc_b64 s[52:53]")
a.label("Lpc")
a("v_lshrrev_b32 v2, 6, v0")
a("v_and_b32 v0, 63, v0")
a(f"s_and_b32 {XCD}, s2, 7")
a(f"v_readfirstlane_b32 {WAVE}, v2")
a(f"s_lshr_b32 {IDX}, s2, 3")
a(f"s_and_b32 {R_}, {IDX}, 3")
a("s_mov_b32 s54, Lcode_end-Lpc")
a("s_mov_b32 s55, 0x20000")
a(f"s_cmp_lg_u32 {WAVE}, 3")
a("s_cbranch_scc1 Lnopf")
a("v_lshlrev_b32 v2, 7, v0")
a(f"s_lshl_b32 s57, {R_}, 13")
a("buffer_load_dword v255, v2, s[52:55], s57 offen")
a.label("Lnopf")
a("v_lshlrev_b32 v1, 4, v0")
a(f"s_lshr_b32 {JL}, {IDX}, 2")
a(f"s_and_b32 {HF}, {XCD}, 1")
a(f"s_and_b32 s57, {XCD}, 6")
a(f"s_lshl_b32 s57, s57, 1")
a(f"s_add_u32 {R_}, {R_}, s57")
a(f"s_lshl_b32 {KAP}, {XCD}, 5")
a(f"s_add_u32 {KAP}, {KAP}, {IDX}")
a(f"s_mov_b32 s6, 2097152"); a("s_mov_b32 s7, 0x20000")
a(f"s_mov_b32 s14, {WS_BYTES}"); a("s_mov_b32 s15, 0x20000")
a(f"s_cmp_lt_u32 {WAVE}, 4")
a("s_cbranch_scc1 Lcompute")

a("s_mov_b32 s11, 0x20000")
a(f"s_cmp_eq_u32 {JL}, 7")
a("s_cbranch_scc1 Lhelper_loader")
a(f"s_and_b32 s63, {IDX}, 3"); a("s_lshl_b32 s63, s63, 1"); a(f"s_add_u32 s63, s63, {JL}")
a(f"s_bfe_u32 s57, {XCD}, 0x10001"); a("s_add_u32 s63, s63, s57")
a(f"s_lshl_b32 s57, {HF}, 2"); a("s_add_u32 s63, s63, s57"); a("s_and_b32 s63, s63, 7")
a("s_mov_b32 s64, 7"); a("s_mov_b32 s65, 4"); a("s_mov_b32 s66, 0")
a(f"s_cmp_eq_u32 {WAVE}, 5")
a("s_cbranch_scc1 Lld_w")
a("v_lshrrev_b32 v6, 4, v0")
a("v_bfe_u32 v7, v0, 3, 1")
a("v_lshlrev_b32 v7, 20, v7")
a("v_lshl_add_u32 v7, v6, 15, v7")
a("v_and_b32 v8, 7, v0")
a("v_xor_b32 v8, v8, v6")
a("v_lshl_add_u32 v2, v8, 4, v7")
a("v_xor_b32 v3, 64, v2")
a("v_mov_b32 v4, v2"); a("v_mov_b32 v5, v3")
a(f"s_lshr_b32 s59, {R_}, 1"); a("s_lshl_b32 s59, s59, 17")
a(f"s_and_b32 s57, {R_}, 1"); a("s_lshl_b32 s57, s57, 14"); a("s_add_u32 s59, s59, s57")
a("s_mov_b32 s60, 128"); a("s_mov_b32 s61, 4096"); a("s_mov_b32 s62, 0")
a("s_mov_b32 s10, 2097152")
a("s_waitcnt lgkmcnt(0)")
a("s_mov_b32 s8, s20"); a("s_mov_b32 s9, s21")
a("s_branch Lld_loop")
a.label("Lld_w")
a("v_bfe_u32 v6, v0, 2, 2")
a("v_mul_u32_u24 v6, 3584, v6")
a("v_lshrrev_b32 v7, 4, v0")
a("v_lshl_add_u32 v6, v7, 6, v6")
a("v_and_b32 v7, 3, v0")
a("v_lshl_add_u32 v2, v7, 4, v6")
for j in range(1, 4): a(f"v_add_u32 v{2+j}, {j*(4*3584-1024)}, v2")
a(f"s_mul_i32 s59, {HF}, 7"); a(f"s_add_u32 s59, s59, {JL}"); a("s_lshl_b32 s59, s59, 8")
a(f"s_mov_b32 s60, {64*3584}"); a(f"s_mov_b32 s61, {16*3584}"); a("s_mov_b32 s62, 16384")
a("s_mov_b32 s10, 1835008")
a("s_waitcnt lgkmcnt(0)")
a("s_mov_b32 s8, s28"); a("s_mov_b32 s9, s29")
def issue_stage():
    lp = newlbl("ig")
    a("s_mul_i32 s67, s63, s60"); a("s_add_u32 s67, s67, s59")
    a("s_and_b32 s68, s66, 3"); a("s_lshl_b32 s68, s68, 15"); a("s_add_u32 s68, s68, s62")
    a("s_mov_b32 s69, s65")
    a.label(lp)
    a("s_mov_b32 m0, s68")
    a("s_add_u32 s68, s68, 4096")
    for j in range(4): a(f"buffer_load_dwordx4 v{2+j}, {sW}, s67 offen offset:{1024*j} lds")
    a("s_add_u32 s67, s67, s61")
    a("s_sub_u32 s69, s69, 1")
    a("s_cmp_lg_u32 s69, 0")
    a(f"s_cbranch_scc1 {lp}")
    a("s_add_u32 s63, s63, 1"); a("s_and_b32 s63, s63, s64")
    a("s_add_u32 s66, s66, 1")
a.label("Lld_loop")
issue_stage()
a("s_cmp_eq_u32 s66, 1")
a("s_cbranch_scc1 Lld_first")
a("s_waitcnt vmcnt(16)")
a("s_barrier")
a("s_cmp_lt_u32 s66, 8")
a("s_cbranch_scc1 Lld_loop")
a("s_mov_b32 s57, 1")
a("s_branch Lld_w2")
a.label("Lld_first")
a(f"s_load_dwordx2 {sTAG}, s[40:41], {TAG}")
stamp(1)
a("s_branch Lld_loop")
a.label("Lhelper_loader")
for j in range(4): a(f"v_mov_b32 v{2+j}, v1")
a(f"s_lshl_b32 s59, {XCD}, 2"); a(f"s_and_b32 s57, {IDX}, 3"); a("s_add_u32 s59, s59, s57"); a("s_mul_i32 s59, s59, 32896")
a("s_mov_b32 s60, 0"); a("s_mov_b32 s61, 4096"); a("s_mov_b32 s63, 0"); a("s_mov_b32 s64, 0"); a("s_mov_b32 s65, 9"); a("s_mov_b32 s66, 0")
a("s_mov_b32 s10, 1052672")
a(f"s_cmp_eq_u32 {WAVE}, 5")
a("s_cselect_b32 s62, 36864, 0")
a("s_waitcnt lgkmcnt(0)")
a("s_cselect_b32 s8, s24, s22"); a("s_cselect_b32 s9, s25, s23")
a(f"s_load_dwordx2 {sTAG}, s[40:41], {TAG}")
a("s_barrier")
issue_stage()
a("s_waitcnt vmcnt(0)")
a("s_barrier")
a("s_barrier")
a("s_mov_b32 s57, 0")
a.label("Lld_w2")
a("s_waitcnt lgkmcnt(0)")
a("s_mov_b32 s12, s40"); a("s_mov_b32 s13, s41")
a("s_add_u32 s42, s42, 0x9e3779b9"); a("s_addc_u32 s43, s43, 0x7f4a7c15")
a(f"s_lshr_b32 s58, {KAP}, 6")
a(f"s_cmp_eq_u32 {WAVE}, 5")
a("s_cselect_b32 s59, 8, 11"); a("s_lshl_b32 s58, s58, s59")
a(f"s_cmp_eq_u32 {WAVE}, 5")
a(f"s_cselect_b32 s59, {FW-F1}, 0"); a("s_add_u32 s3, s58, s59"); a(f"s_add_u32 s3, s3, {F1}")
a(f"s_cmp_eq_u32 {WAVE}, 5")
a("s_cselect_b32 s59, 7, 63")
a("v_and_b32 v6, s59, v0"); a("v_lshlrev_b32 v6, 5, v6")
a(f"buffer_load_dwordx4 v[8:11], v6, {sWS}, s3 offen sc1")
a(f"buffer_load_dwordx4 v[12:15], v6, {sWS}, s3 offen offset:16 sc1")
a("v_bfe_u32 v7, v0, 2, 2"); a("v_lshlrev_b32 v7, 10, v7")
a("v_lshrrev_b32 v16, 4, v0"); a("v_lshl_add_u32 v7, v16, 6, v7")
a("v_and_b32 v16, 3, v0"); a("v_lshl_add_u32 v2, v16, 4, v7")
for j in range(1, 4): a(f"v_add_u32 v{2+j}, {j*(4096-1024)}, v2")
a("s_mov_b32 s8, s32"); a("s_mov_b32 s9, s33"); a("s_mov_b32 s10, 1835008")
a(f"s_lshl_b32 s59, {HF}, 1"); a(f"s_lshr_b32 s58, {IDX}, 4"); a("s_add_u32 s59, s59, s58"); a(f"s_mul_i32 s59, s59, {448*1024}")
a(f"s_and_b32 s58, {JL}, 3"); a("s_lshl_b32 s58, s58, 8"); a("s_add_u32 s59, s59, s58")
a(f"s_cmp_eq_u32 {WAVE}, 5")
a(f"s_cselect_b32 s58, {64*1024}, 0"); a("s_cselect_b32 s62, 16384, 0"); a("s_cselect_b32 s65, 3, 4")
a("s_add_u32 s59, s59, s58")
a(f"s_mov_b32 s60, {112*1024}"); a(f"s_mov_b32 s61, {16*1024}")
a(f"s_and_b32 s63, {IDX}, 3"); a("s_mov_b32 s64, 3"); a("s_mov_b32 s66, 0")
a.label("Lw2_loop")
issue_stage()
a("s_cmp_lg_u32 s66, 1")
a("s_cbranch_scc1 Lw2_next")
a("s_waitcnt vmcnt(16)")
a("s_cmp_eq_u32 s65, 4")
a("s_cbranch_scc1 Lw2_w16")
a("s_waitcnt vmcnt(12)")
a.label("Lw2_w16")
a("s_cmp_eq_u32 s57, 0")
a("s_cbranch_scc1 Lw2_nos7")
a("s_barrier")
a.label("Lw2_nos7")
stamp(2)
a("s_mov_b32 s58, 0")
a("s_branch Lw2_chk")
a.label("Lw2_again")
a("s_sleep 1")
a(f"buffer_load_dwordx4 v[8:11], v6, {sWS}, s3 offen sc1")
a(f"buffer_load_dwordx4 v[12:15], v6, {sWS}, s3 offen offset:16 sc1")
a("s_add_u32 s58, s58, 1")
a("s_waitcnt vmcnt(0)")
a(f"s_cmp_ge_u32 s58, {SPIN_MAX}")
a("s_cbranch_scc1 Lw2_ok")
a.label("Lw2_chk")
a(f"v_cmp_ne_u64 vcc, {sTAG}, v[8:9]")
a(f"v_cmp_ne_u64 s[20:21], {sTAG}, v[10:11]")
a(f"v_cmp_ne_u64 s[22:23], {sTAG}, v[12:13]")
a(f"v_cmp_ne_u64 s[24:25], {sTAG}, v[14:15]")
a("s_or_b64 vcc, vcc, s[20:21]"); a("s_or_b64 s[22:23], s[22:23], s[24:25]"); a("s_or_b64 vcc, vcc, s[22:23]")
a("s_cbranch_scc1 Lw2_again")
a.label("Lw2_ok")
stamp(3)
a("s_barrier")
a.label("Lw2_next")
a("s_cmp_lt_u32 s66, 4")
a("s_cbranch_scc1 Lw2_loop")
a("s_waitcnt vmcnt(0)")
stamp(4)
a("s_barrier")
dump_stamps(1)
a("s_endpgm")

a.label("Lcompute")
FT = 8
def Fre(o, t): return vr(FT + (2*o+t)*6 + 2, 4)
def Fim(o, t): return vr(FT + (2*o+t)*6, 4)
ACC = 64
TW1c, TW1s = 152, 160
TW2c, TW2s = 168, 172
UVa, UVb = 176, 180
B1V = 184
ZIN, WIN = 192, 200
FM, FN = 208, 216
H16 = "s59"
a(f"s_lshl_b32 {RHO}, {R_}, 4"); a(f"s_add_u32 {RHO}, {RHO}, {JL}"); a(f"s_lshl_b32 s57, {HF}, 3"); a(f"s_add_u32 {RHO}, {RHO}, s57")
a(f"s_lshr_b32 s57, {RHO}, 5"); a("s_lshl_b32 s57, s57, 7"); a(f"s_and_b32 s58, {RHO}, 31"); a("s_add_u32 s57, s57, s58")
a(f"s_lshl_b32 s58, {WAVE}, 5"); a("s_add_u32 s57, s57, s58"); a("s_lshl_b32 s60, s57, 10")
a(f"s_lshl_b32 s61, {WAVE}, 11"); a(f"s_add_u32 s61, s61, {XR}")
a("s_add_u32 s57, s60, 0xffc00")
a("s_mov_b32 m0, s61")
a(f"s_mov_b32 {ONES}, 0x3f803f80")
a(f"s_and_b32 {H16}, {WAVE}, 1"); a(f"s_lshl_b32 {H16}, {H16}, 4")
a("s_mov_b32 s10, 3584"); a("s_mov_b32 s11, 0x20000")
a("s_mov_b32 s18, 2097152"); a("s_mov_b32 s19, 0x20000")
a("v_and_b32 v2, 31, v0"); a("v_lshlrev_b32 v2, 1, v2")
a(f"s_mul_i32 s62, {HF}, 7"); a(f"s_add_u32 s62, s62, {JL}")
a("s_lshl_b32 s63, s62, 8"); a(f"s_lshl_b32 s58, {H16}, 3"); a("s_add_u32 s63, s63, s58")
a(f"s_lshr_b32 s58, {WAVE}, 1"); a("s_lshl_b32 s58, s58, 6"); a("s_add_u32 s63, s63, s58")
a("s_waitcnt lgkmcnt(0)")
a("s_mov_b32 s4, s20"); a("s_mov_b32 s5, s21")
a(f"buffer_load_dwordx4 v1, {sX}, s60 offen lds")
a(f"buffer_load_dwordx4 v1, {sX}, s57 offen offset:1024 lds")
a("s_mov_b32 s8, s30"); a("s_mov_b32 s9, s31")
a(f"buffer_load_ushort v{B1V}, v2, {sW}, s63 offen")
a("s_mov_b32 s12, s40"); a("s_mov_b32 s13, s41")
a("s_mov_b32 s16, s36"); a("s_mov_b32 s17, s37")
a(f"s_load_dwordx2 {sTAG}, s[40:41], {TAG}")
stamp(1)

def gen_fm_fn():
    a("v_and_b32 v2, 15, v0")
    a("v_lshrrev_b32 v3, 4, v0"); a("v_lshlrev_b32 v3, 2, v3")
    a(f"v_add_u32 v4, {H16}, v2"); a("v_xor_b32 v5, 16, v4")
    a(f"v_cvt_f32_u32 v{FN}, v4"); a(f"v_cvt_f32_u32 v{FN+1}, v5")
    a(f"v_add_u32 v4, {H16}, v3"); a("v_xor_b32 v5, 16, v4")
    a(f"v_cvt_f32_u32 v{FM}, v4"); a(f"v_cvt_f32_u32 v{FM+4}, v5")
    for t in range(2):
        a(f"v_add_f32 v{FM+4*t+1}, 1.0, v{FM+4*t}"); a(f"v_add_f32 v{FM+4*t+2}, 2.0, v{FM+4*t}"); a(f"v_add_f32 v{FM+4*t+3}, 1.0, v{FM+4*t+2}")
gen_fm_fn()
T0 = 220
def gen_mat(dst, vn, vm, tmp):
    for e in range(4): a(f"v_mul_f32 v{tmp+e}, v{vn}, v{vm+e}")
    for e in range(4): a(f"v_cos_f32 v{tmp+4+e}, v{tmp+e}")
    for e in range(4): a(f"v_sin_f32 v{tmp+e}, v{tmp+e}")
    a(f"v_cvt_pk_bf16_f32 v{dst+2}, v{tmp+4}, v{tmp+5}"); a(f"v_cvt_pk_bf16_f32 v{dst+3}, v{tmp+6}, v{tmp+7}")
    a(f"v_cvt_pk_bf16_f32 v{dst+4}, v{tmp}, v{tmp+1}"); a(f"v_cvt_pk_bf16_f32 v{dst+5}, v{tmp+2}, v{tmp+3}")
    a(f"v_xor_b32 v{dst}, 0x80008000, v{dst+4}"); a(f"v_xor_b32 v{dst+1}, 0x80008000, v{dst+5}")
def gen_tw(dc, ds, vn, vm, n):
    for e in range(n): a(f"v_mul_f32 v{ds+e}, v{vn}, v{vm+e}")
    for e in range(n): a(f"v_cos_f32 v{dc+e}, v{ds+e}")
    for e in range(n): a(f"v_sin_f32 v{ds+e}, v{ds+e}")
a(f"v_mul_f32 v6, {f2u(1/32)}, v{FN}"); a(f"v_mul_f32 v7, {f2u(1/32)}, v{FN+1}")
for o in range(2):
    for t in range(2): gen_mat(FT + (2*o+t)*6, 6+o, FM+4*t, T0)
G16, TWRc, TWRs, ZA = 32, 40, 48, 56
a(f"v_cvt_f32_u32 v{T0+8}, v3")
a(f"v_add_f32 v{T0+9}, 1.0, v{T0+8}"); a(f"v_add_f32 v{T0+10}, 2.0, v{T0+8}"); a(f"v_add_f32 v{T0+11}, 1.0, v{T0+10}")
a("v_cvt_f32_u32 v6, v2"); a(f"v_mul_f32 v6, {f2u(1/16)}, v6")
gen_mat(G16, 6, T0+8, T0)
for o in range(2):
    a(f"v_mul_f32 v6, {f2u(1/512)}, v{FN+o}")
    gen_tw(TWRc+4*o, TWRs+4*o, 6, T0+8, 4)
def gen_zaddr(dst, base):
    a(f"v_add_u32 v4, {H16}, v2")
    a("v_lshl_add_u32 v4, v3, 5, v4")
    a("v_xor_b32 v5, 16, v4")
    a("v_cmp_gt_u32 vcc, 32, v0")
    a("v_mov_b32 v6, 0xffffffe0"); a("v_cndmask_b32 v6, v6, 32, vcc")
    a(f"s_lshl_b32 s58, {WAVE}, 3")
    a("v_mov_b32 v7, 0x4004"); a("v_cndmask_b32 v7, v7, 0, vcc"); a("v_add_u32 v7, s58, v7")
    for o in range(2):
        a(f"v_mad_i32_i24 v{dst+4*o}, v{4+o}, v6, v7")
    a("v_lshlrev_b32 v6, 5, v6")
    for o in range(2):
        for r in range(1, 4): a(f"v_add_u32 v{dst+4*o+r}, v{dst+4*o+r-1}, v6")
    for o in range(2):
        a(f"v_and_b32 v{dst+4*o}, 0x1fff, v{dst+4*o}")
    for k in range(8): a(f"v_add_u32 v{dst+k}, {base}, v{dst+k}")
gen_zaddr(ZA, ST)
a(f"v_mul_f32 v6, {f2u(1/1024)}, v{FN}")
gen_tw(TW1c, TW1s, 6, FM, 8)
a(f"v_mul_f32 v6, {f2u(1/1024)}, v{FN+1}")
gen_tw(TW2c, TW2s, 6, FM, 4)
a("v_lshrrev_b32 v4, 5, v0"); a("v_lshlrev_b32 v4, 7, v4")
a("v_bfe_u32 v5, v0, 1, 4"); a("v_add_u32 v4, v4, v5")
a("v_and_b32 v5, 1, v0"); a("v_lshl_add_u32 v4, v5, 6, v4")
a(f"s_lshr_b32 s58, {WAVE}, 1"); a("s_lshl_b32 s58, s58, 9"); a(f"s_add_u32 s58, s58, {H16}")
a("v_add_u32 v4, s58, v4"); a("v_cvt_f32_u32 v4, v4"); a(f"v_mul_f32 v{T0}, {f2u(1/2048)}, v4")
for n in range(1, 4): a(f"v_add_f32 v{T0+n}, {f2u((256*(n>>1) + 32*(n&1))/2048)}, v{T0}")
for n in range(4): a(f"v_cos_f32 v{T0+4+n}, v{T0+n}")
for n in range(4): a(f"v_sin_f32 v{T0+n}, v{T0+n}")
for n in range(4): a(f"v_add_f32 v{T0+8+n}, v{T0+4+n}, v{T0+n}")
for n in range(4): a(f"v_sub_f32 v{T0+n}, v{T0+4+n}, v{T0+n}")
for n in range(4):
    a(f"v_cvt_pk_bf16_f32 v{UVa+n}, v{T0+8+n}, v{T0+n}"); a(f"v_cvt_pk_bf16_f32 v{UVb+n}, v{T0+n}, v{T0+8+n}")
stamp(2)

XF = 64
a("v_lshlrev_b32 v4, 3, v0")
a(f"s_lshl_b32 s58, {H16}, 5"); a("s_add_u32 s58, s58, s61")
a("v_add_u32 v4, s58, v4"); a("v_xor_b32 v5, 512, v4")
a("s_waitcnt vmcnt(1) lgkmcnt(0)")
a("s_add_u32 s42, s42, 0x9e3779b9"); a("s_addc_u32 s43, s43, 0x7f4a7c15")
for t in range(2):
    a(f"ds_read_b64_tr_b16 {vr(XF+4*t,2)}, v{4+t}")
    a(f"ds_read_b64_tr_b16 {vr(XF+4*t+2,2)}, v{4+t} offset:1024")
SS = 72
for k in range(4): a(f"v_mov_b32 v{SS+k}, 0")
a("s_waitcnt lgkmcnt(0)")
stamp(3)
for t in range(2):
    for d in range(2):
        for u in range(2):
            x = XF + 4*t + 2*u + d
            a(f"v_dot2c_f32_bf16 v{SS+2*u}, {ONES}, v{x}")
            a(f"v_dot2c_f32_bf16 v{SS+2*u+1}, v{x}, v{x}")
XU = 80
def unp(k):
    a(f"v_lshlrev_b32 v{XU+2*k}, 16, v{XF+k}"); a(f"v_and_b32 v{XU+2*k+1}, 0xffff0000, v{XF+k}")
unp(0); unp(1)
a(f"v_permlane16_swap_b32 v{SS}, v{SS+1}"); a(f"v_permlane16_swap_b32 v{SS+2}, v{SS+3}")
a(f"v_add_f32 v{SS}, v{SS}, v{SS+1}"); a(f"v_add_f32 v{SS+2}, v{SS+2}, v{SS+3}")
unp(2)
a(f"v_permlane32_swap_b32 v{SS}, v{SS+2}")
a(f"v_add_f32 v{SS}, v{SS}, v{SS+2}")
for k, sh in enumerate((8, 4, 2, 1)):
    unp(3 + k)
    a(f"v_add_f32_dpp v{SS}, v{SS}, v{SS} row_ror:{sh} row_mask:0xf bank_mask:0xf")
unp(7)
for k in range(4): a(f"v_readlane_b32 s{64+k}, v{SS}, {16*k}")
for u in range(2):
    a(f"v_mov_b32 v{SS+2*u}, s{64+2*u}"); a(f"v_mov_b32 v{SS+2*u+1}, s{65+2*u}")
for u in range(2):
    a(f"v_mul_f32 v{SS+2*u}, {f2u(1/512)}, v{SS+2*u}"); a(f"v_mul_f32 v{SS+2*u+1}, {f2u(1/512)}, v{SS+2*u+1}")
for u in range(2): a(f"v_fma_f32 v{SS+2*u+1}, -v{SS+2*u}, v{SS+2*u}, v{SS+2*u+1}")
for u in range(2): a(f"v_max_f32 v{SS+2*u+1}, 0, v{SS+2*u+1}")
for u in range(2): a(f"v_add_f32 v{SS+2*u+1}, {f2u(1e-5)}, v{SS+2*u+1}")
for u in range(2): a(f"v_rsq_f32 v{76+2*u}, v{SS+2*u+1}")
for u in range(2): a(f"v_mul_f32 v{77+2*u}, -v{SS+2*u}, v{76+2*u}".replace("v_mul_f32", "v_mul_f32_e64"))
for k in range(8):
    u = (k >> 1) & 1
    a(f"v_pk_fma_f32 {vr(XU+2*k,2)}, {vr(XU+2*k,2)}, {vr(76+2*u,2)}, {vr(76+2*u,2)} op_sel:[0,0,1] op_sel_hi:[1,0,1]")
for k in range(8): a(f"v_cvt_pk_bf16_f32 v{XF+k}, v{XU+2*k}, v{XU+2*k+1}")
D1 = 96
for t in range(2):
    for o in range(2):
        for ri in range(2):
            d = vr(D1 + 8*o + 4*ri, 4)
            a(f"v_mfma_f32_16x16x32_bf16 {d}, {vr(XF+4*t,4)}, {(Fre if ri == 0 else Fim)(o,t)}, {'0' if t == 0 else d}")
def twiddle(re, im, c, s, n, tmp, conj, outre=None, outim=None):
    for p in range(0, n, 2):
        a(f"v_pk_mul_f32 {vr(tmp+p,2)}, {vr(im+p,2)}, {vr(s+p,2)}")
        a(f"v_pk_mul_f32 {vr(tmp+n+p,2)}, {vr(re+p,2)}, {vr(s+p,2)}")
    ng = " neg_lo:[0,0,1] neg_hi:[0,0,1]"
    for p in range(0, n, 2):
        a(f"v_pk_fma_f32 {vr(tmp+p,2)}, {vr(re+p,2)}, {vr(c+p,2)}, {vr(tmp+p,2)}" + (ng if conj else ""))
        a(f"v_pk_fma_f32 {vr(tmp+n+p,2)}, {vr(im+p,2)}, {vr(c+p,2)}, {vr(tmp+n+p,2)}" + ("" if conj else ng))
def packfrag(dst, lo, hi):
    a(f"v_cvt_pk_bf16_f32 v{dst}, v{lo}, v{lo+1}"); a(f"v_cvt_pk_bf16_f32 v{dst+1}, v{lo+2}, v{lo+3}")
    a(f"v_cvt_pk_bf16_f32 v{dst+2}, v{hi}, v{hi+1}"); a(f"v_cvt_pk_bf16_f32 v{dst+3}, v{hi+2}, v{hi+3}")
for o in range(2):
    twiddle(D1+8*o, D1+8*o+4, TWRc+4*o, TWRs+4*o, 4, XU+8*o, False)
for o in range(2): packfrag(XF+4*o, XU+8*o, XU+8*o+4)
D2 = 112
for o in range(2):
    a(f"v_mfma_f32_16x16x32_bf16 {vr(D2+8*o,4)}, {vr(G16+2,4)}, {vr(XF+4*o,4)}, 0")
    a(f"v_mfma_f32_16x16x32_bf16 {vr(D2+8*o+4,4)}, {vr(G16,4)}, {vr(XF+4*o,4)}, 0")
AX, AW = 2, 6
a("v_and_b32 v7, 31, v0")
a("v_lshrrev_b32 v2, 5, v0"); a("v_bfe_u32 v3, v0, 1, 3"); a("v_xor_b32 v2, v2, v3")
a("v_lshlrev_b32 v2, 4, v2"); a("v_lshl_add_u32 v2, v7, 7, v2")
a(f"s_lshr_b32 s58, {WAVE}, 1"); a("s_lshl_b32 s58, s58, 13")
a("v_add_u32 v2, s58, v2")
for ks in range(1, 4): a(f"v_xor_b32 v{2+ks}, {ks*32}, v2")
for o in range(2):
    for r in range(4): a(f"v_cvt_pk_bf16_f32 v{XU+4*o+r}, v{D2+8*o+r}, v{D2+8*o+4+r}")
a(f"s_cmp_eq_u32 {H16}, 0")
a("s_cbranch_scc0 Lz1")
a(f"v_readlane_b32 s58, v{XU}, 32"); a(f"v_writelane_b32 v{XU}, s58, 0")
a("s_branch Lz2")
a.label("Lz1")
a(f"v_readlane_b32 s58, v{XU+4}, 32"); a(f"v_writelane_b32 v{XU+4}, s58, 0")
a.label("Lz2")
for k in range(8): a(f"ds_write_b32 v{ZA+k}, v{XU+k}")
a("v_lshrrev_b32 v6, 5, v0"); a("v_lshlrev_b32 v6, 11, v6")
a("v_bfe_u32 v7, v0, 2, 2"); a("v_lshl_add_u32 v6, v7, 6, v6")
a("v_bfe_u32 v7, v0, 4, 1"); a("v_lshl_add_u32 v6, v7, 5, v6")
a("v_and_b32 v7, 3, v0"); a("v_lshl_add_u32 v6, v7, 3, v6")
a(f"s_lshl_b32 s58, {H16}, 5"); a("s_add_u32 s58, s58, 16384"); a("v_add_u32 v6, s58, v6")
a(f"s_lshl_b32 s58, {WAVE}, 11"); a(f"s_add_u32 s57, s58, {ST}"); a("v_add_u32 v7, s57, v1")
a(f"s_lshl_b32 s57, {RHO}, 13"); a("s_add_u32 s57, s57, s58"); a(f"s_add_u32 s57, s57, {ZB}")
SSUM, SSQ, SCS = 185, 186, 187
for k in (SSUM, SSQ, SCS): a(f"v_mov_b32 v{k}, 0")
a("s_waitcnt lgkmcnt(0)")
for k in range(0, 64, 2): a(f"v_mov_b64 {vr(ACC+k,2)}, 0")
stamp(4)
a("s_barrier")
a(f"ds_read_b128 {vr(T0,4)}, v7"); a(f"ds_read_b128 {vr(T0+4,4)}, v7 offset:1024")
a("s_waitcnt lgkmcnt(0)")
a(f"buffer_store_dwordx4 {vr(T0,4)}, v1, {sWS}, s57 offen sc1")
a(f"buffer_store_dwordx4 {vr(T0+4,4)}, v1, {sWS}, s57 offen offset:1024 sc1")
a(f"s_lshl_b32 s60, {RHO}, 3"); a("s_add_u32 s60, s60, s58"); a(f"s_add_u32 s60, s60, {F1}")
stamp(5)
a(f"s_cmp_eq_u32 {JL}, 7")
a("s_cbranch_scc1 Lhelper")

FR = 32
a(f"s_lshl_b32 s58, {H16}, 8")
for ks in range(4): a(f"v_add_u32 v{AX+ks}, s58, v{AX+ks}")
for ks in range(4): a(f"v_xor_b32 v{188+ks}, 4096, v{AX+ks}")
a(f"s_lshr_b32 s58, {WAVE}, 1"); a("s_lshl_b32 s58, s58, 8")
a(f"v_add_u32 v{AW}, s58, v{AW}"); a(f"v_xor_b32 v7, 256, v{AW}")
AX2, AW2 = 188, 7
def g1_reads(buf, slot, ks):
    b = FR + 16*buf; so = slot*32768
    for j in range(2): a(f"ds_read_b64_tr_b16 {vr(b+2*j,2)}, v{AW} offset:{so + ks*4096 + j*1024}")
    a(f"ds_read_b128 {vr(b+8,4)}, v{AX+ks} offset:{so}")
    a(f"ds_read_b128 {vr(b+12,4)}, v{AX2+ks} offset:{so}")
    for j in range(2): a(f"ds_read_b64_tr_b16 {vr(b+4+2*j,2)}, v{AW2} offset:{so + ks*4096 + j*1024}")
def acc(fb, tb): return vr(ACC + 32*fb + 16*tb, 16)
def g1_mfma(buf, fb, tb):
    b = FR + 16*buf
    a(f"v_mfma_f32_32x32x16_bf16 {acc(fb,tb)}, {vr(b+4*fb,4)}, {vr(b+8+4*tb,4)}, {acc(fb,tb)}")
def g1_dots(buf, k):
    b = FR + 16*buf
    a(f"v_dot2c_f32_bf16 v{SSUM}, {ONES}, v{b+8+k}")
    a(f"v_dot2c_f32_bf16 v{SSQ}, v{b+8+k}, v{b+8+k}")
    a(f"v_dot2c_f32_bf16 v{SCS}, {ONES}, v{b+k}")
g1_reads(0, 0, 0)
a("s_mov_b32 s61, 0")
a.label("Lg1")
loop_start = len(a.L)
for n in range(8):
    slot, ks = n >> 2, n & 3
    buf = n & 1
    a("s_waitcnt lgkmcnt(0)")
    g1_mfma(buf, 0, 0)
    if n == 7:
        a("s_cmp_eq_u32 s61, 3")
        a("s_cbranch_scc1 Lg1_last")
        for r in list(range(AX, AX+4)) + list(range(AX2, AX2+4)) + [AW, AW2]: a(f"v_xor_b32 v{r}, 0x10000, v{r}")
    if ks == 3: a("s_barrier")
    nn = (n + 1) & 7
    g1_reads(buf ^ 1, nn >> 2, nn & 3)
    if n == 7: a.label("Lg1_last")
    g1_dots(buf, 0)
    g1_mfma(buf, 0, 1); g1_dots(buf, 1)
    g1_mfma(buf, 1, 0); g1_dots(buf, 2)
    g1_mfma(buf, 1, 1); g1_dots(buf, 3)
a("s_cmp_lg_u32 s61, 0")
a("s_cbranch_scc1 Lg1_nf")
a("s_waitcnt vmcnt(0)")
flag_store("s60", T0)
a.label("Lg1_nf")
a("s_add_u32 s61, s61, 1")
a("s_cmp_lt_u32 s61, 4")
a("s_cbranch_scc1 Lg1")
stamp(6)
t = T0
for k, r in enumerate((SSUM, SSQ, SCS)): a(f"v_mov_b32 v{t+k}, v{r}")
for k, r in enumerate((SSUM, SSQ, SCS)): a(f"v_permlane32_swap_b32 v{t+k}, v{r}")
for k, r in enumerate((SSUM, SSQ, SCS)): a(f"v_add_f32 v{r}, v{t+k}, v{r}")
a(f"v_mul_f32 v{SSUM}, {f2u(-1/512)}, v{SSUM}")
a(f"v_mul_f32 v{SSQ}, {f2u(1/512)}, v{SSQ}")
a(f"v_fma_f32 v{SSQ}, -v{SSUM}, v{SSUM}, v{SSQ}")
a(f"v_max_f32 v{SSQ}, 0, v{SSQ}")
a(f"v_mov_b32 v{t}, {f2u(1e-10)}")
a(f"v_fmac_f32 v{t}, {f2u(1+1e-5)}, v{SSQ}")
EB, EA = t+4, t+8
a(f"v_rsq_f32 v{EB+3}, v{t}")
a(f"v_cvt_pk_bf16_f32 v{t+1}, v{SSUM}, v{SCS}")
a(f"v_mul_f32 v{t}, v{t}, v{EB+3}")
a(f"v_lshlrev_b32 v{t+2}, 16, v{t+1}"); a(f"v_and_b32 v{t+3}, 0xffff0000, v{t+1}")
a(f"v_cvt_pk_bf16_f32 v{EB+1}, v{SSUM}, v{t}")
a(f"v_sub_f32 v{t+2}, v{SSUM}, v{t+2}"); a(f"v_sub_f32 v{t+3}, v{SCS}, v{t+3}")
a(f"v_and_b32 v{t+1}, 0xffff0000, v{EB+1}")
a(f"v_cvt_pk_bf16_f32 v{EB}, v{SSUM}, v{t+2}")
a(f"v_sub_f32 v{t}, v{t}, v{t+1}")
a(f"v_cvt_pk_bf16_f32 v{EA}, v{SCS}, v{SCS}")
a(f"v_cvt_pk_bf16_f32 v{EB+2}, v{t}, 0")
a(f"v_cvt_pk_bf16_f32 v{EA+1}, v{t+3}, 0")
a(f"v_lshl_or_b32 v{EA+1}, v{B1V}, 16, v{EA+1}")
a(f"v_mov_b32 v{EA+2}, v{B1V}"); a(f"v_mov_b32 v{EA+3}, 0")
a("v_cmp_gt_u32 vcc, 32, v0")
for k in range(3): a(f"v_cndmask_b32 v{EA+k}, 0, v{EA+k}, vcc")
a(f"s_lshl_b32 s58, {WAVE}, 10"); a(f"s_add_u32 s58, s58, {ST2}")
a("v_add_u32 v2, s58, v1"); a("v_xor_b32 v3, 1024, v2"); a("v_xor_b32 v4, 2048, v2")
a(f"ds_write_b128 v2, {vr(EB,4)}"); a(f"ds_write_b128 v2, {vr(EA,4)} offset:4096")

def zw_addr():
    a("v_lshrrev_b32 v5, 5, v0"); a("v_lshlrev_b32 v5, 5, v5"); a("v_bfe_u32 v6, v0, 1, 4"); a("v_add_u32 v5, v5, v6")
    a("v_lshlrev_b32 v191, 5, v5")
    a("v_lshlrev_b32 v5, 13, v5"); a("v_and_b32 v6, 1, v0"); a("v_lshl_add_u32 v5, v6, 4, v5"); a("v_lshl_add_u32 v191, v6, 4, v191")
    a(f"s_lshr_b32 s58, {WAVE}, 1"); a("s_lshl_b32 s58, s58, 7"); a(f"s_add_u32 s66, s58, {H16}")
    a("s_lshl_b32 s62, s66, 13"); a(f"s_lshl_b32 s58, {KAP}, 5"); a("s_add_u32 s62, s62, s58"); a(f"s_add_u32 s62, s62, {ZB}")
    a(f"s_add_u32 s63, s62, {64*8192}")
    a("v_lshrrev_b32 v6, 4, v0"); a("v_lshlrev_b32 v6, 10, v6"); a("v_and_b32 v7, 15, v0"); a("v_lshl_add_u32 v6, v7, 2, v6")
    a(f"s_lshl_b32 s64, {KAP}, 13"); a(f"s_lshl_b32 s58, {WAVE}, 6"); a("s_add_u32 s64, s64, s58"); a(f"s_add_u32 s64, s64, {WT}")
    a(f"s_lshl_b32 s58, {H16}, 8"); a("s_add_u32 s64, s64, s58"); a("s_xor_b32 s65, s64, 4096")
def zw_loads():
    a(f"buffer_load_dwordx4 {vr(ZIN,4)}, v5, {sWS}, s62 offen sc1")
    a(f"buffer_load_dwordx4 {vr(ZIN+4,4)}, v5, {sWS}, s63 offen sc1")
    for o in range(2):
        for r in range(4): a(f"buffer_load_dword v{WIN+4*o+r}, v6, {sWS}, s{64+o} offen offset:{256*r} sc1")
a(f"s_mul_i32 s57, {HF}, 7"); a(f"s_add_u32 s57, s57, {JL}")
a(f"s_lshl_b32 s67, {R_}, 2"); a(f"s_add_u32 s67, s67, {WAVE}")
a("s_xor_b32 s68, s67, 1")
a("s_lshl_b32 s57, s57, 13"); a(f"s_lshl_b32 s58, {H16}, 8"); a("s_add_u32 s57, s57, s58"); a(f"s_add_u32 s57, s57, {HB}")
a(f"s_mul_i32 s67, s67, {112*1024}"); a(f"s_mul_i32 s68, s68, {112*1024}")
a("s_add_u32 s67, s67, s57"); a("s_add_u32 s68, s68, s57")
zw_addr()
a(f"s_lshr_b32 s58, {WAVE}, 1"); a("s_lshl_b32 s58, s58, 11")
a("v_add_u32 v188, s58, v1"); a("v_xor_b32 v189, 2048, v188")
a("s_waitcnt lgkmcnt(0)")
stamp(7)
a("s_barrier")
EB2, EA2 = t+12, t+16
a(f"ds_read_b128 {vr(EB2,4)}, v3"); a(f"ds_read_b128 {vr(EA2,4)}, v4 offset:4096")
zw_loads()
KC = 32
C0 = -2*math.sqrt(2/math.pi)*math.log2(math.e); C1 = C0*0.044715
def kconst(tb, eb):
    k = KC + 4*tb
    a(f"v_mul_f32 v{k}, v{eb+3}, v{eb+3}"); a(f"v_rcp_f32 v{k+2}, v{eb+3}")
    a(f"v_mul_f32 v{k+1}, {f2u(C0)}, v{eb+3}"); a(f"v_mul_f32 v{k}, v{k}, v{eb+3}"); a(f"v_mul_f32 v{k}, {f2u(C1)}, v{k}")
    a(f"v_mov_b32 v{eb+3}, 0")
kconst(0, EB)
a(f"v_mfma_f32_32x32x16_bf16 {acc(0,0)}, {vr(EA,4)}, {vr(EB,4)}, {acc(0,0)}")
a("s_waitcnt lgkmcnt(0)")
kconst(1, EB2)
a(f"v_mfma_f32_32x32x16_bf16 {acc(1,0)}, {vr(EA2,4)}, {vr(EB,4)}, {acc(1,0)}")
a(f"v_mfma_f32_32x32x16_bf16 {acc(0,1)}, {vr(EA,4)}, {vr(EB2,4)}, {acc(0,1)}")
a(f"v_mfma_f32_32x32x16_bf16 {acc(1,1)}, {vr(EA2,4)}, {vr(EB2,4)}, {acc(1,1)}")
GT = 40
cnt = 0
for tb in range(2):
    for fb in range(2):
        for th in range(2):
            x = ACC + 32*fb + 16*tb + 8*th; k = KC + 4*tb; o = 48 + 4*(cnt & 1); cnt += 1
            for p in range(0, 8, 2): a(f"v_pk_mul_f32 {vr(GT+p,2)}, {vr(x+p,2)}, {vr(x+p,2)}")
            for p in range(0, 8, 2): a(f"v_pk_fma_f32 {vr(GT+p,2)}, {vr(GT+p,2)}, {vr(k,2)}, {vr(k,2)} op_sel:[0,0,1] op_sel_hi:[1,0,1]")
            for p in range(0, 8, 2): a(f"v_pk_mul_f32 {vr(GT+p,2)}, {vr(GT+p,2)}, {vr(x+p,2)}")
            for p in range(8): a(f"v_exp_f32 v{GT+p}, v{GT+p}")
            for p in range(0, 8, 2): a(f"v_pk_fma_f32 {vr(GT+p,2)}, {vr(GT+p,2)}, {vr(k+2,2)}, {vr(k+2,2)} op_sel_hi:[1,0,0]")
            for p in range(8): a(f"v_rcp_f32 v{GT+p}, v{GT+p}")
            for p in range(0, 8, 2): a(f"v_pk_mul_f32 {vr(GT+p,2)}, {vr(GT+p,2)}, {vr(x+p,2)}")
            for p in range(4): a(f"v_cvt_pk_bf16_f32 v{o+p}, v{GT+2*p}, v{GT+2*p+1}")
            a(f"buffer_store_dwordx4 {vr(o,4)}, v{188+fb}, {sWS}, s{67+tb} offen offset:{1024*th} sc1")
a("s_waitcnt vmcnt(8)")
a("s_branch Lcol")

a.label("Lhelper")
a("v_bfe_u32 v2, v0, 3, 1"); a("v_bfe_u32 v3, v0, 2, 1"); a("v_lshl_add_u32 v2, v3, 5, v2")
a("v_and_b32 v3, 3, v0"); a("v_lshl_add_u32 v2, v3, 3, v2"); a("v_mul_u32_u24 v2, 514, v2")
a("v_lshrrev_b32 v3, 4, v0"); a(f"s_lshl_b32 s58, {WAVE}, 6"); a("v_add_u32 v3, s58, v3")
a("v_lshl_add_u32 v4, v3, 1, v2")
a("v_cmp_eq_u32 vcc, 0, v3"); a("v_add_u32 v5, 512, v4"); a("v_cndmask_b32 v5, v4, v5, vcc")
a("v_lshlrev_b32 v3, 13, v3"); a("v_and_b32 v6, 15, v0"); a("v_lshl_add_u32 v3, v6, 4, v3")
a(f"s_lshl_b32 s62, {XCD}, 2"); a(f"s_and_b32 s58, {IDX}, 3"); a("s_add_u32 s62, s62, s58")
a("s_lshl_b32 s63, s62, 8"); a(f"s_add_u32 s63, s63, {WT}")
a("s_waitcnt vmcnt(0)")
flag_store("s60", T0)
a("s_barrier")
a("s_mov_b32 s61, 0")
a.label("Lhl")
for u in range(4):
    for tt in range(4):
        ad = "v5" if u == 0 else "v4"
        a(f"ds_read_u16 v{32+4*u+tt}, {ad} offset:{u*8 + tt*1028}")
        a(f"ds_read_u16 v{48+4*u+tt}, {ad} offset:{36864 + u*8 + tt*1028}")
a("s_waitcnt lgkmcnt(0)")
for u in range(4):
    for tt in range(4): a(f"v_lshl_or_b32 v{64+4*u+tt}, v{48+4*u+tt}, 16, v{32+4*u+tt}")
    a(f"buffer_store_dwordx4 {vr(64+4*u,4)}, v3, {sWS}, s63 offen sc1")
    a(f"s_add_u32 s63, s63, {4*8192}")
a("v_add_u32 v4, 32, v4"); a("v_mov_b32 v5, v4")
a("s_add_u32 s61, s61, 1"); a("s_cmp_lt_u32 s61, 4"); a("s_cbranch_scc1 Lhl")
a("s_barrier")
a(f"s_lshl_b32 s60, {WAVE}, 8"); a("s_lshl_b32 s62, s62, 3"); a("s_add_u32 s60, s60, s62"); a(f"s_add_u32 s60, s60, {FW}")
a("s_waitcnt vmcnt(0)")
flag_store("s60", T0)
stamp(6)
zw_addr()
a("s_barrier")
zw_loads()
a("s_waitcnt vmcnt(0)")

a.label("Lcol")
stamp(8)
EE = 32
for n in range(4):
    P = ZIN + 4*(n >> 1) + 2*(n & 1); M = P + 1
    a(f"v_dot2_f32_bf16 v{EE+n}, v{P}, {ONES}, 0")
    a(f"v_dot2_f32_bf16 v{EE+4+n}, v{P}, {ONES}, 0 neg_lo:[0,1,0]")
    a(f"v_dot2_f32_bf16 v{EE+8+n}, v{P}, v{UVa+n}, 0 neg_hi:[0,1,0]")
    a(f"v_dot2_f32_bf16 v{EE+12+n}, v{P}, v{UVb+n}, 0")
    a(f"v_dot2_f32_bf16 v{EE+n}, v{M}, {ONES}, v{EE+n}")
    a(f"v_dot2_f32_bf16 v{EE+4+n}, v{M}, {ONES}, v{EE+4+n} neg_hi:[0,1,0]")
    a(f"v_dot2_f32_bf16 v{EE+8+n}, v{M}, v{UVb+n}, v{EE+8+n} neg_hi:[0,1,0]")
    a(f"v_dot2_f32_bf16 v{EE+12+n}, v{M}, v{UVa+n}, v{EE+12+n} neg_lo:[0,1,0] neg_hi:[0,1,0]")
a("v_lshrrev_b32 v2, 1, v0"); a("v_lshlrev_b32 v2, 4, v2"); a("v_and_b32 v3, 1, v0")
a(f"s_lshl_b32 s58, {WAVE}, 10"); a(f"s_add_u32 s58, s58, {ST}")
a("v_lshl_add_u32 v190, v3, 3, v2"); a("v_add_u32 v190, s58, v190")
a("v_lshl_add_u32 v2, v3, 2, v2"); a("v_add_u32 v2, s58, v2"); a("v_add_u32 v3, 4096, v2")
for cpt in range(4):
    for j in range(2): a(f"v_cvt_pk_bf16_f32 v{48+2*cpt+j}, v{EE+4*cpt+2*j}, v{EE+4*cpt+2*j+1}")
for eo in range(2):
    for j in range(2): a(f"ds_write2_b32 v{2+eo}, v{48+4*eo+j}, v{48+4*eo+2+j} offset0:{128*j} offset1:{128*j+2}")
a(f"s_lshr_b32 s58, {WAVE}, 1"); a("s_lshl_b32 s58, s58, 12"); a(f"s_mul_i32 s57, {H16}, 192"); a("s_add_u32 s58, s58, s57"); a(f"s_add_u32 s58, s58, {ST}")
a("v_add_u32 v4, s58, v1")
for k in range(1, 4): a(f"v_xor_b32 v{4+k}, {1024*k}, v4")
a("s_waitcnt lgkmcnt(0)")
a("s_barrier")
AF = 32
for k in range(4): a(f"ds_read_b128 {vr(AF+4*k,4)}, v{4+k}")
a(f"s_lshl_b32 s60, {R_}, 1"); a(f"s_add_u32 s60, s60, {HF}"); a("s_lshl_b32 s60, s60, 1"); a(f"s_lshr_b32 s58, {WAVE}, 1"); a("s_add_u32 s60, s60, s58")
a("s_lshl_b32 s60, s60, 7"); a(f"s_lshl_b32 s58, {JL}, 4"); a("s_add_u32 s60, s60, s58"); a(f"s_lshr_b32 s58, {H16}, 1"); a("s_add_u32 s60, s60, s58")
a(f"s_add_u32 s60, s60, {F2}")
a("s_waitcnt vmcnt(0)")
flag_store("s60", T0)
stamp(9)
a("s_waitcnt lgkmcnt(0)")
D1 = 64; TT = 80; TF = 48; D2 = 96
for tau in range(2):
    for be in range(2):
        for ri in range(2):
            d = vr(D1 + 8*be + 4*ri, 4)
            a(f"v_mfma_f32_16x16x32_bf16 {d}, {vr(AF+8*tau+4*be,4)}, {(Fre if ri == 0 else Fim)(0,tau)}, {'0' if tau == 0 else d}")
WU = 112
for k in range(8): a(f"v_lshlrev_b32 v{WU+k}, 16, v{WIN+k}")
for be in range(2): twiddle(D1+8*be, D1+8*be+4, TW1c+4*be, TW1s+4*be, 4, TT+8*be, False)
for be in range(2): packfrag(TF+4*be, TT+8*be, TT+8*be+4)
for tau in range(2):
    for o in range(2):
        for ri in range(2):
            d = vr(D2 + 8*o + 4*ri, 4)
            a(f"v_mfma_f32_16x16x32_bf16 {d}, {(Fre if ri == 0 else Fim)(o,tau)}, {vr(TF+4*tau,4)}, {'0' if tau == 0 else d}")
for k in range(8): a(f"v_and_b32 v{WU+8+k}, 0xffff0000, v{WIN+k}")
for o in range(2): twiddle(D2+8*o, D2+8*o+4, WU+4*o, WU+8+4*o, 4, TT+8*o, True)
for o in range(2): packfrag(TF+4*o, TT+8*o+4, TT+8*o)
for tau in range(2):
    for o in range(2):
        for ri in range(2):
            d = vr(D1 + 8*o + 4*ri, 4)
            a(f"v_mfma_f32_16x16x32_bf16 {d}, {vr(TF+4*tau,4)}, {(Fre if ri == 0 else Fim)(o,tau)}, {'0' if tau == 0 else d}")
a("v_min_u32 v2, 6, v0"); a("v_lshlrev_b32 v2, 3, v2")
a(f"s_lshl_b32 s60, {R_}, 1"); a(f"s_add_u32 s60, s60, {HF}"); a("s_lshl_b32 s60, s60, 1"); a(f"s_lshr_b32 s58, {WAVE}, 1"); a("s_add_u32 s60, s60, s58")
a("s_lshl_b32 s60, s60, 7"); a(f"s_lshr_b32 s58, {IDX}, 4"); a("s_mul_i32 s58, s58, 56"); a("s_add_u32 s60, s60, s58"); a(f"s_add_u32 s60, s60, {F2}")
a(f"s_lshl_b32 s58, {WAVE}, 10"); a(f"s_add_u32 s58, s58, {ST2}")
a("v_add_u32 v3, s58, v1"); a("v_xor_b32 v4, 1024, v3")
twiddle(D1+12, D1+8, TW2c, TW2s, 4, TT+8, True)
packfrag(TF+4, TT+12, TT+8)
a(f"ds_write_b128 v3, {vr(TF+4,4)}")
twiddle(D1+4, D1, TW1c, TW1s, 4, TT, True)
packfrag(TF, TT+4, TT)
for o in range(2):
    for ri in range(2):
        a(f"v_mfma_f32_16x16x32_bf16 {vr(D2+8*o+4*ri,4)}, {(Fre if ri == 0 else Fim)(o,0)}, {vr(TF,4)}, 0")
a("s_waitcnt lgkmcnt(0)")
a("s_barrier")
a(f"ds_read_b128 {vr(TF+8,4)}, v4")
poll_issue(2, "s60", 252)
a(f"s_lshr_b32 s58, {WAVE}, 1"); a("s_lshl_b32 s58, s58, 12"); a(f"s_mul_i32 s57, {H16}, 192"); a("s_add_u32 s58, s58, s57"); a(f"s_add_u32 s58, s58, {ST}")
a("v_add_u32 v3, s58, v1"); a("v_xor_b32 v5, 2048, v3")
a("s_waitcnt lgkmcnt(0)")
for o in range(2):
    for ri in range(2):
        d = vr(D2+8*o+4*ri, 4)
        a(f"v_mfma_f32_16x16x32_bf16 {d}, {(Fre if ri == 0 else Fim)(o,1)}, {vr(TF+8,4)}, {d}")
for o in range(2):
    for r in range(4): a(f"v_cvt_pk_bf16_f32 v{TF+4*o+r}, v{D2+8*o+4+r}, v{D2+8*o+r}")
    a(f"ds_write_b128 v{3 if o == 0 else 5}, {vr(TF+4*o,4)}")
a("s_waitcnt lgkmcnt(0)")
a("s_barrier")
EP = 32
for j in range(2):
    a(f"ds_read_b64 {vr(EP+2*j,2)}, v190 offset:{512*j}"); a(f"ds_read_b64 {vr(EP+4+2*j,2)}, v190 offset:{4096+512*j}")
QQ, CC = "s61", "s62"
a(f"s_lshl_b32 {QQ}, {HF}, 1"); a(f"s_lshr_b32 s58, {IDX}, 4"); a(f"s_add_u32 {QQ}, {QQ}, s58")
a(f"s_and_b32 {CC}, {JL}, 3")
a(f"s_lshl_b32 s63, {R_}, 2"); a(f"s_add_u32 s63, s63, {WAVE}")
a(f"s_mul_i32 s64, s63, {112*1024}"); a(f"s_mul_i32 s58, {QQ}, {28*1024}"); a("s_add_u32 s64, s64, s58"); a(f"s_add_u32 s64, s64, {HB}")
a(f"s_lshl_b32 s57, {KAP}, 13"); a("s_lshl_b32 s66, s66, 5"); a("s_add_u32 s57, s57, s66"); a(f"s_add_u32 s57, s57, {YB}")
a("s_waitcnt lgkmcnt(0)")
RO = 40
for n in range(4):
    a(f"v_dot2_f32_bf16 v{56+n}, v{EP+n}, {ONES}, 0 neg_hi:[0,1,0]")
    a(f"v_dot2_f32_bf16 v{60+n}, v{EP+n}, {ONES}, 0")
for n in range(4):
    O = EP + 4 + n
    a(f"v_dot2_f32_bf16 v{RO+4*n}, v{O}, v{UVa+n}, v{56+n}")
    a(f"v_dot2_f32_bf16 v{RO+4*n+1}, v{O}, v{UVb+n}, v{60+n} neg_lo:[0,1,0]")
    a(f"v_dot2_f32_bf16 v{RO+4*n+2}, v{O}, v{UVb+n}, v{60+n} neg_hi:[0,1,0]")
    a(f"v_dot2_f32_bf16 v{RO+4*n+3}, v{O}, v{UVa+n}, v{56+n} neg_lo:[0,1,0] neg_hi:[0,1,0]")
a(f"s_cmp_lg_u32 {KAP}, 0")
a("s_cbranch_scc1 Lnk0")
a("s_nop 2")
for n in range(4):
    a(f"v_pk_add_f32 {vr(RO+4*n+2,2)}, {vr(RO+4*n+2,2)}, {vr(RO+4*n,2)}")
    a(f"v_pk_mul_f32 {vr(RO+4*n+2,2)}, {vr(RO+4*n+2,2)}, 0.5 op_sel_hi:[1,0]")
    a(f"v_mov_b64 {vr(RO+4*n,2)}, 0")
a.label("Lnk0")
a("s_nop 0")
for n in range(4):
    a(f"v_cvt_pk_bf16_f32 v{56+2*n}, v{RO+4*n}, v{RO+4*n+1}"); a(f"v_cvt_pk_bf16_f32 v{57+2*n}, v{RO+4*n+2}, v{RO+4*n+3}")
a(f"buffer_store_dwordx4 {vr(56,4)}, v191, {sWS}, s57 offen sc1")
a(f"buffer_store_dwordx4 {vr(60,4)}, v191, {sWS}, s57 offen offset:2048 sc1")
stamp(10)
poll_check(2, "s60", 252, 2)

HR = 128
a("v_lshrrev_b32 v6, 5, v0"); a("v_lshlrev_b32 v6, 10, v6")
a("v_bfe_u32 v7, v0, 2, 2"); a("v_lshl_add_u32 v6, v7, 6, v6")
a("v_bfe_u32 v7, v0, 4, 1"); a("v_lshl_add_u32 v6, v7, 5, v6")
a("v_and_b32 v7, 3, v0"); a("v_lshl_add_u32 v6, v7, 3, v6")
for n in range(4):
    a(f"s_add_u32 s58, {CC}, {n}"); a("s_and_b32 s57, s58, 3"); a(f"s_mul_i32 s57, s57, {7*1024}")
    a(f"s_add_u32 s{20+2*n}, s64, s57"); a(f"s_add_u32 s{21+2*n}, s{20+2*n}, 4096")
    a(f"s_sub_u32 s58, s58, {IDX}"); a("s_and_b32 s58, s58, 3"); a("s_lshl_b32 s58, s58, 15")
    a(f"v_add_u32 v{2+n}, s58, v6")
def hload(m):
    n, j = divmod(m, 7)
    a(f"buffer_load_dwordx4 {vr(HR+4*m,4)}, v1, {sWS}, s{20+2*n+(j>>2)} offen offset:{1024*(j&3)} sc1")
PF = 9
for m in range(PF): hload(m)
def g2_reads(m):
    n, ks = divmod(m, 7); b = 32 + 16*(m & 1)
    for db in range(4):
        for j in range(2): a(f"ds_read_b64_tr_b16 {vr(b+4*db+2*j,2)}, v{2+n} offset:{ks*4096 + j*2048 + db*256}")
g2_reads(0)
a(f"s_lshl_b32 s60, {WAVE}, 11"); a(f"s_lshl_b32 s58, {KAP}, 3"); a("s_add_u32 s60, s60, s58"); a(f"s_add_u32 s60, s60, {F3}")
a(f"s_lshr_b32 s65, {RHO}, 7"); a("s_lshl_b32 s65, s65, 1"); a(f"s_bfe_u32 s58, {RHO}, 0x10004"); a("s_add_u32 s65, s65, s58")
a("s_lshl_b32 s65, s65, 11"); a(f"s_lshl_b32 s58, {WAVE}, 9"); a("s_add_u32 s65, s65, s58"); a(f"s_add_u32 s65, s65, {F3}")
a("v_lshlrev_b32 v7, 3, v0")
a(f"s_waitcnt vmcnt({PF})")
flag_store("s60", 240)
extra = {}
POLL_AT = 20
for m in range(28):
    young = min(m + PF - 1, 27) - m + (1 if m < PF else 0) + (1 if m > POLL_AT else 0)
    a(f"s_waitcnt vmcnt({young}) lgkmcnt(0)")
    b = 32 + 16*(m & 1)
    def mm(db):
        d = vr(ACC+16*db, 16)
        a(f"v_mfma_f32_32x32x16_bf16 {d}, {vr(b+4*db,4)}, {vr(HR+4*m,4)}, {'0' if m == 0 else d}")
    mm(0)
    if m < 27: g2_reads(m + 1)
    mm(1)
    if m + PF < 28: hload(m + PF)
    if m == POLL_AT: poll_issue(7, "s65", 252)
    mm(2); mm(3)
stamp(11)
poll_check(7, "s65", 252, 0)
a("v_lshrrev_b32 v2, 1, v0"); a("v_lshlrev_b32 v2, 13, v2"); a("v_and_b32 v3, 1, v0"); a("v_lshl_add_u32 v2, v3, 4, v2")
a(f"s_lshl_b32 s57, {WAVE}, 19"); a(f"s_lshl_b32 s58, {RHO}, 5"); a("s_add_u32 s57, s57, s58"); a(f"s_add_u32 s57, s57, {YB}")
a(f"s_add_u32 s58, s57, {32*8192}")
YG = 128
a(f"buffer_load_dwordx4 {vr(YG,4)}, v2, {sWS}, s57 offen sc1")
a(f"buffer_load_dwordx4 {vr(YG+4,4)}, v2, {sWS}, s58 offen sc1")
a("v_and_b32 v2, 15, v0"); a("v_lshrrev_b32 v3, 4, v0"); a("v_lshlrev_b32 v4, 5, v2"); a("v_lshl_add_u32 v4, v3, 3, v4")
a(f"s_lshl_b32 s58, {H16}, 5"); a("v_add_u32 v144, s58, v4"); a("v_xor_b32 v145, 512, v144")
a("s_mov_b32 s8, s34"); a("s_mov_b32 s9, s35"); a("s_mov_b32 s10, 1024")
B2 = 136
for o in range(2): a(f"buffer_load_dwordx2 {vr(B2+2*o,2)}, v{144+o}, {sW}, 0 offen")
a(f"s_lshl_b32 s57, {QQ}, 6"); a("s_add_u32 s57, s57, s63"); a("s_lshl_b32 s57, s57, 15"); a(f"s_lshl_b32 s58, {CC}, 13"); a("s_add_u32 s57, s57, s58")
a(f"s_add_u32 s57, s57, {PB}"); a("s_add_u32 s58, s57, 4096")
for k in range(8):
    o = 32 + 4*k
    for p in range(4): a(f"v_cvt_pk_bf16_f32 v{o+p}, v{ACC+8*k+2*p}, v{ACC+8*k+2*p+1}")
    a(f"buffer_store_dwordx4 {vr(o,4)}, v1, {sWS}, s{57+(k>>2)} offen offset:{1024*(k&3)} sc1")
a(f"s_lshl_b32 s58, {WAVE}, 11"); a(f"s_add_u32 s58, s58, {ST2}"); a("v_add_u32 v146, s58, v1")
gen_fm_fn()
ZA = 148; B16 = 156; TIc = 164; TIs = 172
gen_zaddr(ZA, ST2)
a("s_waitcnt vmcnt(10)")
a(f"ds_write_b128 v146, {vr(YG,4)}"); a(f"ds_write_b128 v146, {vr(YG+4,4)} offset:1024")
a(f"v_cvt_f32_u32 v{T0+8}, v3")
a(f"v_add_f32 v{T0+9}, 1.0, v{T0+8}"); a(f"v_add_f32 v{T0+10}, 2.0, v{T0+8}"); a(f"v_add_f32 v{T0+11}, 1.0, v{T0+10}")
a("v_cvt_f32_u32 v5, v2"); a(f"v_mul_f32 v6, {f2u(1/16)}, v5")
gen_tw(T0, T0+4, 6, T0+8, 4)
for j in range(4):
    a(f"v_cvt_pk_bf16_f32 v{B16+j}, v{T0+j}, -v{T0+4+j}"); a(f"v_cvt_pk_bf16_f32 v{B16+4+j}, v{T0+4+j}, v{T0+j}")
a("s_waitcnt lgkmcnt(0)")
a("s_barrier")
YA = 180
for k in range(8): a(f"ds_read_b32 v{YA+k}, v{ZA+k}")
a(f"s_lshl_b32 s58, {WAVE}, 11"); a(f"s_add_u32 s58, s58, {XR}")
for o in range(2): a(f"v_add_u32 v{146+o}, s58, v{144+o}")
XV = 188
for o in range(2):
    for u in range(2): a(f"ds_read_b64 {vr(XV+4*o+2*u,2)}, v{146+o} offset:{1024*u}")
a(f"v_mul_f32 v6, {f2u(1/512)}, v5")
gen_tw(TIc, TIs, 6, FM, 8)
a(f"s_mov_b32 s58, {f2u(2.0**-21)}")
for k in range(16): a(f"v_mul_f32 v{TIc+k}, s58, v{TIc+k}")
a(f"s_cmp_lg_u32 s2, 0")
a("s_cbranch_scc1 Lnotag")
a(f"s_cmp_lg_u32 {WAVE}, 0")
a("s_cbranch_scc1 Lnotag")
a(f"s_mov_b32 s60, {TAG}")
flag_store("s60", 240)
a.label("Lnotag")
a("s_waitcnt lgkmcnt(0)")
D1 = 64; TT = 80; TF = 96; D2 = 104
for tau in range(2):
    for ri in range(2):
        a(f"v_mfma_f32_16x16x32_bf16 {vr(D1+8*tau+4*ri,4)}, {vr(YA+4*tau,4)}, {vr(B16+4*ri,4)}, 0")
a(f"s_lshl_b32 s60, s63, 7"); a(f"s_lshl_b32 s58, {CC}, 5"); a("s_add_u32 s60, s60, s58"); a(f"s_lshl_b32 s58, {QQ}, 3"); a("s_add_u32 s60, s60, s58"); a(f"s_add_u32 s60, s60, {F4}")
a("s_waitcnt vmcnt(0)")
flag_store("s60", 240)
stamp(12)
for o in range(2):
    for k in range(2):
        a(f"v_lshlrev_b32 v{120+4*o+2*k}, 16, v{B2+2*o+k}"); a(f"v_and_b32 v{121+4*o+2*k}, 0xffff0000, v{B2+2*o+k}")
for tau in range(2): twiddle(D1+8*tau, D1+8*tau+4, TIc+4*tau, TIs+4*tau, 4, TT+8*tau, True)
for tau in range(2): packfrag(TF+4*tau, TT+8*tau+4, TT+8*tau)
for o in range(2):
    for ri in range(2):
        u = 1 - ri; d = D2 + 8*o + 4*ri
        for k in range(2):
            a(f"v_lshlrev_b32 v{d+2*k}, 16, v{XV+4*o+2*u+k}"); a(f"v_and_b32 v{d+2*k+1}, 0xffff0000, v{XV+4*o+2*u+k}")
        for k in range(2): a(f"v_pk_add_f32 {vr(d+2*k,2)}, {vr(d+2*k,2)}, {vr(120+4*o+2*k,2)}")
for tau in range(2):
    for o in range(2):
        for ri in range(2):
            d = vr(D2+8*o+4*ri, 4)
            a(f"v_mfma_f32_16x16x32_bf16 {d}, {vr(TF+4*tau,4)}, {(Fre if ri == 0 else Fim)(o,tau)}, {d}")
APITCH = 2064
a(f"s_mul_i32 s58, {WAVE}, {2*APITCH}")
for o in range(2): a(f"v_lshlrev_b32 v{146+o}, 1, v{144+o}")
for o in range(2): a(f"v_add_u32 v{146+o}, s58, v{146+o}")
a("v_and_b32 v2, 7, v0"); a("v_lshrrev_b32 v3, 4, v0"); a("v_bfe_u32 v4, v0, 3, 1")
a("v_lshlrev_b32 v5, 10, v3"); a("v_lshl_add_u32 v5, v4, 9, v5"); a("v_lshl_add_u32 v5, v2, 4, v5")
a("v_lshlrev_b32 v6, 4, v3"); a("v_lshl_add_u32 v6, v4, 2, v6")
a(f"v_mul_u32_u24 v7, {APITCH}, v2"); a("v_lshl_add_u32 v7, v6, 2, v7"); a(f"s_lshl_b32 s58, {WAVE}, 9"); a("v_add_u32 v7, s58, v7")
OPITCH = 272
a(f"v_mul_u32_u24 v148, {OPITCH}, v2"); a("v_lshl_add_u32 v148, v6, 1, v148")
a(f"s_mul_i32 s58, {WAVE}, {8*OPITCH}"); a(f"s_add_u32 s58, s58, 32768"); a("v_add_u32 v148, s58, v148")
a(f"v_mul_u32_u24 v149, {OPITCH}, v3"); a("v_and_b32 v6, 15, v0"); a("v_lshl_add_u32 v149, v6, 4, v149"); a("v_add_u32 v149, s58, v149")
a("v_lshrrev_b32 v150, 5, v0"); a("v_lshlrev_b32 v150, 15, v150"); a("v_bfe_u32 v4, v0, 4, 1"); a("v_lshl_add_u32 v150, v4, 20, v150"); a("v_lshl_add_u32 v150, v6, 4, v150")
for o in range(2):
    for ri in range(2): a(f"ds_write_b128 v{146+o}, {vr(D2+8*o+4*ri,4)} offset:{(1-ri)*APITCH}")
a("v_and_b32 v2, 3, v0"); a("v_lshlrev_b32 v2, 3, v2")
a(f"s_lshr_b32 s63, {RHO}, 2")
a("s_lshl_b32 s60, s63, 7"); a(f"s_lshl_b32 s58, {WAVE}, 5"); a("s_add_u32 s60, s60, s58"); a(f"s_add_u32 s60, s60, {F4}")
poll_issue(2, "s60", 252)
a("s_lshl_b32 s57, s63, 15"); a(f"s_lshl_b32 s58, {WAVE}, 13"); a("s_add_u32 s57, s57, s58")
a(f"s_and_b32 s58, {RHO}, 3"); a("s_lshl_b32 s58, s58, 7"); a("s_add_u32 s57, s57, s58"); a(f"s_add_u32 s20, s57, {PB}")
for k in range(1, 8): a(f"s_add_u32 s{20+k}, s20, {(k>>1)*64*32768 + (k&1)*4096}")
a(f"s_lshr_b32 s57, {RHO}, 5"); a("s_lshl_b32 s57, s57, 7"); a(f"s_and_b32 s58, {RHO}, 31"); a("s_add_u32 s57, s57, s58"); a("s_lshl_b32 s57, s57, 10")
a(f"s_lshl_b32 s58, {WAVE}, 8"); a("s_add_u32 s28, s57, s58"); a(f"s_add_u32 s29, s28, {64*1024}")
a("s_mov_b32 s30, 0x00003f80"); a("s_mov_b32 s31, 0x3f800000")
a("s_waitcnt lgkmcnt(0)")
a("s_barrier")
FA = 64
for u in range(2):
    for k in range(2): a(f"ds_read_b128 {vr(FA+8*u+4*k,4)}, v7 offset:{u*256 + k*32}")
stamp(13)
poll_check(2, "s60", 252, 0)
PL = 80
for k in range(8): a(f"buffer_load_dwordx4 {vr(PL+4*k,4)}, v5, {sWS}, s{20+k} offen sc1")
stamp(14)
a("s_waitcnt lgkmcnt(0)")
for k in range(8):
    a(f"s_waitcnt vmcnt({7-k})")
    u = k & 1
    for d in range(4):
        a(f"v_dot2c_f32_bf16 v{FA+8*u+2*d}, s30, v{PL+4*k+d}"); a(f"v_dot2c_f32_bf16 v{FA+8*u+2*d+1}, s31, v{PL+4*k+d}")
for u in range(2):
    for d in range(4): a(f"v_cvt_pk_bf16_f32 v{112+4*u+d}, v{FA+8*u+2*d}, v{FA+8*u+2*d+1}")
    a(f"ds_write2_b64 v148, {vr(112+4*u,2)}, {vr(114+4*u,2)} offset0:{16*u} offset1:{16*u+2}")
a("s_waitcnt lgkmcnt(0)")
a(f"ds_read_b128 {vr(120,4)}, v149"); a(f"ds_read_b128 {vr(124,4)}, v149 offset:{4*OPITCH}")
a("s_waitcnt lgkmcnt(1)")
a(f"buffer_store_dwordx4 {vr(120,4)}, v150, {sOUT}, s28 offen")
a("s_waitcnt lgkmcnt(0)")
a(f"buffer_store_dwordx4 {vr(124,4)}, v150, {sOUT}, s29 offen")
if DEBUG:
    a("s_waitcnt vmcnt(0)")
    stamp(15)
dump_stamps(0)
a.label("Lend")
a("s_endpgm")
a.label("Lcode_end")

a.fix()
bad = a.check_edges()
for name, dec in (("gemmC", {"Lcompute":[1], "Lg1":[1,1,1,0], "Lg1_nf":[0,1,1,1], "Lg1_last":[0,0,0,1]}),
                  ("helpC", {"Lcompute":[1], "Lhelper":[1], "Lhl":[1,0], "Lnopf":[1], "Lz1":[1], "Lnk0":[1], "Lnotag":[1]}),
                  ("ldx", {"Lld_first":[1,0,0], "Lld_loop":[1,0], "Lw2_next":[0,1,1], "Lw2_loop":[1,1,0], "Lig3":[1,1,1,0], "Lw2_w16":[1]}),
                  ("ldw", {"Lld_w":[1], "Lld_first":[1,0,0], "Lld_loop":[1,0], "Lw2_next":[0,1,1], "Lw2_loop":[1,1,0], "Lw2_again":[1,0], "Lig3":[1,1,0]}),
                  ("ldh", {"Lhelper_loader":[1], "Lw2_next":[0,1], "Lw2_loop":[1,0], "Lig3":[1,1,0], "Lw2_nos7":[1]})):
    seq = a.path(dec)
    nb = sum(1 for i in seq if i.op == "s_barrier")
    print(name, "instrs", len(seq), "barriers", nb, file=sys.stderr)
    bad += a.check_waits(seq)
if bad: print("CHECK FAILURES:", bad, file=sys.stderr)
hdr = open("parallel_sum__spectral_gfnet__mixer_channel_mlp__prompt.s.ref").read().split("; Override")[0]
out = hdr + f"; @launch grid=(256,1,1) block=(384,1,1) lds={LDS_BYTES}\n"
out += '.amdgcn_target "amdgcn-amd-amdhsa--gfx950"\n.text\n'
out += f".globl {NAME}\n.p2align 8\n.type {NAME},@function\n{NAME}:\n" + a.text() + "\n"
out += f""".section .rodata,"a"
.p2align 6
.amdhsa_kernel {NAME}
  .amdhsa_next_free_vgpr 256
  .amdhsa_next_free_sgpr 102
  .amdhsa_accum_offset 256
  .amdhsa_group_segment_fixed_size 0
  .amdhsa_kernarg_size 88
  .amdhsa_user_sgpr_count 2
  .amdhsa_user_sgpr_kernarg_segment_ptr 1
  .amdhsa_system_sgpr_workgroup_id_x 1
.end_amdhsa_kernel
"""
fn = [x for x in sys.argv[1:] if not x.startswith("--")][0]
open(fn, "w").write(out)
```

```python
import sys, math, struct
sys.path.insert(0, "work")
from asmlib import *
NAME = "parallel_sum__spectral_gfnet__mixer_channel_mlp__prompt_kernel"
DEBUG = "--stamps" in sys.argv
CLK = "s_memtime" if "--cyc" in sys.argv else "s_memrealtime"
def opt(name, default):
    for x in sys.argv:
        if x.startswith("--" + name + "="): return int(x.split("=")[1], 0)
    return default
def f2u(x): return "0x%08x" % struct.unpack("<I", struct.pack("<f", x))[0]

TAG = 0x0
F1, FW, F2, F3, F4 = 0x1000, 0x3000, 0x4000, 0x6000, 0x8000
SB = 0x10000
STAMPS = 0x20000
ZB, WT, YB, HB, PB = 0x100000, 0x300000, 0x500000, 0x800000, 0x1000000
WS_BYTES = 0x1800000
XR = 131072
ST = XR + 8192
ST2 = ST + 8192
ST3 = ST2 + 8192
CT = ST2 + 4096
cFULL, cPOK, cFREE, cEXT, cRWF, cROWS = 0, 8, 16, 32, 48, 56
LDS_BYTES = 163840
SPIN_MAX = opt('spin', 400000)

a = Asm()
sX, sW, sWS, sOUT = "s[4:7]", "s[8:11]", "s[12:15]", "s[16:19]"
sTAG = "s[42:43]"
XCD, IDX, WAVE, R_, JL, HF, RHO, KAP = "s44", "s45", "s46", "s47", "s48", "s49", "s50", "s51"
ONES = "s56"
VCT = 254
def stamp(i):
    if DEBUG: a(f"{CLK} s[{70+2*i}:{71+2*i}]")
def dump_stamps(role, wave):
    if not DEBUG: return
    lbl = newlbl("ds")
    a(f"s_cmp_lg_u32 {WAVE}, {wave}")
    a(f"s_cbranch_scc1 {lbl}")
    a("s_waitcnt vmcnt(0) lgkmcnt(0)")
    for i in range(32): a(f"v_mov_b32 v{32+i}, s{70+i}")
    a("v_mov_b32 v2, 0")
    a(f"s_lshl_b32 s57, s2, 7")
    a(f"s_add_u32 s57, s57, {STAMPS + role*0x8000}")
    a("s_mov_b64 exec, 1")
    for i in range(8): a(f"buffer_store_dwordx4 v[{32+4*i}:{35+4*i}], v2, {sWS}, s57 offen offset:{16*i}")
    a("s_mov_b64 exec, -1")
    a.label(lbl)
def vr(b, n): return f"v[{b}:{b+n-1}]"
uid = [0]
def newlbl(p): uid[0] += 1; return f"L{p}{uid[0]}"

def flag_store(soff_reg, vtmp):
    a(f"v_mov_b32 v{vtmp}, s42"); a(f"v_mov_b32 v{vtmp+1}, s43"); a(f"v_mov_b32 v{vtmp+2}, 0")
    a("s_mov_b64 exec, 1")
    a(f"buffer_store_dwordx2 {vr(vtmp,2)}, v{vtmp+2}, {sWS}, {soff_reg} offen sc1")
    a("s_mov_b64 exec, -1")
def poll_issue(vaddr, soff, vd, n=2):
    a(f"buffer_load_dwordx{n} {vr(vd,n)}, v{vaddr}, {sWS}, {soff} offen sc1")
def poll_check(vaddr, soff, vd, vmwait, n=2):
    again = newlbl("pa"); done = newlbl("pd")
    a(f"s_waitcnt vmcnt({vmwait})")
    a(f"v_cmp_ne_u64 vcc, {sTAG}, {vr(vd+n-2,2)}")
    a("s_mov_b32 s58, 0")
    a("s_cmp_eq_u64 vcc, 0")
    a(f"s_cbranch_scc1 {done}")
    a.label(again)
    poll_issue(vaddr, soff, vd, n)
    a("s_add_u32 s58, s58, 1")
    a("s_waitcnt vmcnt(0)")
    a(f"s_cmp_ge_u32 s58, {SPIN_MAX}")
    a(f"s_cbranch_scc1 {done}")
    a(f"v_cmp_ne_u64 vcc, {sTAG}, {vr(vd+n-2,2)}")
    a("s_nop 1")
    a("s_cmp_lg_u64 vcc, 0")
    a(f"s_cbranch_scc1 {again}")
    a.label(done)
def lds_spin(vaddr, off, nw, thr, vt, sleep=0):
    lp = newlbl("ls")
    a.label(lp)
    if sleep: a(f"s_sleep {sleep}")
    a({1: f"ds_read_b32 v{vt}, v{vaddr} offset:{off}", 2: f"ds_read_b64 {vr(vt,2)}, v{vaddr} offset:{off}", 4: f"ds_read_b128 {vr(vt,4)}, v{vaddr} offset:{off}"}[nw])
    a("s_waitcnt lgkmcnt(0)")
    if nw == 2: a(f"v_min_u32 v{vt}, v{vt}, v{vt+1}")
    if nw == 4: a(f"v_min3_u32 v{vt}, v{vt}, v{vt+1}, v{vt+2}"); a(f"v_min_u32 v{vt}, v{vt}, v{vt+3}")
    a(f"v_readfirstlane_b32 s58, v{vt}")
    a("s_add_u32 s55, s55, 1")
    a("s_lshr_b32 s54, s55, 24")
    a("s_lshl_b32 s54, s54, 8")
    a("s_or_b32 s58, s58, s54")
    a(f"s_cmp_lt_u32 s58, {thr}")
    a(f"s_cbranch_scc1 {lp}")

a("s_load_dwordx16 s[20:35], s[0:1], 0")
a("s_load_dwordx2 s[40:41], s[0:1], 80")
a("s_load_dwordx2 s[36:37], s[0:1], 64")
if DEBUG:
    a(f"{CLK} s[70:71]")
    for i in range(72, 102, 2): a(f"s_mov_b64 s[{i}:{i+1}], 0")
a("s_cmp_ge_u32 s2, 256")
a("s_cbranch_scc1 Lend")
a("s_getpc_b64 s[52:53]")
a.label("Lpc")
a("v_lshrrev_b32 v2, 6, v0")
a("v_and_b32 v0, 63, v0")
a(f"s_and_b32 {XCD}, s2, 7")
a(f"v_readfirstlane_b32 {WAVE}, v2")
a(f"s_lshr_b32 {IDX}, s2, 3")
a(f"s_and_b32 {R_}, {IDX}, 3")
a("s_mov_b32 s54, Lcode_end-Lpc")
a("s_mov_b32 s55, 0x20000")
a(f"s_cmp_lg_u32 {WAVE}, 3")
a("s_cbranch_scc1 Lnopf")
a("v_lshlrev_b32 v2, 7, v0")
a(f"s_lshl_b32 s57, {R_}, 13")
a("buffer_load_dword v255, v2, s[52:55], s57 offen")
a.label("Lnopf")
a("v_lshlrev_b32 v1, 4, v0")
a(f"s_lshr_b32 {JL}, {IDX}, 2")
a(f"s_and_b32 {HF}, {XCD}, 1")
a(f"s_and_b32 s57, {XCD}, 6")
a(f"s_lshl_b32 s57, s57, 1")
a(f"s_add_u32 {R_}, {R_}, s57")
a(f"s_lshl_b32 {RHO}, {R_}, 4"); a(f"s_add_u32 {RHO}, {RHO}, {JL}"); a(f"s_lshl_b32 s57, {HF}, 3"); a(f"s_add_u32 {RHO}, {RHO}, s57")
a(f"s_mov_b32 s6, 2097152"); a("s_mov_b32 s7, 0x20000")
a(f"s_cmp_lt_u32 {WAVE}, 6")
a("s_cbranch_scc1 Lnorow")
a(f"s_lshr_b32 s57, {RHO}, 5"); a("s_lshl_b32 s57, s57, 7"); a(f"s_and_b32 s58, {RHO}, 31"); a("s_add_u32 s57, s57, s58")
a(f"s_and_b32 s61, {WAVE}, 1"); a("s_lshl_b32 s58, s61, 6"); a("s_add_u32 s57, s57, s58"); a("s_lshl_b32 s57, s57, 10")
a("s_lshl_b32 s61, s61, 12"); a(f"s_add_u32 s61, s61, {XR}")
a("s_mov_b32 m0, s61")
a("s_add_u32 s58, s57, 0xffc00"); a(f"s_add_u32 s59, s57, {32768-2048}"); a(f"s_add_u32 s60, s57, {0x100000+32768-3072}")
a("s_waitcnt lgkmcnt(0)")
a("s_mov_b32 s4, s20"); a("s_mov_b32 s5, s21")
for k in range(4): a(f"buffer_load_dwordx4 v1, {sX}, s{57+k} offen offset:{1024*k} lds")
a.label("Lnorow")
a(f"s_lshl_b32 {KAP}, {XCD}, 5")
a(f"s_add_u32 {KAP}, {KAP}, {IDX}")
a(f"s_mov_b32 s14, {WS_BYTES}"); a("s_mov_b32 s15, 0x20000")
a("s_mov_b32 s11, 0x20000")
a(f"v_mov_b32 v{VCT}, {CT}")
a(f"s_and_b32 s57, {WAVE}, 6")
a("s_cmp_lg_u32 s57, 4")
a("s_cbranch_scc1 Lcompute")

a(f"s_cmp_eq_u32 {JL}, 7")
a("s_cbranch_scc1 Lhelper_loader")
a(f"s_and_b32 s63, {IDX}, 3"); a("s_lshl_b32 s63, s63, 1"); a(f"s_add_u32 s63, s63, {JL}")
a(f"s_bfe_u32 s57, {XCD}, 0x10001"); a("s_add_u32 s63, s63, s57")
a(f"s_lshl_b32 s57, {HF}, 2"); a("s_add_u32 s63, s63, s57"); a("s_and_b32 s63, s63, 7")
a("s_mov_b32 s64, 7"); a("s_mov_b32 s65, 4"); a("s_mov_b32 s66, 0")
a(f"s_cmp_eq_u32 {WAVE}, 5")
a("s_cbranch_scc1 Lld_w")
a("v_lshrrev_b32 v6, 4, v0")
a("v_bfe_u32 v7, v0, 3, 1")
a("v_lshlrev_b32 v7, 20, v7")
a("v_lshl_add_u32 v7, v6, 15, v7")
a("v_and_b32 v8, 7, v0")
a("v_xor_b32 v8, v8, v6")
a("v_lshl_add_u32 v2, v8, 4, v7")
a("v_xor_b32 v3, 64, v2")
a("v_mov_b32 v4, v2"); a("v_mov_b32 v5, v3")
a(f"s_lshr_b32 s59, {R_}, 1"); a("s_lshl_b32 s59, s59, 17")
a(f"s_and_b32 s57, {R_}, 1"); a("s_lshl_b32 s57, s57, 14"); a("s_add_u32 s59, s59, s57")
a("s_mov_b32 s60, 128"); a("s_mov_b32 s61, 4096"); a("s_mov_b32 s62, 0")
a("s_mov_b32 s10, 2097152"); a("s_mov_b32 s38, 8")
a("s_waitcnt lgkmcnt(0)")
a("s_mov_b32 s8, s20"); a("s_mov_b32 s9, s21")
a("s_branch Lld_go")
a.label("Lld_w")
a("v_bfe_u32 v6, v0, 2, 2")
a("v_mul_u32_u24 v6, 3584, v6")
a("v_lshrrev_b32 v7, 4, v0")
a("v_lshl_add_u32 v6, v7, 6, v6")
a("v_and_b32 v7, 3, v0")
a("v_lshl_add_u32 v2, v7, 4, v6")
for j in range(1, 4): a(f"v_add_u32 v{2+j}, {j*(4*3584-1024)}, v2")
a(f"s_mul_i32 s59, {HF}, 7"); a(f"s_add_u32 s59, s59, {JL}"); a("s_lshl_b32 s59, s59, 8")
a(f"s_mov_b32 s60, {64*3584}"); a(f"s_mov_b32 s61, {16*3584}"); a("s_mov_b32 s62, 16384")
a("s_mov_b32 s10, 1835008"); a("s_mov_b32 s38, 12")
a("s_waitcnt lgkmcnt(0)")
a("s_mov_b32 s8, s28"); a("s_mov_b32 s9, s29")
def issue_stage(lbl):
    a("s_mul_i32 s67, s63, s60"); a("s_add_u32 s67, s67, s59")
    a("s_and_b32 s68, s66, 3"); a("s_lshl_b32 s68, s68, 15"); a("s_add_u32 s68, s68, s62")
    a("s_mov_b32 s69, s65")
    a.label(lbl)
    a("s_mov_b32 m0, s68")
    a("s_add_u32 s68, s68, 4096")
    for j in range(4 if not opt("x_noload", 0) else 0): a(f"buffer_load_dwordx4 v{2+j}, {sW}, s67 offen offset:{1024*j} lds")
    a("s_add_u32 s67, s67, s61")
    a("s_sub_u32 s69, s69, 1")
    a("s_cmp_lg_u32 s69, 0")
    a(f"s_cbranch_scc1 {lbl}")
    a("s_add_u32 s63, s63, 1"); a("s_and_b32 s63, s63, s64")
    a("s_add_u32 s66, s66, 1")
def loader_common():
    a(f"s_load_dwordx2 {sTAG}, s[40:41], {TAG}")
    a("s_mov_b32 s12, s40"); a("s_mov_b32 s13, s41")
    a(f"s_and_b32 s57, {WAVE}, 1"); a("s_lshl_b32 s57, s57, 2"); a(f"v_add_u32 v17, s57, v{VCT}")
    a(f"s_cmp_eq_u32 {WAVE}, 5")
    a("s_cselect_b32 s57, 6, 7"); a(f"s_lshr_b32 s58, {KAP}, s57")
    a(f"s_cmp_eq_u32 {WAVE}, 5")
    a("s_cselect_b32 s57, 8, 11"); a("s_lshl_b32 s58, s58, s57")
    a(f"s_cmp_eq_u32 {WAVE}, 5")
    a(f"s_cselect_b32 s57, {FW-F1}, 0"); a("s_add_u32 s3, s58, s57"); a(f"s_add_u32 s3, s3, {F1}")
    a(f"s_cmp_eq_u32 {WAVE}, 5")
    a("s_cselect_b32 s57, 7, 63")
    a("v_and_b32 v6, s57, v0"); a("v_lshlrev_b32 v6, 5, v6")
    if opt("x_kill", 0) & 1:
        a("v_mov_b32 v18, 99"); a(f"ds_write_b32 v17, v18 offset:{cFULL}"); a(f"ds_write_b32 v17, v18 offset:{cPOK}")
        a("s_waitcnt vmcnt(0) lgkmcnt(0)"); a("s_endpgm")
a.label("Lld_go")
issue_stage("Lig1")
stamp(1)
a("s_barrier")
loader_common()
a("s_branch Lld_issue")
a.label("Lhelper_loader")
for j in range(4): a(f"v_mov_b32 v{2+j}, v1")
a(f"s_lshl_b32 s59, {XCD}, 2"); a(f"s_and_b32 s57, {IDX}, 3"); a("s_add_u32 s59, s59, s57"); a("s_mul_i32 s59, s59, 32896")
a("s_mov_b32 s60, 0"); a("s_mov_b32 s61, 4096"); a("s_mov_b32 s63, 0"); a("s_mov_b32 s64, 0"); a("s_mov_b32 s65, 9"); a("s_mov_b32 s66, 0")
a("s_mov_b32 s10, 1052672")
a(f"s_cmp_eq_u32 {WAVE}, 5")
a("s_cselect_b32 s62, 36864, 0"); a("s_cselect_b32 s38, 12, 9")
a("s_waitcnt lgkmcnt(0)")
a("s_cselect_b32 s8, s24, s22"); a("s_cselect_b32 s9, s25, s23")
a("s_barrier")
loader_common()
lds_spin(VCT, cROWS, 1, 1, 20, sleep=2)
issue_stage("Lig2")
a("v_mov_b32 v18, 1")
a("s_waitcnt vmcnt(0)")
a(f"ds_write_b32 v17, v18 offset:{cFULL}")
a("s_mov_b32 s66, 8")
a.label("Lld_loop")
a("s_cmp_lg_u32 s66, 8")
a("s_cbranch_scc1 Lld_now2")
a("v_bfe_u32 v7, v0, 2, 2"); a("v_lshlrev_b32 v7, 10, v7")
a("v_lshrrev_b32 v16, 4, v0"); a("v_lshl_add_u32 v7, v16, 6, v7")
a("v_and_b32 v16, 3, v0"); a("v_lshl_add_u32 v2, v16, 4, v7")
for j in range(1, 4): a(f"v_add_u32 v{2+j}, {j*(4096-1024)}, v2")
a("s_mov_b32 s8, s32"); a("s_mov_b32 s9, s33"); a("s_mov_b32 s10, 1835008")
a(f"s_lshl_b32 s59, {HF}, 1"); a(f"s_lshr_b32 s58, {IDX}, 4"); a("s_add_u32 s59, s59, s58"); a(f"s_mul_i32 s59, s59, {448*1024}")
a(f"s_and_b32 s58, {JL}, 3"); a("s_lshl_b32 s58, s58, 8"); a("s_add_u32 s59, s59, s58")
a(f"s_cmp_eq_u32 {WAVE}, 5")
a(f"s_cselect_b32 s58, {64*1024}, 0"); a("s_cselect_b32 s62, 16384, 0"); a("s_cselect_b32 s65, 3, 4")
a("s_add_u32 s59, s59, s58")
a(f"s_mov_b32 s60, {112*1024}"); a(f"s_mov_b32 s61, {16*1024}")
a(f"s_and_b32 s63, {IDX}, 3"); a("s_mov_b32 s64, 3")
stamp(2)
a.label("Lld_now2")
a("s_cmp_lt_u32 s66, 4")
a("s_cbranch_scc1 Lld_issue")
a("s_sub_u32 s39, s66, 3")
lds_spin(VCT, cFREE, 4, "s39", 20, sleep=1)
a("s_add_u32 s39, s66, 1")
a("s_cmp_lg_u32 s39, s38")
a("s_cbranch_scc1 Lld_issue")
a(f"buffer_load_dwordx4 v[8:11], v6, {sWS}, s3 offen sc1")
a(f"buffer_load_dwordx4 v[12:15], v6, {sWS}, s3 offen offset:16 sc1")
a("s_add_u32 s42, s42, 0x9e3779b9"); a("s_addc_u32 s43, s43, 0x7f4a7c15")
a.label("Lld_issue")
a("v_mov_b32 v18, s66")
issue_stage("Lig3")
a("s_waitcnt vmcnt(16)")
a("s_cmp_eq_u32 s65, 4")
a("s_cbranch_scc1 Lld_w16")
a("s_waitcnt vmcnt(12)")
a.label("Lld_w16")
a(f"ds_write_b32 v17, v18 offset:{cFULL}")
a("s_cmp_lg_u32 s66, s38")
a("s_cbranch_scc1 Lld_next")
a("s_mov_b32 s58, 0")
a("s_branch Lld_chk")
a.label("Lld_again")
a("s_sleep 8")
a(f"buffer_load_dwordx4 v[8:11], v6, {sWS}, s3 offen sc1")
a(f"buffer_load_dwordx4 v[12:15], v6, {sWS}, s3 offen offset:16 sc1")
a("s_add_u32 s58, s58, 1")
a("v_mov_b32 v18, s66")
a("s_waitcnt vmcnt(0)")
a(f"ds_write_b32 v17, v18 offset:{cFULL}")
a(f"s_cmp_ge_u32 s58, {SPIN_MAX}")
a("s_cbranch_scc1 Lld_ok")
a.label("Lld_chk")
a(f"v_cmp_ne_u64 vcc, {sTAG}, v[8:9]")
a(f"v_cmp_ne_u64 s[20:21], {sTAG}, v[10:11]")
a(f"v_cmp_ne_u64 s[22:23], {sTAG}, v[12:13]")
a(f"v_cmp_ne_u64 s[24:25], {sTAG}, v[14:15]")
a("s_or_b64 vcc, vcc, s[20:21]"); a("s_or_b64 s[22:23], s[22:23], s[24:25]"); a("s_or_b64 vcc, vcc, s[22:23]")
a("s_cbranch_scc1 Lld_again")
a.label("Lld_ok")
a(f"ds_write_b32 v17, v18 offset:{cPOK}")
stamp(3)
a.label("Lld_next")
a("s_cmp_lt_u32 s66, 12")
a("s_cbranch_scc1 Lld_loop")
a("s_waitcnt vmcnt(0) lgkmcnt(0)")
stamp(4)
dump_stamps(1, 4)
dump_stamps(3, 5)
a("s_endpgm")

a.label("Lcompute")
FT = 8
def Fre(o, t): return vr(FT + (2*o+t)*6 + 2, 4)
def Fim(o, t): return vr(FT + (2*o+t)*6, 4)
def Fx(ri, o, t): return Fre(o, t) if ri == 0 else Fim(o, t)
ACC = 64
TW1c, TW1s = 152, 160
TW2c, TW2s = 168, 172
UVa, UVb = 176, 180
B1V = 184
ZIN, WIN = 192, 200
FM, FN = 208, 216
H16 = "s59"
T0 = 220
a(f"s_cmp_lg_u32 {WAVE}, 0")
a("s_cbranch_scc1 Lnoinit")
a("v_mov_b32 v2, 0"); a(f"v_lshl_add_u32 v3, v0, 2, v{VCT}")
a("ds_write_b32 v3, v2")
a.label("Lnoinit")
a(f"s_mov_b32 {ONES}, 0x3f803f80")
a(f"s_and_b32 {H16}, {WAVE}, 1"); a(f"s_lshl_b32 {H16}, {H16}, 4")
a(f"s_cmp_ge_u32 {WAVE}, 6"); a(f"s_cselect_b32 {H16}, 0, {H16}")
a("s_mov_b32 s10, 3584")
a("s_mov_b32 s18, 2097152"); a("s_mov_b32 s19, 0x20000")
a("s_setprio 3")
a("v_and_b32 v4, 31, v0"); a("v_lshlrev_b32 v4, 1, v4")
a(f"s_mul_i32 s62, {HF}, 7"); a(f"s_add_u32 s62, s62, {JL}")
a("s_lshl_b32 s63, s62, 8"); a(f"s_lshl_b32 s58, {H16}, 3"); a("s_add_u32 s63, s63, s58")
a(f"s_lshr_b32 s58, {WAVE}, 1"); a("s_lshl_b32 s58, s58, 6"); a("s_add_u32 s63, s63, s58")
a("s_waitcnt lgkmcnt(0)")
a(f"s_load_dwordx2 {sTAG}, s[40:41], {TAG}")
a("s_mov_b32 s8, s30"); a("s_mov_b32 s9, s31")
a(f"buffer_load_ushort v{B1V}, v4, {sW}, s63 offen")
a("s_barrier")
a("s_mov_b32 s12, s40"); a("s_mov_b32 s13, s41")
a("s_mov_b32 s16, s36"); a("s_mov_b32 s17, s37")
def gen_fm_fn(e, FM, FN, c, g4, t0, t1):
    e(f"v_and_b32 v{c}, 15, v0")
    e(f"v_lshrrev_b32 v{g4}, 4, v0"); e(f"v_lshlrev_b32 v{g4}, 2, v{g4}")
    if FN is not None:
        e(f"v_add_u32 v{t0}, {H16}, v{c}"); e(f"v_xor_b32 v{t1}, 16, v{t0}")
        e(f"v_cvt_f32_u32 v{FN}, v{t0}"); e(f"v_cvt_f32_u32 v{FN+1}, v{t1}")
    e(f"v_add_u32 v{t0}, {H16}, v{g4}"); e(f"v_xor_b32 v{t1}, 16, v{t0}")
    e(f"v_cvt_f32_u32 v{FM}, v{t0}"); e(f"v_cvt_f32_u32 v{FM+4}, v{t1}")
    for t in range(2):
        e(f"v_add_f32 v{FM+4*t+1}, 1.0, v{FM+4*t}"); e(f"v_add_f32 v{FM+4*t+2}, 2.0, v{FM+4*t}"); e(f"v_add_f32 v{FM+4*t+3}, 1.0, v{FM+4*t+2}")
def gen_mat(dst, vn, vm, tmp):
    for e in range(4): a(f"v_mul_f32 v{tmp+e}, v{vn}, v{vm+e}")
    for e in range(4): a(f"v_cos_f32 v{tmp+4+e}, v{tmp+e}")
    for e in range(4): a(f"v_sin_f32 v{tmp+e}, v{tmp+e}")
    a(f"v_cvt_pk_bf16_f32 v{dst+2}, v{tmp+4}, v{tmp+5}"); a(f"v_cvt_pk_bf16_f32 v{dst+3}, v{tmp+6}, v{tmp+7}")
    a(f"v_cvt_pk_bf16_f32 v{dst+4}, v{tmp}, v{tmp+1}"); a(f"v_cvt_pk_bf16_f32 v{dst+5}, v{tmp+2}, v{tmp+3}")
    a(f"v_xor_b32 v{dst}, 0x80008000, v{dst+4}"); a(f"v_xor_b32 v{dst+1}, 0x80008000, v{dst+5}")
def gen_tw(e, dc, ds, vn, vm, n):
    for k in range(n): e(f"v_mul_f32 v{ds+k}, v{vn}, v{vm+k}")
    for k in range(n): e(f"v_cos_f32 v{dc+k}, v{ds+k}")
    for k in range(n): e(f"v_sin_f32 v{ds+k}, v{ds+k}")
def gen_zaddr(e, dst, sbase, c, g4, t):
    e(f"v_add_u32 v{t}, {H16}, v{c}")
    e(f"v_lshl_add_u32 v{t}, v{g4}, 5, v{t}")
    e(f"v_xor_b32 v{t+1}, 16, v{t}")
    e(f"v_lshrrev_b32 v{t+3}, 5, v0")
    e(f"v_lshlrev_b32 v{t+2}, 6, v{t+3}"); e(f"v_sub_u32 v{t+2}, 32, v{t+2}")
    e(f"v_mul_u32_u24 v{t+3}, 0x4004, v{t+3}")
    for o in range(2): e(f"v_mad_i32_i24 v{dst+4*o}, v{t+o}, v{t+2}, v{t+3}")
    e(f"v_lshlrev_b32 v{t+2}, 5, v{t+2}")
    for o in range(2): e(f"v_add3_u32 v{dst+4*o+1}, v{dst+4*o}, v{t+2}, {sbase}")
    for o in range(2):
        for r in range(2, 4): e(f"v_add_u32 v{dst+4*o+r}, v{dst+4*o+r-1}, v{t+2}")
    for o in range(2): e(f"v_and_b32 v{dst+4*o}, 0x1fff, v{dst+4*o}")
    for o in range(2): e(f"v_add_u32 v{dst+4*o}, {sbase}, v{dst+4*o}")
def twiddle(e, re, im, c, s, n, tmp, conj):
    for p in range(0, n, 2):
        e(f"v_pk_mul_f32 {vr(tmp+p,2)}, {vr(im+p,2)}, {vr(s+p,2)}")
        e(f"v_pk_mul_f32 {vr(tmp+n+p,2)}, {vr(re+p,2)}, {vr(s+p,2)}")
    ng = " neg_lo:[0,0,1] neg_hi:[0,0,1]"
    for p in range(0, n, 2):
        e(f"v_pk_fma_f32 {vr(tmp+p,2)}, {vr(re+p,2)}, {vr(c+p,2)}, {vr(tmp+p,2)}" + (ng if conj else ""))
        e(f"v_pk_fma_f32 {vr(tmp+n+p,2)}, {vr(im+p,2)}, {vr(c+p,2)}, {vr(tmp+n+p,2)}" + ("" if conj else ng))
def packfrag(e, dst, lo, hi):
    e(f"v_cvt_pk_bf16_f32 v{dst}, v{lo}, v{lo+1}"); e(f"v_cvt_pk_bf16_f32 v{dst+1}, v{lo+2}, v{lo+3}")
    e(f"v_cvt_pk_bf16_f32 v{dst+2}, v{hi}, v{hi+1}"); e(f"v_cvt_pk_bf16_f32 v{dst+3}, v{hi+2}, v{hi+3}")
gen_fm_fn(a, FM, FN, 2, 3, 4, 5)
a(f"v_mul_f32 v6, {f2u(1/32)}, v{FN}"); a(f"v_mul_f32 v7, {f2u(1/32)}, v{FN+1}")
for o in range(2):
    for t in range(2): gen_mat(FT + (2*o+t)*6, 6+o, FM+4*t, T0)
a(f"s_cmp_lt_u32 {WAVE}, 4")
a("s_cbranch_scc1 Lcw")

G16, TWRc, TWRs, ZA = 32, 40, 48, 56
if opt("x_kill", 0) & 2:
    a("v_mov_b32 v5, 1"); a(f"ds_write_b32 v{VCT}, v5 offset:{cROWS}"); a("s_waitcnt vmcnt(0) lgkmcnt(0)"); a("s_endpgm")
a(f"v_mul_f32 v6, {f2u(1/16)}, v{FN}")
gen_mat(G16, 6, FM, T0)
for o in range(2):
    a(f"v_mul_f32 v6, {f2u(1/512)}, v{FN+o}")
    gen_tw(a, TWRc+4*o, TWRs+4*o, 6, FM, 4)
a(f"s_and_b32 s62, {WAVE}, 1")
a("s_lshl_b32 s57, s62, 4"); a(f"s_add_u32 s57, s57, {ST3}")
gen_zaddr(a, ZA, "s57", 2, 3, 4)
a("v_lshlrev_b32 v4, 3, v0"); a("v_add_u32 v4, s61, v4")
XFb, XUb, D1b, D2b = (64, 128), (80, 144), (96, 160), (112, 176)
SS = 192
for k in range(8): a(f"v_mov_b32 v{SS+k}, 0")
a("v_mov_b32 v5, 1")
stamp(2)
a("s_waitcnt vmcnt(0) lgkmcnt(0)")
a(f"ds_write_b32 v{VCT}, v5 offset:{cROWS}")
for ii in range(2):
    for t in range(2):
        a(f"ds_read_b64_tr_b16 {vr(XFb[ii]+4*t,2)}, v4 offset:{2048*ii + 512*t}")
        a(f"ds_read_b64_tr_b16 {vr(XFb[ii]+4*t+2,2)}, v4 offset:{2048*ii + 1024 + 512*t}")
a("s_add_u32 s42, s42, 0x9e3779b9"); a("s_addc_u32 s43, s43, 0x7f4a7c15")
stamp(3)
a("s_waitcnt lgkmcnt(0)")
for t in range(2):
    for d in range(2):
        for ii in range(2):
            for u in range(2):
                x = XFb[ii] + 4*t + 2*u + d
                a(f"v_dot2c_f32_bf16 v{SS+2*ii+u}, {ONES}, v{x}")
                a(f"v_dot2c_f32_bf16 v{SS+4+2*ii+u}, v{x}, v{x}")
unl = []
for ii in range(2):
    for k in range(8):
        unl.append(f"v_lshlrev_b32 v{XUb[ii]+2*k}, 16, v{XFb[ii]+k}"); unl.append(f"v_and_b32 v{XUb[ii]+2*k+1}, 0xffff0000, v{XFb[ii]+k}")
def un(n):
    for _ in range(n):
        if unl: a(unl.pop(0))
un(2)
for b in (SS, SS+2, SS+4, SS+6): a(f"v_permlane16_swap_b32 v{b}, v{b+1}")
for b in (SS, SS+2, SS+4, SS+6): a(f"v_add_f32 v{b}, v{b}, v{b+1}")
un(1)
for b in (SS, SS+4): a(f"v_permlane32_swap_b32 v{b}, v{b+2}")
for b in (SS, SS+4): a(f"v_add_f32 v{b}, v{b}, v{b+2}")
for sh in (8, 4, 2, 1):
    un(1)
    for b in (SS, SS+4): a(f"v_add_f32_dpp v{b}, v{b}, v{b} row_ror:{sh} row_mask:0xf bank_mask:0xf")
RC = 200
a(f"v_mul_f32 v{RC}, {f2u(-1/512)}, v{SS}")
a(f"v_mul_f32 v{SS+4}, {f2u(1/512)}, v{SS+4}")
a(f"v_fma_f32 v{SS+4}, -v{RC}, v{RC}, v{SS+4}")
a(f"v_max_f32 v{SS+4}, 0, v{SS+4}")
a(f"v_add_f32 v{SS+1}, {f2u(1e-5)}, v{SS+4}")
a(f"v_mov_b32 v{SS+2}, {f2u(1e-10)}")
a(f"v_rsq_f32 v{SS+1}, v{SS+1}")
a(f"v_fmac_f32 v{SS+2}, {f2u(1+1e-5)}, v{SS+4}")
a(f"v_mov_b32 v{RC+2}, s42"); a(f"v_mov_b32 v{RC+3}, s43")
a(f"v_rsq_f32 v{RC+1}, v{SS+2}")
a(f"v_mul_f32 v{SS+3}, v{RC}, v{SS+1}")
a("v_and_b32 v5, 48, v0")
a(f"s_lshl_b32 s57, {RHO}, 7"); a("s_lshl_b32 s58, s62, 6"); a("s_add_u32 s57, s57, s58"); a(f"s_add_u32 s57, s57, {SB}")
for k in range(4):
    a(f"v_readlane_b32 s{20+2*k}, v{SS+1}, {16*k}"); a(f"v_readlane_b32 s{21+2*k}, v{SS+3}, {16*k}")
a("s_mov_b32 exec_lo, 0x10001"); a("s_mov_b32 exec_hi, 0x10001")
a(f"buffer_store_dwordx4 {vr(RC,4)}, v5, {sWS}, s57 offen sc1")
a("s_mov_b64 exec, -1")
un(99)
def p0_body(ii):
    L = []; e = L.append
    XF, XU, D1, D2 = XFb[ii], XUb[ii], D1b[ii], D2b[ii]
    for k in range(8):
        sp = 20 + 2*(2*ii + ((k >> 1) & 1))
        e(f"v_pk_fma_f32 {vr(XU+2*k,2)}, {vr(XU+2*k,2)}, s[{sp}:{sp+1}], s[{sp}:{sp+1}] op_sel:[0,0,1] op_sel_hi:[1,0,1]")
    for k in range(8): e(f"v_cvt_pk_bf16_f32 v{XF+k}, v{XU+2*k}, v{XU+2*k+1}")
    for t in range(2):
        for o in range(2):
            for ri in range(2):
                d = vr(D1 + 8*o + 4*ri, 4)
                e(f"v_mfma_f32_16x16x32_bf16 {d}, {vr(XF+4*t,4)}, {Fx(ri,o,t)}, {'0' if t == 0 else d}")
    for o in range(2): twiddle(e, D1+8*o, D1+8*o+4, TWRc+4*o, TWRs+4*o, 4, XU+8*o, False)
    for o in range(2): packfrag(e, XF+4*o, XU+8*o, XU+8*o+4)
    for o in range(2):
        e(f"v_mfma_f32_16x16x32_bf16 {vr(D2+8*o,4)}, {vr(G16+2,4)}, {vr(XF+4*o,4)}, 0")
        e(f"v_mfma_f32_16x16x32_bf16 {vr(D2+8*o+4,4)}, {vr(G16,4)}, {vr(XF+4*o,4)}, 0")
    for o in range(2):
        for r in range(4): e(f"v_cvt_pk_bf16_f32 v{XU+4*o+r}, v{D2+8*o+r}, v{D2+8*o+4+r}")
    e(f"v_readlane_b32 s{28+ii}, v{XU}, 32")
    for k in range(1, 8): e(f"ds_write_b32 v{ZA+k}, v{XU+k} offset:{8*ii}")
    e(f"v_writelane_b32 v{XU}, s{28+ii}, 0")
    e(f"ds_write_b32 v{ZA}, v{XU} offset:{8*ii}")
    return L
A0, A1 = p0_body(0), p0_body(1)
LEAD = 16
for x in A0[:LEAD]: a(x)
rest0 = A0[LEAD:]
for k in range(max(len(rest0), len(A1))):
    if k < len(rest0): a(rest0[k])
    if k < len(A1): a(A1[k])
a("s_lshl_b32 s57, s62, 2"); a(f"v_add_u32 v5, s57, v{VCT}"); a("v_xor_b32 v6, 4, v5"); a("v_mov_b32 v7, 1")
a(f"ds_write_b32 v5, v7 offset:{cRWF}")
a("s_lshl_b32 s60, s62, 12"); a(f"s_add_u32 s57, s60, {ST3}"); a("v_add_u32 v7, s57, v1")
a(f"s_lshl_b32 s57, {RHO}, 13"); a("s_add_u32 s57, s57, s60"); a(f"s_add_u32 s57, s57, {ZB}")
stamp(4)
lds_spin(6, cRWF, 1, 1, 2)
for k in range(4): a(f"ds_read_b128 {vr(64+4*k,4)}, v7 offset:{1024*k}")
a(f"s_lshl_b32 s60, s62, 11"); a(f"s_lshl_b32 s58, {RHO}, 3"); a("s_add_u32 s60, s60, s58"); a(f"s_add_u32 s60, s60, {F1}")
for k in range(4):
    a(f"s_waitcnt lgkmcnt({3-k})")
    a(f"buffer_store_dwordx4 {vr(64+4*k,4)}, v1, {sWS}, s57 offen offset:{1024*k} sc1")
stamp(5)
a("s_waitcnt vmcnt(0)")
flag_store("s60", T0)
stamp(6)
dump_stamps(2, 6)
a("s_endpgm")

a.label("Lcw")
a("s_setprio 2")
a(f"v_mul_f32 v6, {f2u(1/1024)}, v{FN}")
gen_tw(a, TW1c, TW1s, 6, FM, 8)
a(f"v_mul_f32 v6, {f2u(1/1024)}, v{FN+1}")
gen_tw(a, TW2c, TW2s, 6, FM, 4)
a("v_lshrrev_b32 v4, 5, v0"); a("v_lshlrev_b32 v4, 7, v4")
a("v_bfe_u32 v5, v0, 1, 4"); a("v_add_u32 v4, v4, v5")
a("v_and_b32 v5, 1, v0"); a("v_lshl_add_u32 v4, v5, 6, v4")
a(f"s_lshr_b32 s58, {WAVE}, 1"); a("s_lshl_b32 s58, s58, 9"); a(f"s_add_u32 s58, s58, {H16}")
a("v_add_u32 v4, s58, v4"); a("v_cvt_f32_u32 v4, v4"); a(f"v_mul_f32 v{T0}, {f2u(1/2048)}, v4")
for n in range(1, 4): a(f"v_add_f32 v{T0+n}, {f2u((256*(n>>1) + 32*(n&1))/2048)}, v{T0}")
for n in range(4): a(f"v_cos_f32 v{T0+4+n}, v{T0+n}")
for n in range(4): a(f"v_sin_f32 v{T0+n}, v{T0+n}")
for n in range(4): a(f"v_add_f32 v{T0+8+n}, v{T0+4+n}, v{T0+n}")
for n in range(4): a(f"v_sub_f32 v{T0+n}, v{T0+4+n}, v{T0+n}")
for n in range(4):
    a(f"v_cvt_pk_bf16_f32 v{UVa+n}, v{T0+8+n}, v{T0+n}"); a(f"v_cvt_pk_bf16_f32 v{UVb+n}, v{T0+n}, v{T0+8+n}")
VZ, VW, VY, VFR = 128, 129, 130, 131
a("v_lshrrev_b32 v5, 5, v0"); a("v_lshlrev_b32 v5, 5, v5"); a("v_bfe_u32 v6, v0, 1, 4"); a("v_add_u32 v5, v5, v6")
a(f"v_lshlrev_b32 v{VY}, 5, v5")
a("v_lshlrev_b32 v5, 13, v5"); a("v_and_b32 v6, 1, v0"); a(f"v_lshl_add_u32 v{VZ}, v6, 4, v5"); a(f"v_lshl_add_u32 v{VY}, v6, 4, v{VY}")
a(f"s_lshr_b32 s58, {WAVE}, 1"); a("s_lshl_b32 s58, s58, 7"); a(f"s_add_u32 s66, s58, {H16}")
a("s_lshl_b32 s20, s66, 13"); a(f"s_lshl_b32 s58, {KAP}, 5"); a("s_add_u32 s20, s20, s58"); a(f"s_add_u32 s20, s20, {ZB}")
a(f"s_add_u32 s21, s20, {64*8192}")
a("v_lshlrev_b32 v6, 8, v3"); a(f"v_lshl_add_u32 v{VW}, v2, 2, v6")
a(f"s_lshl_b32 s22, {KAP}, 13"); a(f"s_lshl_b32 s58, {WAVE}, 6"); a("s_add_u32 s22, s22, s58"); a(f"s_add_u32 s22, s22, {WT}")
a(f"s_lshl_b32 s58, {H16}, 8"); a("s_add_u32 s22, s22, s58"); a("s_xor_b32 s23, s22, 4096")
a(f"s_lshl_b32 s58, {WAVE}, 2"); a(f"v_add_u32 v{VFR}, s58, v{VCT}")
a("s_waitcnt lgkmcnt(0)")
a("s_add_u32 s42, s42, 0x9e3779b9"); a("s_addc_u32 s43, s43, 0x7f4a7c15")
def z_loads():
    a(f"buffer_load_dwordx4 {vr(ZIN,4)}, v{VZ}, {sWS}, s20 offen sc1")
    a(f"buffer_load_dwordx4 {vr(ZIN+4,4)}, v{VZ}, {sWS}, s21 offen sc1")
a(f"s_cmp_eq_u32 {JL}, 7")
a("s_cbranch_scc1 Lhelper")

AX, AW, AX2, AW2 = 2, 6, 188, 7
a("v_and_b32 v7, 31, v0")
a("v_lshrrev_b32 v2, 5, v0"); a("v_bfe_u32 v3, v0, 1, 3"); a("v_xor_b32 v2, v2, v3")
a("v_lshlrev_b32 v2, 4, v2"); a("v_lshl_add_u32 v2, v7, 7, v2")
a(f"s_lshr_b32 s58, {WAVE}, 1"); a("s_lshl_b32 s58, s58, 13")
a("v_add_u32 v2, s58, v2")
for ks in range(1, 4): a(f"v_xor_b32 v{2+ks}, {ks*32}, v2")
a("v_lshrrev_b32 v6, 5, v0"); a("v_lshlrev_b32 v6, 11, v6")
a("v_bfe_u32 v7, v0, 2, 2"); a("v_lshl_add_u32 v6, v7, 6, v6")
a("v_bfe_u32 v7, v0, 4, 1"); a("v_lshl_add_u32 v6, v7, 5, v6")
a("v_and_b32 v7, 3, v0"); a("v_lshl_add_u32 v6, v7, 3, v6")
a(f"s_lshl_b32 s58, {H16}, 5"); a("s_add_u32 s58, s58, 16384"); a(f"s_lshr_b32 s57, {WAVE}, 1"); a("s_lshl_b32 s57, s57, 8"); a("s_add_u32 s58, s58, s57")
a("v_add_u32 v6, s58, v6"); a("v_xor_b32 v7, 256, v6")
SCS = 186; CU = 188
a(f"v_mov_b64 {vr(SCS,2)}, 0")
for k in range(0, 64, 2): a(f"v_mov_b64 {vr(ACC+k,2)}, 0")
a(f"s_lshl_b32 s67, {R_}, 2"); a(f"s_and_b32 s58, {WAVE}, 2"); a("s_add_u32 s67, s67, s58")
a("s_lshl_b32 s24, s67, 9"); a(f"s_add_u32 s24, s24, {SB}")
a("s_lshl_b32 s57, s62, 13"); a(f"s_lshl_b32 s58, {H16}, 8"); a("s_add_u32 s57, s57, s58"); a(f"s_add_u32 s57, s57, {HB}")
a(f"s_mul_i32 s67, s67, {112*1024}"); a("s_add_u32 s67, s67, s57"); a(f"s_add_u32 s68, s67, {112*1024}")
a(f"s_lshr_b32 s58, {WAVE}, 1"); a("s_lshl_b32 s58, s58, 11")
a("v_add_u32 v132, s58, v1"); a("v_xor_b32 v133, 2048, v132")
a(f"s_lshl_b32 s58, {WAVE}, 10"); a(f"s_add_u32 s58, s58, {ST2}")
a("v_add_u32 v134, s58, v1"); a("v_xor_b32 v135, 2048, v134"); a(f"v_xor_b32 v136, 8, v{VFR}")
FR = 32
FLG = 138
def rdA(buf, fb, slot, ks):
    b = FR + 16*buf + 4*fb
    for j in range(2): a(f"ds_read_b64_tr_b16 {vr(b+2*j,2)}, v{AW if fb == 0 else AW2} offset:{slot*32768 + ks*4096 + j*1024}")
def rdB(buf, tb, slot, ks):
    a(f"ds_read_b128 {vr(FR+16*buf+8+4*tb,4)}, v{AX+ks} offset:{slot*32768 + tb*4096}")
def acc(fb, tb): return vr(ACC + 32*fb + 16*tb, 16)
def g1_mfma(buf, fb, tb):
    b = FR + 16*buf
    a(f"v_mfma_f32_32x32x16_bf16 {acc(fb,tb)}, {vr(b+4*fb,4)}, {vr(b+8+4*tb,4)}, {acc(fb,tb)}")
def g1_cs(buf, k):
    b = FR + 16*buf; c = CU + 2*(k & 1)
    if opt("x_nocs", 0): return
    if opt("cs2", 1):
        a(f"v_lshlrev_b32 v{c}, 16, v{b+k}"); a(f"v_and_b32 v{c+1}, s25, v{b+k}")
        a(f"v_add_f32 v{SCS}, v{SCS}, v{c}"); a(f"v_add_f32 v{SCS+1}, v{SCS+1}, v{c+1}")
        return
    a(f"v_lshlrev_b32 v{c}, 16, v{b+k}"); a(f"v_and_b32 v{c+1}, s25, v{b+k}")
    a(f"v_pk_add_f32 {vr(SCS,2)}, {vr(SCS,2)}, {vr(c,2)}")
a("s_mov_b32 s25, 0xffff0000")
a("s_mov_b32 s61, 1")
a("v_mov_b32 v137, 0")
stamp(2)
lds_spin(VCT, cFULL, 2, 1, FLG, sleep=1)
stamp(3)
for n in range(2): rdA(n, 1, 0, n); rdB(n, 0, 0, n); rdB(n, 1, 0, n); rdA(n, 0, 0, n)
a(f"ds_write_b32 v{VFR}, v137 offset:{cFREE}")
EB = 140
KC = 144
STV = 240
def g1_step(n, reads=True, tail=False):
    ks = n & 3; buf = n & 1
    nn = (n + 2) & 7; ns, nk = nn >> 2, nn & 3
    extra = 1 if ks == 0 else 0
    if not tail: a(f"s_waitcnt lgkmcnt({6 + extra})")
    if not tail: g1_mfma(buf, 1, 0)
    if ks == 2 and reads:
        a(f"v_min_u32 v{FLG}, v{FLG}, v{FLG+1}")
        if n == 6:
            a("s_cmp_eq_u32 s61, 8")
            a("s_cbranch_scc1 Lg1_last")
            for r in list(range(AX, AX+4)) + [AW, AW2]: a(f"v_xor_b32 v{r}, 0x10000, v{r}")
        else: g1_cs(buf, 0)
        a(f"v_readfirstlane_b32 s58, v{FLG}")
        if n == 6: g1_cs(buf, 0)
        ok = newlbl("ok")
        a("s_cmp_gt_u32 s58, s61")
        a(f"s_cbranch_scc1 {ok}")
        a("s_add_u32 s57, s61, 1")
        lds_spin(VCT, cFULL, 2, "s57", FLG, sleep=1)
        a.label(ok)
        a("s_add_u32 s61, s61, 1")
    else: g1_cs(buf, 0)
    if ks == 2: a("v_add_u32 v137, 1, v137")
    if ks == 1: a(f"ds_read_b64 {vr(FLG,2)}, v{VCT} offset:{cFULL}")
    if ks == 3: a(f"ds_write_b32 v{VFR}, v137 offset:{cFREE}")
    g1_mfma(buf, 1, 1)
    if reads: rdA(buf, 1, ns, nk)
    g1_cs(buf, 1)
    g1_mfma(buf, 0, 0)
    if reads: rdB(buf, 0, ns, nk)
    g1_cs(buf, 2)
    g1_mfma(buf, 0, 1)
    if reads: rdB(buf, 1, ns, nk)
    g1_cs(buf, 3)
    if reads: rdA(buf, 0, ns, nk)
a.label("Lg1")
for n in range(8): g1_step(n)
a("s_cmp_lg_u32 s61, 5")
a("s_cbranch_scc1 Lg1_n1")
stamp(13)
poll_issue(1, "s24", STV, 4)
a("s_branch Lg1")
a.label("Lg1_n1")
a("s_cmp_lg_u32 s61, 7")
a("s_cbranch_scc1 Lg1")
poll_check(1, "s24", STV, 0, 4)
C0 = -2*math.sqrt(2/math.pi)*math.log2(math.e); C1 = C0*0.044715
t = STV + 4
a(f"v_rcp_f32 v{t}, v{STV+1}")
a(f"v_mov_b32 v{t+3}, v{STV+1}")
a(f"v_cvt_pk_bf16_f32 v{EB+1}, v{STV}, v{t}")
a(f"v_mov_b32 v{EB+3}, 0")
a(f"v_permlane32_swap_b32 v{t+3}, v{STV+1}")
a(f"v_lshlrev_b32 v{t+1}, 16, v{EB+1}"); a(f"v_and_b32 v{t+2}, s25, v{EB+1}")
a(f"v_sub_f32 v{t+1}, v{STV}, v{t+1}"); a(f"v_sub_f32 v{t+2}, v{t}, v{t+2}")
a(f"v_cvt_pk_bf16_f32 v{EB}, v{STV}, v{t+1}"); a(f"v_cvt_pk_bf16_f32 v{EB+2}, v{t+2}, 0")
for tb, rc in ((0, t+3), (1, STV+1)):
    k = KC + 4*tb
    a(f"v_mul_f32 v{k}, v{rc}, v{rc}"); a(f"v_rcp_f32 v{k+2}, v{rc}")
    a(f"v_mul_f32 v{k+1}, {f2u(C0)}, v{rc}"); a(f"v_mul_f32 v{k}, v{k}, v{rc}"); a(f"v_mul_f32 v{k}, {f2u(C1)}, v{k}")
a("s_branch Lg1")
a.label("Lg1_last")
g1_step(6, reads=False, tail=True)
a("s_waitcnt lgkmcnt(0)")
a(f"ds_write_b32 v{VFR}, v137 offset:{cFREE}")
a(f"ds_read_b32 v{FLG}, v{VCT} offset:{cPOK}")
g1_mfma(1, 0, 0)
for k in range(2): g1_cs(1, k)
g1_mfma(1, 0, 1)
for k in range(2, 4): g1_cs(1, k)
stamp(6)
t = T0; EA = T0 + 4; EAL, EAH = T0 + 8, T0 + 12
a(f"v_add_f32 v{SCS}, v{SCS}, v{SCS+1}")
a("v_cmp_gt_u32 vcc, 32, v0")
a(f"v_mov_b32 v{t}, v{SCS}")
g1_mfma(1, 1, 0)
a(f"v_mov_b32 v{EAL+3}, 0"); a(f"v_mov_b32 v{EAH+3}, 0")
a(f"v_permlane32_swap_b32 v{t}, v{SCS}")
a(f"v_add_f32 v{SCS}, v{t}, v{SCS}")
a(f"v_cvt_pk_bf16_f32 v{EA}, v{SCS}, v{SCS}")
g1_mfma(1, 1, 1)
a(f"v_and_b32 v{t}, s25, v{EA}")
a(f"v_sub_f32 v{t}, v{SCS}, v{t}")
a(f"v_cvt_pk_bf16_f32 v{EA+1}, v{t}, 0")
a(f"v_mov_b32 v{EA+2}, v{B1V}"); a(f"v_mov_b32 v{EA+3}, 1")
a(f"v_lshl_or_b32 v{EA+1}, v{B1V}, 16, v{EA+1}")
a(f"ds_write_b128 v134, {vr(EA,4)}")
a(f"ds_write_b32 v{VFR}, v{EA+3} offset:{cEXT}")
def ext(fb, src):
    for k in range(3): a(f"v_cndmask_b32 v{EAL+k}, 0, v{src+k}, vcc")
    for k in range(3): a(f"v_cndmask_b32 v{EAH+k}, v{src+k}, 0, vcc")
    a(f"v_mfma_f32_32x32x16_bf16 {acc(fb,0)}, {vr(EAL,4)}, {vr(EB,4)}, {acc(fb,0)}")
    a(f"v_mfma_f32_32x32x16_bf16 {acc(fb,1)}, {vr(EAH,4)}, {vr(EB,4)}, {acc(fb,1)}")
ext(0, EA)
a("s_waitcnt lgkmcnt(0)")
a(f"v_readfirstlane_b32 s58, v{FLG}")
a("s_nop 0")
a("s_cmp_lg_u32 s58, 0")
a("s_cbranch_scc1 Lzok")
lds_spin(VCT, cPOK, 1, 1, FLG, sleep=1)
a.label("Lzok")
z_loads()
a("s_nop 2")
stamp(7)
GT = 40
cnt = 0
for fb in range(2):
    for tb in range(2):
        for th in range(2):
            x = ACC + 32*fb + 16*tb + 8*th; k = KC + 4*tb; o = 48 + 4*(cnt & 1)
            if cnt == 2:
                a(f"ds_read_b32 v{FLG}, v136 offset:{cEXT}"); a(f"ds_read_b128 {vr(EA,4)}, v135")
            if cnt == 3:
                a("s_waitcnt lgkmcnt(0)")
                a(f"v_readfirstlane_b32 s58, v{FLG}")
                a("s_nop 0")
                a("s_cmp_lg_u32 s58, 0")
                a("s_cbranch_scc1 Leok")
                lds_spin(136, cEXT, 1, 1, FLG)
                a(f"ds_read_b128 {vr(EA,4)}, v135")
                a("s_waitcnt lgkmcnt(0)")
                a.label("Leok")
                ext(1, EA)
            if cnt == 7: a(f"ds_read_b32 v{FLG}, v{VCT} offset:{cPOK+4}")
            cnt += 1
            for p in range(0, 8, 2): a(f"v_pk_mul_f32 {vr(GT+p,2)}, {vr(x+p,2)}, {vr(x+p,2)}")
            for p in range(0, 8, 2): a(f"v_pk_fma_f32 {vr(GT+p,2)}, {vr(GT+p,2)}, {vr(k,2)}, {vr(k,2)} op_sel:[0,0,1] op_sel_hi:[1,0,1]")
            for p in range(0, 8, 2): a(f"v_pk_mul_f32 {vr(GT+p,2)}, {vr(GT+p,2)}, {vr(x+p,2)}")
            for p in range(8): a(f"v_exp_f32 v{GT+p}, v{GT+p}")
            for p in range(0, 8, 2): a(f"v_pk_fma_f32 {vr(GT+p,2)}, {vr(GT+p,2)}, {vr(k+2,2)}, {vr(k+2,2)} op_sel_hi:[1,0,0]")
            for p in range(8): a(f"v_rcp_f32 v{GT+p}, v{GT+p}")
            for p in range(0, 8, 2): a(f"v_pk_mul_f32 {vr(GT+p,2)}, {vr(GT+p,2)}, {vr(x+p,2)}")
            for p in range(4): a(f"v_cvt_pk_bf16_f32 v{o+p}, v{GT+2*p}, v{GT+2*p+1}")
            a(f"buffer_store_dwordx4 {vr(o,4)}, v{132+fb}, {sWS}, s{67+tb} offen offset:{1024*th} sc1")
a("s_waitcnt vmcnt(8) lgkmcnt(0)")
a("s_branch Lcol")

a.label("Lhelper")
a("v_bfe_u32 v2, v0, 3, 1"); a("v_bfe_u32 v3, v0, 2, 1"); a("v_lshl_add_u32 v2, v3, 5, v2")
a("v_and_b32 v3, 3, v0"); a("v_lshl_add_u32 v2, v3, 3, v2"); a("v_mul_u32_u24 v2, 514, v2")
a("v_lshrrev_b32 v3, 4, v0"); a(f"s_lshl_b32 s58, {WAVE}, 6"); a("v_add_u32 v3, s58, v3")
a("v_lshl_add_u32 v4, v3, 1, v2")
a("v_cmp_eq_u32 vcc, 0, v3"); a("v_add_u32 v5, 512, v4"); a("v_cndmask_b32 v5, v4, v5, vcc")
a("v_lshlrev_b32 v3, 13, v3"); a("v_and_b32 v6, 15, v0"); a("v_lshl_add_u32 v3, v6, 4, v3")
a(f"s_lshl_b32 s62, {XCD}, 2"); a(f"s_and_b32 s58, {IDX}, 3"); a("s_add_u32 s62, s62, s58")
a("s_lshl_b32 s63, s62, 8"); a(f"s_add_u32 s63, s63, {WT}")
stamp(2)
lds_spin(VCT, cFULL, 2, 1, FLG, sleep=2)
stamp(3)
a("s_mov_b32 s61, 0")
a.label("Lhl")
for u in range(4):
    for tt in range(4):
        ad = "v5" if u == 0 else "v4"
        a(f"ds_read_u16 v{32+4*u+tt}, {ad} offset:{u*8 + tt*1028}")
        a(f"ds_read_u16 v{48+4*u+tt}, {ad} offset:{36864 + u*8 + tt*1028}")
a("s_waitcnt lgkmcnt(0)")
for u in range(4):
    for tt in range(4): a(f"v_lshl_or_b32 v{64+4*u+tt}, v{48+4*u+tt}, 16, v{32+4*u+tt}")
    a(f"buffer_store_dwordx4 {vr(64+4*u,4)}, v3, {sWS}, s63 offen sc1")
    a(f"s_add_u32 s63, s63, {4*8192}")
a("v_add_u32 v4, 32, v4"); a("v_mov_b32 v5, v4")
a("s_add_u32 s61, s61, 1"); a("s_cmp_lt_u32 s61, 4"); a("s_cbranch_scc1 Lhl")
a(f"s_lshl_b32 s60, {WAVE}, 8"); a("s_lshl_b32 s62, s62, 3"); a("s_add_u32 s60, s60, s62"); a(f"s_add_u32 s60, s60, {FW}")
a("s_waitcnt vmcnt(0)")
flag_store("s60", T0)
a("v_mov_b32 v2, 8")
a(f"ds_write_b32 v{VFR}, v2 offset:{cFREE}")
stamp(6)
lds_spin(VCT, cPOK, 1, 1, FLG, sleep=1)
z_loads()
a(f"v_mov_b32 v{FLG}, 0")
a("s_waitcnt vmcnt(0)")

a.label("Lcol")
stamp(8)
a(f"v_readfirstlane_b32 s58, v{FLG}")
a("s_nop 0")
a("s_cmp_lg_u32 s58, 0")
a("s_cbranch_scc1 Lwok")
lds_spin(VCT, cPOK+4, 1, 1, FLG, sleep=1)
a.label("Lwok")
for o in range(2):
    for r in range(4): a(f"buffer_load_dword v{WIN+4*o+r}, v{VW}, {sWS}, s{22+o} offen offset:{256*r} sc1")
EE = 32
for n in range(4):
    P = ZIN + 4*(n >> 1) + 2*(n & 1); M = P + 1
    a(f"v_dot2_f32_bf16 v{EE+n}, v{P}, {ONES}, 0")
    a(f"v_dot2_f32_bf16 v{EE+4+n}, v{P}, {ONES}, 0 neg_lo:[0,1,0]")
    a(f"v_dot2_f32_bf16 v{EE+8+n}, v{P}, v{UVa+n}, 0 neg_hi:[0,1,0]")
    a(f"v_dot2_f32_bf16 v{EE+12+n}, v{P}, v{UVb+n}, 0")
    a(f"v_dot2_f32_bf16 v{EE+n}, v{M}, {ONES}, v{EE+n}")
    a(f"v_dot2_f32_bf16 v{EE+4+n}, v{M}, {ONES}, v{EE+4+n} neg_hi:[0,1,0]")
    a(f"v_dot2_f32_bf16 v{EE+8+n}, v{M}, v{UVb+n}, v{EE+8+n} neg_hi:[0,1,0]")
    a(f"v_dot2_f32_bf16 v{EE+12+n}, v{M}, v{UVa+n}, v{EE+12+n} neg_lo:[0,1,0] neg_hi:[0,1,0]")
a("v_lshrrev_b32 v2, 1, v0"); a("v_lshlrev_b32 v2, 4, v2"); a("v_and_b32 v3, 1, v0")
a(f"s_lshl_b32 s58, {WAVE}, 10"); a(f"s_add_u32 s58, s58, {ST}")
a("v_lshl_add_u32 v190, v3, 3, v2"); a("v_add_u32 v190, s58, v190")
a("v_lshl_add_u32 v2, v3, 2, v2"); a("v_add_u32 v2, s58, v2"); a("v_add_u32 v3, 4096, v2")
for cpt in range(4):
    for j in range(2): a(f"v_cvt_pk_bf16_f32 v{48+2*cpt+j}, v{EE+4*cpt+2*j}, v{EE+4*cpt+2*j+1}")
for eo in range(2):
    for j in range(2): a(f"ds_write2_b32 v{2+eo}, v{48+4*eo+j}, v{48+4*eo+2+j} offset0:{128*j} offset1:{128*j+2}")
a(f"s_lshr_b32 s58, {WAVE}, 1"); a("s_lshl_b32 s58, s58, 12"); a(f"s_mul_i32 s57, {H16}, 192"); a("s_add_u32 s58, s58, s57"); a(f"s_add_u32 s58, s58, {ST}")
a("v_add_u32 v4, s58, v1")
for k in range(1, 4): a(f"v_xor_b32 v{4+k}, {1024*k}, v4")
a(f"s_lshl_b32 s61, {R_}, 1"); a(f"s_add_u32 s61, s61, {HF}"); a("s_lshl_b32 s61, s61, 1"); a(f"s_lshr_b32 s58, {WAVE}, 1"); a("s_add_u32 s61, s61, s58")
a("s_lshl_b32 s61, s61, 7"); a(f"s_add_u32 s61, s61, {F2}")
a(f"s_lshl_b32 s58, {JL}, 4"); a("s_add_u32 s60, s61, s58"); a(f"s_lshr_b32 s58, {H16}, 1"); a("s_add_u32 s60, s60, s58")
F2EARLY = opt("f2early", 1)
if F2EARLY:
    a("s_waitcnt vmcnt(8)")
    flag_store("s60", T0)
    stamp(9)
a("s_waitcnt lgkmcnt(0)")
a("s_barrier")
AF = 32
for k in range(4): a(f"ds_read_b128 {vr(AF+4*k,4)}, v{4+k}")
if not F2EARLY:
    a("s_waitcnt vmcnt(8)")
    flag_store("s60", T0)
    stamp(9)
a("s_waitcnt lgkmcnt(0)")
stamp(4)
D1 = 64; TT = 80; TF = 48; D2 = 96
for tau in range(2):
    for be in range(2):
        for ri in range(2):
            d = vr(D1 + 8*be + 4*ri, 4)
            a(f"v_mfma_f32_16x16x32_bf16 {d}, {vr(AF+8*tau+4*be,4)}, {Fx(ri,0,tau)}, {'0' if tau == 0 else d}")
a("v_min_u32 v2, 6, v0"); a("v_lshlrev_b32 v2, 3, v2")
a(f"s_lshr_b32 s58, {IDX}, 4"); a("s_mul_i32 s58, s58, 56"); a("s_add_u32 s60, s61, s58")
a(f"s_lshl_b32 s58, {WAVE}, 10"); a(f"s_add_u32 s58, s58, {ST2}")
a("v_add_u32 v3, s58, v1"); a("v_xor_b32 v5, 1024, v3")
WU = 112
for be in range(2): twiddle(a, D1+8*be, D1+8*be+4, TW1c+4*be, TW1s+4*be, 4, TT+8*be, False)
for be in range(2): packfrag(a, TF+4*be, TT+8*be, TT+8*be+4)
for tau in range(2):
    for o in range(2):
        for ri in range(2):
            d = vr(D2 + 8*o + 4*ri, 4)
            a(f"v_mfma_f32_16x16x32_bf16 {d}, {Fx(ri,o,tau)}, {vr(TF+4*tau,4)}, {'0' if tau == 0 else d}")
a("s_waitcnt vmcnt(1)")
for k in range(8): a(f"v_lshlrev_b32 v{WU+k}, 16, v{WIN+k}")
for k in range(8): a(f"v_and_b32 v{WU+8+k}, 0xffff0000, v{WIN+k}")
for o in range(2): twiddle(a, D2+8*o, D2+8*o+4, WU+4*o, WU+8+4*o, 4, TT+8*o, True)
for o in range(2): packfrag(a, TF+4*o, TT+8*o+4, TT+8*o)
for o in (1, 0):
    for tau in range(2):
        for ri in range(2):
            d = vr(D1 + 8*o + 4*ri, 4)
            a(f"v_mfma_f32_16x16x32_bf16 {d}, {vr(TF+4*tau,4)}, {Fx(ri,o,tau)}, {'0' if tau == 0 else d}")
twiddle(a, D1+12, D1+8, TW2c, TW2s, 4, TT+8, True)
packfrag(a, TF+4, TT+12, TT+8)
a(f"ds_write_b128 v3, {vr(TF+4,4)}")
twiddle(a, D1+4, D1, TW1c, TW1s, 4, TT, True)
packfrag(a, TF, TT+4, TT)
a("s_waitcnt lgkmcnt(0)")
a("s_barrier")
a(f"ds_read_b128 {vr(TF+8,4)}, v5")
poll_issue(2, "s60", 252)
for o in range(2):
    for ri in range(2):
        a(f"v_mfma_f32_16x16x32_bf16 {vr(D2+8*o+4*ri,4)}, {Fx(ri,o,0)}, {vr(TF,4)}, 0")
a("s_waitcnt lgkmcnt(0)")
for o in range(2):
    for ri in range(2):
        d = vr(D2+8*o+4*ri, 4)
        a(f"v_mfma_f32_16x16x32_bf16 {d}, {Fx(ri,o,1)}, {vr(TF+8,4)}, {d}")
QQ, CC = "s61", "s62"
a(f"s_lshl_b32 {QQ}, {HF}, 1"); a(f"s_lshr_b32 s58, {IDX}, 4"); a(f"s_add_u32 {QQ}, {QQ}, s58")
a(f"s_and_b32 {CC}, {JL}, 3")
a(f"s_lshl_b32 s63, {R_}, 2"); a(f"s_add_u32 s63, s63, {WAVE}")
for o in range(2):
    for r in range(4): a(f"v_cvt_pk_bf16_f32 v{TF+4*o+r}, v{D2+8*o+4+r}, v{D2+8*o+r}")
    a(f"ds_write_b128 v{4 if o == 0 else 6}, {vr(TF+4*o,4)}")
a(f"s_mul_i32 s64, s63, {112*1024}"); a(f"s_mul_i32 s58, {QQ}, {28*1024}"); a("s_add_u32 s64, s64, s58"); a(f"s_add_u32 s64, s64, {HB}")
a(f"s_lshl_b32 s67, {KAP}, 13"); a("s_lshl_b32 s66, s66, 5"); a("s_add_u32 s67, s67, s66"); a(f"s_add_u32 s67, s67, {YB}")
a("s_waitcnt lgkmcnt(0)")
a("s_barrier")
EP = 64
for j in range(2):
    a(f"ds_read_b64 {vr(EP+2*j,2)}, v190 offset:{512*j}"); a(f"ds_read_b64 {vr(EP+4+2*j,2)}, v190 offset:{4096+512*j}")
a("v_lshrrev_b32 v7, 5, v0"); a("v_lshlrev_b32 v7, 10, v7")
a("v_bfe_u32 v3, v0, 2, 2"); a("v_lshl_add_u32 v7, v3, 6, v7")
a("v_bfe_u32 v3, v0, 4, 1"); a("v_lshl_add_u32 v7, v3, 5, v7")
a("v_and_b32 v3, 3, v0"); a("v_lshl_add_u32 v7, v3, 3, v7")
for n in range(4):
    a(f"s_add_u32 s58, {CC}, {n}"); a("s_and_b32 s57, s58, 3"); a(f"s_mul_i32 s57, s57, {7*1024}")
    a(f"s_add_u32 s{20+2*n}, s64, s57"); a(f"s_add_u32 s{21+2*n}, s{20+2*n}, 4096")
    a(f"s_sub_u32 s58, s58, {IDX}"); a("s_and_b32 s58, s58, 3"); a("s_lshl_b32 s58, s58, 15")
    a(f"v_add_u32 v{3+n}, s58, v7")
a("s_waitcnt lgkmcnt(0)")
def g2_rd(m, db):
    n, ks = divmod(m, 7); b = 32 + 16*(m & 1) + 4*db
    for j in range(2): a(f"ds_read_b64_tr_b16 {vr(b+2*j,2)}, v{3+n} offset:{ks*4096 + j*2048 + db*256}")
for m in range(2):
    for db in range(4):
        if (m, db) != (1, 3): g2_rd(m, db)
RO = 72; RA = 88
for n in range(4):
    a(f"v_dot2_f32_bf16 v{RA+n}, v{EP+n}, {ONES}, 0 neg_hi:[0,1,0]")
    a(f"v_dot2_f32_bf16 v{RA+4+n}, v{EP+n}, {ONES}, 0")
for n in range(4):
    O = EP + 4 + n
    a(f"v_dot2_f32_bf16 v{RO+4*n}, v{O}, v{UVa+n}, v{RA+n}")
    a(f"v_dot2_f32_bf16 v{RO+4*n+1}, v{O}, v{UVb+n}, v{RA+4+n} neg_lo:[0,1,0]")
    a(f"v_dot2_f32_bf16 v{RO+4*n+2}, v{O}, v{UVb+n}, v{RA+4+n} neg_hi:[0,1,0]")
    a(f"v_dot2_f32_bf16 v{RO+4*n+3}, v{O}, v{UVa+n}, v{RA+n} neg_lo:[0,1,0] neg_hi:[0,1,0]")
g2_rd(1, 3)
a(f"s_cmp_lg_u32 {KAP}, 0")
a("s_cbranch_scc1 Lnk0")
for n in range(4):
    a(f"v_pk_add_f32 {vr(RO+4*n+2,2)}, {vr(RO+4*n+2,2)}, {vr(RO+4*n,2)}")
    a(f"v_pk_mul_f32 {vr(RO+4*n+2,2)}, {vr(RO+4*n+2,2)}, 0.5 op_sel_hi:[1,0]")
    a(f"v_mov_b64 {vr(RO+4*n,2)}, 0")
a.label("Lnk0")
YO = 244
for n in range(4):
    a(f"v_cvt_pk_bf16_f32 v{YO+2*n}, v{RO+4*n}, v{RO+4*n+1}"); a(f"v_cvt_pk_bf16_f32 v{YO+1+2*n}, v{RO+4*n+2}, v{RO+4*n+3}")
a(f"buffer_store_dwordx4 {vr(YO,4)}, v{VY}, {sWS}, s67 offen sc1")
a(f"buffer_store_dwordx4 {vr(YO+4,4)}, v{VY}, {sWS}, s67 offen offset:2048 sc1")
stamp(10)
poll_check(2, "s60", 252, 2)
stamp(5)

HR = 128; NR = 12; PF = opt("pf", 10)
def hload(m):
    n, j = divmod(m, 7)
    a(f"buffer_load_dwordx4 {vr(HR+4*(m%NR),4)}, v1, {sWS}, s{20+2*n+(j>>2)} offen offset:{1024*(j&3)} sc1")
vmq = ["Y", "Y"]
for m in range(PF): hload(m); vmq.append(("h", m))
a(f"s_lshl_b32 s60, {WAVE}, 11"); a(f"s_lshl_b32 s58, {KAP}, 3"); a("s_add_u32 s60, s60, s58"); a(f"s_add_u32 s60, s60, {F3}")
a(f"s_lshr_b32 s65, {RHO}, 7"); a("s_lshl_b32 s65, s65, 1"); a(f"s_bfe_u32 s58, {RHO}, 0x10004"); a("s_add_u32 s65, s65, s58")
a("s_lshl_b32 s65, s65, 11"); a(f"s_lshl_b32 s58, {WAVE}, 9"); a("s_add_u32 s65, s65, s58"); a(f"s_add_u32 s65, s65, {F3}")
a("v_lshlrev_b32 v7, 3, v0")
a(f"s_lshl_b32 s66, {WAVE}, 19"); a(f"s_lshl_b32 s58, {RHO}, 5"); a("s_add_u32 s66, s66, s58"); a(f"s_add_u32 s66, s66, {YB}")
a(f"s_add_u32 s67, s66, {32*8192}")
a(f"s_lshl_b32 s68, {WAVE}, 3"); a(f"s_add_u32 s68, s68, {ST2}")
a(f"s_mov_b32 s69, {f2u(2.0**-21)}")
a(f"s_lshl_b32 s28, {H16}, 5")
a(f"s_lshl_b32 s29, {WAVE}, 11"); a(f"s_add_u32 s30, s29, {XR}"); a(f"s_add_u32 s29, s29, {ST2}")
a("s_mov_b32 s8, s34"); a("s_mov_b32 s9, s35"); a("s_mov_b32 s10, 1024")
a(f"s_waitcnt vmcnt({PF})")
flag_store("s60", 240); vmq.append("f")
ZA = 176; B16 = 184; TIc = 192; TIs = 200; FM = 208; VC, VG4 = 216, 217; VB2 = 218; VYG = 220; VYW = 221; VXR = 222; FT0 = 224
fill = []; fe = fill.append
gen_fm_fn(fe, FM, None, VC, VG4, FT0, FT0+1)
fe(f"v_lshrrev_b32 v{VYG}, 1, v0"); fe(f"v_lshlrev_b32 v{VYG}, 13, v{VYG}"); fe(f"v_and_b32 v{FT0}, 1, v0"); fe(f"v_lshl_add_u32 v{VYG}, v{FT0}, 4, v{VYG}")
fe(f"v_lshlrev_b32 v{VB2}, 5, v{VC}"); fe(f"v_lshl_add_u32 v{VB2}, v{VG4}, 1, v{VB2}"); fe(f"v_add_u32 v{VB2}, s28, v{VB2}"); fe(f"v_xor_b32 v{VB2+1}, 512, v{VB2}")
fe(f"v_add_u32 v{VYW}, s29, v1")
for o in range(2): fe(f"v_add_u32 v{VXR+o}, s30, v{VB2+o}")
gen_zaddr(fe, ZA, "s68", VC, VG4, FT0)
fe(f"v_cvt_f32_u32 v{FT0+8}, v{VG4}")
fe(f"v_add_f32 v{FT0+9}, 1.0, v{FT0+8}"); fe(f"v_add_f32 v{FT0+10}, 2.0, v{FT0+8}"); fe(f"v_add_f32 v{FT0+11}, 1.0, v{FT0+10}")
fe(f"v_cvt_f32_u32 v{FT0+12}, v{VC}"); fe(f"v_mul_f32 v{FT0+13}, {f2u(1/16)}, v{FT0+12}")
gen_tw(fe, FT0, FT0+4, FT0+13, FT0+8, 4)
fe(f"v_mul_f32 v{FT0+13}, {f2u(1/512)}, v{FT0+12}")
for j in range(4):
    fe(f"v_cvt_pk_bf16_f32 v{B16+j}, v{FT0+j}, -v{FT0+4+j}"); fe(f"v_cvt_pk_bf16_f32 v{B16+4+j}, v{FT0+4+j}, v{FT0+j}")
gen_tw(fe, TIc, TIs, FT0+13, FM, 8)
for k in range(16): fe(f"v_mul_f32 v{TIc+k}, s69, v{TIc+k}")
POLL_AT, CHK_AT = opt("pollat", 18), opt("chkat", 23)
YG = 244; B2 = 240
def young(tag): return len(vmq) - 1 - vmq.index(tag)
for m in range(28):
    b = 32 + 16*(m & 1)
    for db in range(4):
        rem = min(7, (27 - m)*4 + (3 - db))
        w = f"lgkmcnt({2*rem})"
        if db == 0: w = f"vmcnt({young(('h', m))}) " + w
        a(f"s_waitcnt {w}")
        d = vr(ACC+16*db, 16)
        a(f"v_mfma_f32_32x32x16_bf16 {d}, {vr(b+4*db,4)}, {vr(HR+4*(m%NR),4)}, {'0' if m == 0 else d}")
        if m + 2 < 28: g2_rd(m + 2, db)
        if db == 1 and m + PF < 28: hload(m + PF); vmq.append(("h", m + PF))
        if db == 2 and m == POLL_AT: poll_issue(7, "s65", 252); vmq.append("poll")
        if db == 2 and m == CHK_AT:
            stamp(1)
            poll_check(7, "s65", 252, young("poll"))
            a(f"buffer_load_dwordx4 {vr(YG,4)}, v{VYG}, {sWS}, s66 offen sc1"); vmq.append("yg0")
            a(f"buffer_load_dwordx4 {vr(YG+4,4)}, v{VYG}, {sWS}, s67 offen sc1"); vmq.append("yg1")
            for o in range(2): a(f"buffer_load_dwordx2 {vr(B2+2*o,2)}, v{VB2+o}, {sW}, 0 offen"); vmq.append(f"b2{o}")
        for _ in range(2 if db != 1 else 1):
            if fill: a(fill.pop(0))
assert not fill
stamp(11)
a(f"s_lshl_b32 s57, {QQ}, 6"); a("s_add_u32 s57, s57, s63"); a("s_lshl_b32 s57, s57, 15"); a(f"s_lshl_b32 s58, {CC}, 13"); a("s_add_u32 s57, s57, s58")
a(f"s_add_u32 s57, s57, {PB}"); a("s_add_u32 s58, s57, 4096")
for k in range(8):
    o = 32 + 4*k
    for p in range(4): a(f"v_cvt_pk_bf16_f32 v{o+p}, v{ACC+8*k+2*p}, v{ACC+8*k+2*p+1}")
    a(f"buffer_store_dwordx4 {vr(o,4)}, v1, {sWS}, s{57+(k>>2)} offen offset:{1024*(k&3)} sc1")
a("s_waitcnt vmcnt(8)")
a(f"ds_write_b128 v{VYW}, {vr(YG,4)}"); a(f"ds_write_b128 v{VYW}, {vr(YG+4,4)} offset:1024")
XV = 136
for o in range(2):
    for u in range(2): a(f"ds_read_b64 {vr(XV+4*o+2*u,2)}, v{VXR+o} offset:{1024*u}")
D1 = 64; TT = 80; TF = 96; D2 = 104
for o in range(2):
    for k in range(2):
        a(f"v_lshlrev_b32 v{120+4*o+2*k}, 16, v{B2+2*o+k}"); a(f"v_and_b32 v{121+4*o+2*k}, 0xffff0000, v{B2+2*o+k}")
a("s_waitcnt lgkmcnt(0)")
a("s_barrier")
YA = 128
for k in range(8): a(f"ds_read_b32 v{YA+k}, v{ZA+k}")
for o in range(2):
    for ri in range(2):
        u = 1 - ri; d = D2 + 8*o + 4*ri
        for k in range(2):
            a(f"v_lshlrev_b32 v{d+2*k}, 16, v{XV+4*o+2*u+k}"); a(f"v_and_b32 v{d+2*k+1}, 0xffff0000, v{XV+4*o+2*u+k}")
        for k in range(2): a(f"v_pk_add_f32 {vr(d+2*k,2)}, {vr(d+2*k,2)}, {vr(120+4*o+2*k,2)}")
a("s_waitcnt lgkmcnt(0)")
for tau in range(2):
    for ri in range(2):
        a(f"v_mfma_f32_16x16x32_bf16 {vr(D1+8*tau+4*ri,4)}, {vr(YA+4*tau,4)}, {vr(B16+4*ri,4)}, 0")
APITCH = 2064
a(f"s_mul_i32 s58, {WAVE}, {2*APITCH}")
for o in range(2): a(f"v_lshlrev_b32 v{146+o}, 1, v{VB2+o}")
for o in range(2): a(f"v_add_u32 v{146+o}, s58, v{146+o}")
for tau in range(2): twiddle(a, D1+8*tau, D1+8*tau+4, TIc+4*tau, TIs+4*tau, 4, TT+8*tau, True)
for tau in range(2): packfrag(a, TF+4*tau, TT+8*tau+4, TT+8*tau)
for tau in range(2):
    for o in range(2):
        for ri in range(2):
            d = vr(D2+8*o+4*ri, 4)
            a(f"v_mfma_f32_16x16x32_bf16 {d}, {vr(TF+4*tau,4)}, {Fx(ri,o,tau)}, {d}")
a("v_and_b32 v2, 7, v0"); a("v_lshrrev_b32 v3, 4, v0"); a("v_bfe_u32 v4, v0, 3, 1")
a("v_lshlrev_b32 v5, 10, v3"); a("v_lshl_add_u32 v5, v4, 9, v5"); a("v_lshl_add_u32 v5, v2, 4, v5")
a("v_lshlrev_b32 v6, 4, v3"); a("v_lshl_add_u32 v6, v4, 2, v6")
a(f"v_mul_u32_u24 v7, {APITCH}, v2"); a("v_lshl_add_u32 v7, v6, 2, v7"); a(f"s_lshl_b32 s58, {WAVE}, 9"); a("v_add_u32 v7, s58, v7")
for o in range(2):
    for ri in range(2): a(f"ds_write_b128 v{146+o}, {vr(D2+8*o+4*ri,4)} offset:{(1-ri)*APITCH}")
OPITCH = 272
a(f"v_mul_u32_u24 v148, {OPITCH}, v2"); a("v_lshl_add_u32 v148, v6, 1, v148")
a(f"s_mul_i32 s58, {WAVE}, {8*OPITCH}"); a(f"s_add_u32 s58, s58, 32768"); a("v_add_u32 v148, s58, v148")
a(f"v_mul_u32_u24 v149, {OPITCH}, v3"); a("v_and_b32 v6, 15, v0"); a("v_lshl_add_u32 v149, v6, 4, v149"); a("v_add_u32 v149, s58, v149")
a("v_lshrrev_b32 v150, 5, v0"); a("v_lshlrev_b32 v150, 15, v150"); a("v_bfe_u32 v4, v0, 4, 1"); a("v_lshl_add_u32 v150, v4, 20, v150"); a("v_lshl_add_u32 v150, v6, 4, v150")
a(f"s_lshl_b32 s60, s63, 7"); a(f"s_lshl_b32 s58, {CC}, 5"); a("s_add_u32 s60, s60, s58"); a(f"s_lshl_b32 s58, {QQ}, 3"); a("s_add_u32 s60, s60, s58"); a(f"s_add_u32 s60, s60, {F4}")
stamp(12)
a("s_waitcnt vmcnt(0)")
flag_store("s60", 240)
a("v_and_b32 v2, 3, v0"); a("v_lshlrev_b32 v2, 3, v2")
a(f"s_lshr_b32 s63, {RHO}, 2")
a("s_lshl_b32 s60, s63, 7"); a(f"s_lshl_b32 s58, {WAVE}, 5"); a("s_add_u32 s60, s60, s58"); a(f"s_add_u32 s60, s60, {F4}")
poll_issue(2, "s60", 252)
a("s_lshl_b32 s57, s63, 15"); a(f"s_lshl_b32 s58, {WAVE}, 13"); a("s_add_u32 s57, s57, s58")
a(f"s_and_b32 s58, {RHO}, 3"); a("s_lshl_b32 s58, s58, 7"); a("s_add_u32 s57, s57, s58"); a(f"s_add_u32 s20, s57, {PB}")
for k in range(1, 8): a(f"s_add_u32 s{20+k}, s20, {(k>>1)*64*32768 + (k&1)*4096}")
a(f"s_lshr_b32 s57, {RHO}, 5"); a("s_lshl_b32 s57, s57, 7"); a(f"s_and_b32 s58, {RHO}, 31"); a("s_add_u32 s57, s57, s58"); a("s_lshl_b32 s57, s57, 10")
a(f"s_lshl_b32 s58, {WAVE}, 8"); a("s_add_u32 s28, s57, s58"); a(f"s_add_u32 s29, s28, {64*1024}")
a("s_mov_b32 s30, 0x00003f80"); a("s_mov_b32 s31, 0x3f800000")
a("s_waitcnt lgkmcnt(0)")
a("s_barrier")
FA = 64
for u in range(2):
    for k in range(2): a(f"ds_read_b128 {vr(FA+8*u+4*k,4)}, v7 offset:{u*256 + k*32}")
poll_check(2, "s60", 252, 0)
PL = 80
for k in range(8): a(f"buffer_load_dwordx4 {vr(PL+4*k,4)}, v5, {sWS}, s{20+k} offen sc1")
stamp(14)
a("s_waitcnt lgkmcnt(0)")
for k in range(8):
    a(f"s_waitcnt vmcnt({7-k})")
    u = k & 1
    for d in range(4):
        a(f"v_dot2c_f32_bf16 v{FA+8*u+2*d}, s30, v{PL+4*k+d}"); a(f"v_dot2c_f32_bf16 v{FA+8*u+2*d+1}, s31, v{PL+4*k+d}")
for u in range(2):
    for d in range(4): a(f"v_cvt_pk_bf16_f32 v{112+4*u+d}, v{FA+8*u+2*d}, v{FA+8*u+2*d+1}")
    a(f"ds_write2_b64 v148, {vr(112+4*u,2)}, {vr(114+4*u,2)} offset0:{16*u} offset1:{16*u+2}")
a("s_waitcnt lgkmcnt(0)")
a(f"ds_read_b128 {vr(120,4)}, v149"); a(f"ds_read_b128 {vr(124,4)}, v149 offset:{4*OPITCH}")
a("s_waitcnt lgkmcnt(1)")
a(f"buffer_store_dwordx4 {vr(120,4)}, v150, {sOUT}, s28 offen")
a("s_waitcnt lgkmcnt(0)")
a(f"buffer_store_dwordx4 {vr(124,4)}, v150, {sOUT}, s29 offen")
a("s_or_b32 s57, s2, s46")
a("s_cmp_lg_u32 s57, 0")
a("s_cbranch_scc1 Lnotag")
a(f"s_mov_b32 s60, {TAG}")
flag_store("s60", 240)
a.label("Lnotag")
if DEBUG:
    a("s_waitcnt vmcnt(0)")
    stamp(15)
if opt("x_hold", 0):
    a.label("Lhold")
    a("s_memrealtime s[20:21]"); a("s_waitcnt lgkmcnt(0)"); a("s_sub_u32 s20, s20, s70"); a(f"s_cmp_lt_u32 s20, {opt('x_hold',0)}"); a("s_cbranch_scc1 Lhold")
dump_stamps(0, 0)
if "--dbg" in sys.argv:
    a("s_cmp_lg_u32 s2, 5"); a("s_cbranch_scc1 Lend")
    a(f"s_cmp_lg_u32 {WAVE}, 0"); a("s_cbranch_scc1 Lend")
    a("s_load_dwordx2 s[20:21], s[0:1], 72")
    a("s_waitcnt lgkmcnt(0)")
    for i in range(16):
        a(f"s_sub_u32 s57, s{70+2*i}, s70"); a(f"v_mov_b32 v{32+i}, s57")
    a("v_mov_b32 v2, 0")
    a("s_mov_b64 exec, 1")
    for i in range(4): a(f"global_store_dwordx4 v2, v[{32+4*i}:{35+4*i}], s[20:21] offset:{16*i}")
a.label("Lend")
a("s_endpgm")
a.label("Lcode_end")

a.fix()
bad = a.check_edges()
okl = {l.text[:-1]: [1]*8 for l in a.L if l.label and (l.text.startswith("Lok") or l.text.startswith("Lpd"))}
for name, dec in (("gemmC", dict(okl, **{"Lcompute":[1], "Lnorow":[1], "Lcw":[1], "Lg1":[1,0], "Lg1_n1":[1,0,1], "Lg1_last":[0,0,0,1], "Lzok":[1], "Leok":[1], "Lwok":[1]})),
                  ("gemmC-slow", {"Lcompute":[1], "Lnorow":[1], "Lcw":[1], "Lg1":[1,0], "Lg1_n1":[1,0,1], "Lg1_last":[0,0,0,1]}),
                  ("helpC", {"Lcompute":[1], "Lnorow":[1], "Lcw":[1], "Lhelper":[1], "Lhl":[1,0], "Lnopf":[1], "Lnk0":[1], "Lnotag":[1]}),
                  ("rw", {"Lcompute":[1], "Lnoinit":[1]}),
                  ("ldx", {"Lnorow":[1], "Lig3":[1,1,1,0,1,1,1,0], "Lld_w16":[1,1], "Lld_next":[1,0], "Lld_loop":[1,0]}),
                  ("ldh", {"Lnorow":[1], "Lhelper_loader":[1], "Lig3":[1,1,0], "Lld_again":[1,0]})):
    seq = a.path(dec)
    nb = sum(1 for i in seq if i.op == "s_barrier")
    print(name, "instrs", len(seq), "barriers", nb, file=sys.stderr)
    bad += a.check_waits(seq)
if bad: print("CHECK FAILURES:", bad, file=sys.stderr)
hdr = open("parallel_sum__spectral_gfnet__mixer_channel_mlp__prompt.s.ref").read().split("; Override")[0]
out = hdr + f"; @launch grid=(256,1,1) block=(512,1,1) lds={LDS_BYTES}\n"
out += '.amdgcn_target "amdgcn-amd-amdhsa--gfx950"\n.text\n'
out += f".globl {NAME}\n.p2align 8\n.type {NAME},@function\n{NAME}:\n" + a.text() + "\n"
out += f""".section .rodata,"a"
.p2align 6
.amdhsa_kernel {NAME}
  .amdhsa_next_free_vgpr 256
  .amdhsa_next_free_sgpr 102
  .amdhsa_accum_offset 256
  .amdhsa_group_segment_fixed_size 0
  .amdhsa_kernarg_size 88
  .amdhsa_user_sgpr_count 2
  .amdhsa_user_sgpr_kernarg_segment_ptr 1
  .amdhsa_system_sgpr_workgroup_id_x 1
.end_amdhsa_kernel
"""
fn = [x for x in sys.argv[1:] if not x.startswith("--")][0]
open(fn, "w").write(out)
```

```python
import re
TRANS = ("v_exp_f32","v_log_f32","v_rcp_f32","v_rsq_f32","v_sqrt_f32","v_sin_f32","v_cos_f32")
def regs_of(tok):
    tok = tok.strip()
    tok = re.sub(r"^-", "", tok); tok = re.sub(r"^(abs|neg)\((.*)\)$", r"\2", tok); tok = tok.strip("|")
    m = re.fullmatch(r"([vsa])(\d+)", tok)
    if m: return {(m.group(1), int(m.group(2)))}
    m = re.fullmatch(r"([vsa])\[(\d+):(\d+)\]", tok)
    if m: return {(m.group(1), i) for i in range(int(m.group(2)), int(m.group(3)) + 1)}
    if tok in ("vcc", "vcc_lo", "vcc_hi"): return {("x", "vcc")}
    if tok in ("exec", "exec_lo", "exec_hi"): return {("x", "exec")}
    if tok == "m0": return {("x", "m0")}
    return set()
class Ins:
    def __init__(self, text):
        self.text = text
        t = text.split(";")[0].strip()
        self.label = t.endswith(":")
        self.directive = t.startswith(".")
        self.op = ""; self.w = set(); self.r = set(); self.cls = "none"
        self.srcc = set(); self.ab = set(); self.data = set(); self.passes = 0
        if self.label or self.directive or not t: return
        parts = t.split(None, 1); op = parts[0]; self.op = op
        rest = parts[1] if len(parts) > 1 else ""
        ops = []; cur = ""; depth = 0
        for ch in rest:
            if ch in "[(": depth += 1
            if ch in "])": depth -= 1
            if ch == "," and depth == 0: ops.append(cur); cur = ""
            else: cur += ch
        ops.append(cur)
        last = ops[-1].strip().split()
        self.mods = " ".join(last[1:]) if last else ""
        if last: ops[-1] = last[0]
        ops = [o.strip() for o in ops if o.strip()]
        self.ops = ops
        R = [regs_of(o) for o in ops]
        base = re.sub(r"_(e32|e64|dpp|sdwa)$", "", op); self.base = base
        if op.startswith("v_mfma"):
            self.cls = "mfma"; self.w = R[0]; self.ab = R[1] | R[2]; self.srcc = R[3]; self.r = self.ab | self.srcc
            self.passes = 8 if "32x32x16" in op else 4 if "16x16x32" in op else None
            assert self.passes, op
        elif op.startswith("v_"):
            self.cls = "valu"
            nw = 1
            if base.startswith("v_cmp"): nw = 1
            if base in ("v_add_co_u32","v_sub_co_u32","v_addc_co_u32","v_subb_co_u32","v_mad_u64_u32"): nw = 2
            for x in R[:nw]: self.w |= x
            for x in R[nw:]: self.r |= x
            if base in ("v_fmac_f32","v_dot2c_f32_bf16","v_writelane_b32","v_pk_fmac_f16") or "dpp" in op or "row_" in self.mods or "quad_perm" in self.mods: self.r |= R[0]
            if base.startswith("v_permlane") or base == "v_swap_b32": self.w |= R[1]; self.r |= R[0]
            if base == "v_cndmask_b32" and len(ops) == 3: self.r |= {("x","vcc")}
            self.dpp = ("row_" in self.mods or "quad_perm" in self.mods)
        elif op.startswith("ds_"):
            self.cls = "ds"
            if op.startswith("ds_read") or op.startswith("ds_bpermute") or op.startswith("ds_permute") or op.startswith("ds_swizzle"):
                self.w = R[0]
                for x in R[1:]: self.r |= x
                if "d16" in op: self.r |= R[0]
            else:
                for x in R: self.r |= x
        elif op.startswith("buffer_") or op.startswith("global_"):
            self.cls = "vmem"
            self.lds = " lds" in (" " + self.mods)
            if "load" in op and not self.lds:
                self.w = R[0]
                for x in R[1:]: self.r |= x
                if "d16" in op: self.r |= R[0]
            else:
                for x in R: self.r |= x
                if self.lds: self.r |= {("x","m0")}
                if "store" in op:
                    self.data = R[0] if op.startswith("buffer_") else R[1]
        elif op.startswith("s_load") or op.startswith("s_memtime") or op.startswith("s_memrealtime") or op.startswith("s_buffer_load"):
            self.cls = "smem"; self.w = R[0]
            for x in R[1:]: self.r |= x
        elif op.startswith("s_"):
            self.cls = "salu"
            if op in ("s_waitcnt","s_nop","s_barrier","s_endpgm","s_branch","s_sleep","s_setprio") or op.startswith("s_cbranch"): pass
            elif op.startswith("s_cmp") or op.startswith("s_bitcmp"):
                for x in R: self.r |= x
            else:
                self.w = R[0]
                for x in R[1:]: self.r |= x
                if "saveexec" in op: self.w |= {("x","exec")}
        else:
            raise ValueError("unknown op " + text)
    def states(self):
        if self.op == "s_nop": return int(self.ops[0], 0) + 1
        return 0 if (self.label or self.directive or not self.op) else 1
def vonly(s): return {x for x in s if x[0] in "va"}
def sonly(s): return {x for x in s if x[0] == "s" or x == ("x","vcc")}
def need(p, c):
    n = 0
    if p.cls == "valu":
        pv = vonly(p.w); ps = sonly(p.w)
        isdot = p.base.startswith("v_dot")
        if c.cls == "mfma" and pv & c.r: n = max(n, 3 if isdot else 2)
        if c.cls == "valu":
            if p.base in TRANS and c.base not in TRANS and pv & c.r: n = max(n, 1)
            if (c.base.startswith("v_permlane") or c.dpp) and pv & c.r: n = max(n, 2)
            if c.base in ("v_readlane_b32","v_readfirstlane_b32") and pv & c.r: n = max(n, 1)
            if ps & c.r:
                n = max(n, 4 if c.base in ("v_readlane_b32","v_writelane_b32") else 2)
            if isdot:
                if c.base == p.base:
                    ab = set()
                    for o in c.ops[1:3]: ab |= regs_of(o)
                    if pv & ab: n = max(n, 3)
                elif pv & (c.r | c.w): n = max(n, 3)
        if isdot and c.cls in ("ds","vmem") and pv & (c.r | c.w): n = max(n, 3)
        if c.cls == "vmem" and ps & c.r: n = max(n, 5)
        if c.cls in ("salu","smem") and ps & c.r: n = max(n, 1)
    elif p.cls == "mfma":
        big = p.passes == 8
        if c.cls == "mfma":
            if p.w & c.ab: n = max(n, 12 if big else 8)
            if p.w & c.srcc and not (p.w == c.srcc and p.passes == c.passes): n = max(n, 10 if big else 6)
            if p.w & c.w and not (p.w & c.srcc): n = max(n, 10 if big else 6)
        elif c.cls in ("valu","ds","vmem"):
            if p.w & (c.r | c.w): n = max(n, 12 if big else 8)
            if c.cls == "valu" and p.srcc & c.w: n = max(n, 7 if big else 3)
    elif p.cls == "salu":
        if ("x","m0") in p.w and c.cls == "vmem" and getattr(c, "lds", False): n = max(n, 1)
    elif p.cls == "vmem":
        if p.data and len(p.data) >= 3 and p.data & c.w: n = max(n, 2)
    return n
class Asm:
    def __init__(self): self.L = []
    def __call__(self, text):
        for line in text.split("\n"):
            line = line.strip()
            if line: self.L.append(Ins(line))
    def label(self, n): self.L.append(Ins(n + ":"))
    def fix(self):
        out = []
        for ins in self.L:
            if ins.op:
                req = 0; dist = 0
                for p in reversed(out):
                    if dist >= 12: break
                    if p.op in ("s_branch", "s_endpgm"): break
                    if p.op:
                        k = need(p, ins) - dist
                        if k > req: req = k
                    dist += p.states()
                if req > 0: out.append(Ins(f"s_nop {req-1}"))
            out.append(ins)
        self.L = out
    def check_edges(self):
        idx = {i.text.split(";")[0].strip()[:-1]: k for k, i in enumerate(self.L) if i.label}
        bad = 0
        for k, b in enumerate(self.L):
            if (b.op == "s_branch" or b.op.startswith("s_cbranch")) and b.op != "s_cbranch_execz":
                t = idx[b.ops[0]]
                tail = []; d = 0
                for p in reversed(self.L[:k+1]):
                    if d >= 12: break
                    if p.op: tail.append((p, d))
                    d += p.states()
                hd = 0
                for c in self.L[t:]:
                    if hd >= 12: break
                    if c.op:
                        for p, dd in tail:
                            if need(p, c) > dd + hd:
                                print("EDGE HAZARD:", p.text, "->", c.text, "need", need(p, c), "have", dd + hd); bad += 1
                        if c.op in ("s_branch","s_endpgm"): break
                    hd += c.states()
        return bad
    def check_waits(self, seq=None):
        vm = []; lg = []; bad = 0
        for ins in (seq or self.L):
            if not ins.op: continue
            if ins.op in ("s_branch", "s_endpgm") and seq is None: vm = []; lg = []; continue
            if ins.op == "s_waitcnt":
                t = ins.text
                m = re.search(r"vmcnt\((\d+)\)", t)
                if m: n = int(m.group(1)); vm = vm[len(vm)-n:] if n < len(vm) else vm; vm = vm if n else []
                m = re.search(r"lgkmcnt\((\d+)\)", t)
                if m:
                    n = int(m.group(1))
                    if n == 0: lg = []
                    else:
                        sm = [x for x in lg if x.cls == "smem"]; dd = [x for x in lg if x.cls != "smem"]
                        lg = sm + (dd[len(dd)-n:] if n < len(dd) else dd)
                continue
            for p in vm + lg:
                if p.w & (ins.r | ins.w) and not (("d16" in ins.op) and ("d16" in p.op) and p.cls == ins.cls):
                    print("WAIT MISSING:", p.text, "->", ins.text); bad += 1
            if ins.cls == "vmem": vm.append(ins)
            if ins.cls in ("ds", "smem"): lg.append(ins)
        return bad
    def path(self, dec):
        idx = {i.text.split(";")[0].strip()[:-1]: k for k, i in enumerate(self.L) if i.label}
        dec = {k: list(v) for k, v in dec.items()}
        seq = []; k = 0
        while True:
            i = self.L[k]
            if i.op: seq.append(i)
            if i.op == "s_endpgm": break
            if i.op == "s_branch" and i.ops[0].startswith("Lchain"): k = idx["Lwret"]; continue
            if i.op == "s_branch": k = idx[i.ops[0]]; continue
            if i.op.startswith("s_cbranch"):
                d = dec.get(i.ops[0])
                if d and d.pop(0): k = idx[i.ops[0]]; continue
            k += 1
        return seq
    def sizes(self):
        import subprocess, tempfile, os
        src = '.amdgcn_target "amdgcn-amd-amdhsa--gfx950"\n.text\nk:\n' + "\n".join(i.text for i in self.L if not i.directive) + "\n"
        open("_sz.s", "w").write(src)
        subprocess.run(["clang", "-x", "assembler", "-target", "amdgcn-amd-amdhsa", "-mcpu=gfx950", "-c", "_sz.s", "-o", "_sz.o"], check=True)
        out = subprocess.run(["llvm-objdump", "-d", "--mcpu=gfx950", "_sz.o"], capture_output=True, text=True).stdout
        sz = []
        for line in out.splitlines():
            m = re.search(r"// ([0-9A-F]{12}): ((?:[0-9A-F]{8} ?)+)", line)
            if m: sz.append(4 * len(m.group(2).split()))
        ins = [i for i in self.L if i.op]
        assert len(sz) == len(ins), (len(sz), len(ins))
        for i, z in zip(ins, sz): i.size = z
    def layout(self, chains):
        self.L = [i for i in self.L if not i.directive]
        tmp = [Ins(f"Lchain_{c}:") for c in chains]
        self.L += tmp; self.sizes(); self.L = self.L[:-len(tmp)] if tmp else self.L
        NOE64 = ("v_readfirstlane_b32", "v_readlane_b32", "v_writelane_b32", "v_dot2c_f32_bf16", "v_permlane16_swap_b32", "v_permlane32_swap_b32", "v_swap_b32", "v_nop")
        L = self.L; out = []; off = 0; nw = nn = 0
        cur = None; padline = -1; pads = {c: [] for c in chains}
        def run8(k):
            run = 0
            for j in L[k:]:
                if not j.op: continue
                if j.size == 8 and j.cls == "valu": run += 1
                elif j.size == 8: pass
                else: break
                if run >= 8: break
            return run
        def canw(p): return p is not None and p.cls == "valu" and p.size == 4 and p.base not in NOE64 and p.op == p.base and not p.dpp
        def widen(p):
            t = p.text.split(None, 1); q = Ins(t[0] + "_e64 " + t[1]); q.size = 8; return q
        def nextop(k):
            for j in L[k:]:
                if j.op: return j
            return None
        for k, i in enumerate(L):
            if i.label:
                t = i.text[:-1]
                if t.startswith("Lwarm_on_"): cur = t.split("_")[2]; continue
                if t.startswith("Lwarm_off"): cur = None; continue
                out.append(i); continue
            need = cur is not None and padline != off // 64
            prev = next((x for x in reversed(out) if x.op), None)
            dead = prev is not None and prev.op in ("s_branch", "s_endpgm") and out[-1] is prev
            def pad(at_end=True):
                nonlocal off, padline
                lab = Ins(f"Lpad_{cur}_{len(pads[cur])}:"); q = Ins("s_cbranch_execz X"); q.size = 4
                pads[cur].append(q); out.append(lab); out.append(q); padline = off // 64; off += 4
            if need:
                n2 = nextop(k + 1)
                last = (off % 64) + i.size >= 64
                if i.op == "s_nop" and i.ops[0] == "0": pad(); continue
                if i.op == "s_nop" :
                    pad(); i = Ins(f"s_nop {int(i.ops[0]) - 1}"); i.size = 4
                elif off % 8 == 4 and i.size == 8: pad()
                elif off % 8 == 0 and i.size == 4 and n2 is not None and n2.size == 8: pad()
                elif last: pad()
            if i.size == 8 and off % 8 == 4:
                r = run8(k)
                p = next((x for x in reversed(out) if x.op), None)
                if canw(p) and r >= 2:
                    out[len(out) - 1 - out[::-1].index(p)] = widen(p); nw += 1; off += 4
                elif r >= 6 and cur is None:
                    q = Ins("s_nop 0"); q.size = 4; out.append(q); nn += 1; off += 4
                if cur is not None and padline != off // 64 and (off % 64) + i.size >= 64: pad()
            out.append(i); off += i.size
        for c, ps in pads.items():
            for n, q in enumerate(ps):
                tgt = f"Lpad_{c}_{n+1}" if n + 1 < len(ps) else chains[c]
                q2 = Ins(f"s_cbranch_execz {tgt}"); q.text = q2.text; q.ops = q2.ops
            idx = next(k for k, x in enumerate(out) if x.label and x.text == f"Lpad_{c}_0:")
            out.insert(idx, Ins(f"Lchain_{c}:"))
        self.L = out
        return nw, nn, {c: len(p) for c, p in pads.items()}, off
    def text(self):
        return "\n".join((i.text if (i.label or i.directive) else "    " + i.text) for i in self.L)
```

```python
import sys, math, struct
sys.path.insert(0, "work")
from asmlib import *
NAME = "parallel_sum__spectral_gfnet__mixer_channel_mlp__prompt_kernel"
DEBUG = "--stamps" in sys.argv
CLK = "s_memtime" if "--cyc" in sys.argv else "s_memrealtime"
def opt(name, default):
    for x in sys.argv:
        if x.startswith("--" + name + "="): return int(x.split("=")[1], 0)
    return default
def f2u(x): return "0x%08x" % struct.unpack("<I", struct.pack("<f", x))[0]

TAG = 0x0
F1, FW, F2, F3, F4 = 0x1000, 0x3000, 0xA000, 0x6000, 0x8000
SB = 0x80000
STAMPS = 0x20000
CS2 = 0x18000
CSB = 0x40000
ZB, WT, YB, HB, PB = 0x100000, 0x300000, 0x500000, 0x800000, 0x1000000
WS_BYTES = 0x1800000
XR = 131072
ST = XR + 8192
ST2 = ST + 8192
ST3 = ST2 + 8192
CT = ST2 + 4096
cFREE, cRWF, cREC = 16, 32, 64
cFULL = 256
WTL = 114688
LDS_BYTES = 163840
SPIN_MAX = opt('spin', 400000)

a = Asm()
sX, sW, sWS, sOUT = "s[4:7]", "s[8:11]", "s[12:15]", "s[16:19]"
sTAG = "s[42:43]"
XCD, IDX, WAVE, R_, JL, HF, RHO, KAP = "s44", "s45", "s46", "s47", "s48", "s49", "s50", "s51"
ONES = "s56"
VCT = 254
G1ST = "--g1st" in sys.argv
incw = [False]
def stamp(i, force=False):
    if G1ST and incw[0] and not force and i not in (2, 3, 15): return
    if DEBUG: a(f"{CLK} s[{70+2*i}:{71+2*i}]")
def dstamp(sreg, lo, hi, base):
    if not DEBUG or "--dst" not in sys.argv: return
    a("s_waitcnt lgkmcnt(0)")
    a(f"{CLK} s[52:53]")
    a("s_waitcnt lgkmcnt(0)")
    for k in range(lo, hi+1):
        i = base + k - lo
        a(f"s_cmp_eq_u32 {sreg}, {k}")
        a(f"s_cselect_b64 s[{70+2*i}:{71+2*i}], s[52:53], s[{70+2*i}:{71+2*i}]")
def dump_stamps(role, wave):
    if not DEBUG: return
    lbl = newlbl("ds")
    a(f"s_cmp_lg_u32 {WAVE}, {wave}")
    a(f"s_cbranch_scc1 {lbl}")
    a("s_waitcnt vmcnt(0) lgkmcnt(0)")
    for i in range(32): a(f"v_mov_b32 v{32+i}, s{70+i}")
    a("v_mov_b32 v2, 0")
    a(f"s_lshl_b32 s57, s2, 7")
    a(f"s_add_u32 s57, s57, {STAMPS + role*0x8000}")
    a("s_mov_b64 exec, 1")
    for i in range(8): a(f"buffer_store_dwordx4 v[{32+4*i}:{35+4*i}], v2, {sWS}, s57 offen offset:{16*i}")
    a("s_mov_b64 exec, -1")
    a.label(lbl)
WARM = opt("warm", 0)
wid = [0]
def warm(c):
    if not WARM: return
    wid[0] += 1
    a.label(f"Lwarm_on_{c}_{wid[0]}" if c is not None else f"Lwarm_off_{wid[0]}")
def vr(b, n): return f"v[{b}:{b+n-1}]"
uid = [0]
def newlbl(p): uid[0] += 1; return f"L{p}{uid[0]}"

cold = []
def flag_store(soff_reg, vtmp):
    a(f"v_mov_b32 v{vtmp}, s42"); a(f"v_mov_b32 v{vtmp+1}, s43"); a(f"v_mov_b32 v{vtmp+2}, 0")
    a("s_mov_b64 exec, 1")
    a(f"buffer_store_dwordx2 {vr(vtmp,2)}, v{vtmp+2}, {sWS}, {soff_reg} offen sc1")
    a("s_mov_b64 exec, -1")
def poll_issue(vaddr, soff, vd, n=2):
    a(f"buffer_load_dwordx{n} {vr(vd,n)}, v{vaddr}, {sWS}, {soff} offen sc1")
def poll_check(vaddr, soff, vd, vmwait, n=2, tags=None, sleep=2):
    again = newlbl("pa"); done = newlbl("pd")
    tags = tags or [n-2]
    def cmp():
        a(f"v_cmp_ne_u64 vcc, {sTAG}, {vr(vd+tags[0],2)}")
        if len(tags) > 1:
            a(f"v_cmp_ne_u64 s[52:53], {sTAG}, {vr(vd+tags[1],2)}")
            a("s_nop 0")
            a("s_or_b64 vcc, vcc, s[52:53]")
        else:
            a("s_nop 0")
            a("s_cmp_lg_u64 vcc, 0")
    a(f"s_waitcnt vmcnt({vmwait})")
    cmp()
    a(f"s_cbranch_scc1 {again}")
    a.label(done)
    def slow():
        lp = newlbl("pl")
        a.label(again)
        a("s_mov_b32 s58, 0")
        a.label(lp)
        a(f"s_sleep {sleep}")
        poll_issue(vaddr, soff, vd, n)
        a("s_add_u32 s58, s58, 1")
        a("s_waitcnt vmcnt(0)")
        a(f"s_cmp_ge_u32 s58, {SPIN_MAX}")
        a(f"s_cbranch_scc1 {done}")
        cmp()
        a(f"s_cbranch_scc1 {lp}")
        a(f"s_branch {done}")
    cold.append(slow)
def lds_spin(vaddr, off, nw, thr, vt, sleep=0):
    lp = newlbl("ls")
    a.label(lp)
    if sleep: a(f"s_sleep {sleep}")
    a({1: f"ds_read_b32 v{vt}, v{vaddr} offset:{off}", 2: f"ds_read2_b32 {vr(vt,2)}, v{vaddr} offset0:{off//4} offset1:{off//4+64}", 4: f"ds_read_b128 {vr(vt,4)}, v{vaddr} offset:{off}", 6: f"ds_read_b128 {vr(vt,4)}, v{vaddr} offset:{off}"}[nw])
    if nw == 6: a(f"ds_read_b64 {vr(vt+4,2)}, v{vaddr} offset:{off+16}")
    a("s_waitcnt lgkmcnt(0)")
    if nw == 2: a(f"v_min_u32 v{vt}, v{vt}, v{vt+1}")
    if nw == 4: a(f"v_min3_u32 v{vt}, v{vt}, v{vt+1}, v{vt+2}"); a(f"v_min_u32 v{vt}, v{vt}, v{vt+3}")
    if nw == 6: a(f"v_min3_u32 v{vt}, v{vt}, v{vt+1}, v{vt+2}"); a(f"v_min3_u32 v{vt+3}, v{vt+3}, v{vt+4}, v{vt+5}"); a(f"v_min_u32 v{vt}, v{vt}, v{vt+3}")
    a(f"v_readfirstlane_b32 s58, v{vt}")
    a("s_add_u32 s55, s55, 1")
    a("s_lshr_b32 s54, s55, 24")
    a("s_lshl_b32 s54, s54, 8")
    a("s_or_b32 s58, s58, s54")
    a(f"s_cmp_lt_u32 s58, {thr}")
    a(f"s_cbranch_scc1 {lp}")

def lds_check(vflag, thr, vaddr, off, nw, pre=None, post=None, enter=None, sleep=1):
    slow_l = newlbl("cs"); back = newlbl("cb")
    a(f"v_readfirstlane_b32 s58, v{vflag}")
    if pre: pre()
    a(f"s_cmp_lt_u32 s58, {thr}")
    a(f"s_cbranch_scc1 {slow_l}")
    a.label(back)
    def slow():
        a.label(slow_l)
        if enter: enter()
        lds_spin(vaddr, off, nw, thr, vflag, sleep=sleep)
        if post: post()
        a(f"s_branch {back}")
    cold.append(slow)


FT = 8
def Fre(o, t): return vr(FT + (2*o+t)*6 + 2, 4)
def Fim(o, t): return vr(FT + (2*o+t)*6, 4)
def Fx(ri, o, t): return Fre(o, t) if ri == 0 else Fim(o, t)
H16 = "s59"
MASKHI = "s3"
JG = "s62"
WSOFF = opt("wsoff", 0)
def wsadj():
    if WSOFF: a(f"s_add_u32 s40, s40, {WSOFF}"); a("s_addc_u32 s41, s41, 0")
def tag_fix(): a("s_add_u32 s42, s42, 0x9e3779b9"); a("s_addc_u32 s43, s43, 0x7f4a7c15")
def gen_fm_fn(e, FM, FN, c, g4, t0, t1):
    e(f"v_and_b32 v{c}, 15, v0")
    e(f"v_lshrrev_b32 v{g4}, 4, v0"); e(f"v_lshlrev_b32 v{g4}, 2, v{g4}")
    if FN is not None:
        e(f"v_add_u32 v{t0}, {H16}, v{c}"); e(f"v_xor_b32 v{t1}, 16, v{t0}")
        e(f"v_cvt_f32_u32 v{FN}, v{t0}"); e(f"v_cvt_f32_u32 v{FN+1}, v{t1}")
    e(f"v_add_u32 v{t0}, {H16}, v{g4}"); e(f"v_xor_b32 v{t1}, 16, v{t0}")
    e(f"v_cvt_f32_u32 v{FM}, v{t0}"); e(f"v_cvt_f32_u32 v{FM+4}, v{t1}")
    for t in range(2):
        e(f"v_add_f32 v{FM+4*t+1}, 1.0, v{FM+4*t}"); e(f"v_add_f32 v{FM+4*t+2}, 2.0, v{FM+4*t}"); e(f"v_add_f32 v{FM+4*t+3}, 1.0, v{FM+4*t+2}")
def gen_mat(dst, vn, vm, tmp):
    for e in range(4): a(f"v_mul_f32 v{tmp+e}, v{vn}, v{vm+e}")
    for e in range(4): a(f"v_cos_f32 v{tmp+4+e}, v{tmp+e}")
    for e in range(4): a(f"v_sin_f32 v{tmp+e}, v{tmp+e}")
    a(f"v_cvt_pk_bf16_f32 v{dst+2}, v{tmp+4}, v{tmp+5}"); a(f"v_cvt_pk_bf16_f32 v{dst+3}, v{tmp+6}, v{tmp+7}")
    a(f"v_cvt_pk_bf16_f32 v{dst+4}, v{tmp}, v{tmp+1}"); a(f"v_cvt_pk_bf16_f32 v{dst+5}, v{tmp+2}, v{tmp+3}")
    a(f"v_xor_b32 v{dst}, 0x80008000, v{dst+4}"); a(f"v_xor_b32 v{dst+1}, 0x80008000, v{dst+5}")
def gen_tw(e, dc, ds, vn, vm, n):
    for k in range(n): e(f"v_mul_f32 v{ds+k}, v{vn}, v{vm+k}")
    for k in range(n): e(f"v_cos_f32 v{dc+k}, v{ds+k}")
    for k in range(n): e(f"v_sin_f32 v{ds+k}, v{ds+k}")
def gen_zaddr(e, dst, sbase, c, g4, t):
    e(f"v_add_u32 v{t}, {H16}, v{c}")
    e(f"v_lshl_add_u32 v{t}, v{g4}, 5, v{t}")
    e(f"v_xor_b32 v{t+1}, 16, v{t}")
    e(f"v_lshrrev_b32 v{t+3}, 5, v0")
    e(f"v_lshlrev_b32 v{t+2}, 6, v{t+3}"); e(f"v_sub_u32 v{t+2}, 32, v{t+2}")
    e(f"v_mul_u32_u24 v{t+3}, 0x4004, v{t+3}")
    for o in range(2): e(f"v_mad_i32_i24 v{dst+4*o}, v{t+o}, v{t+2}, v{t+3}")
    e(f"v_lshlrev_b32 v{t+2}, 5, v{t+2}")
    for o in range(2): e(f"v_add3_u32 v{dst+4*o+1}, v{dst+4*o}, v{t+2}, {sbase}")
    for o in range(2):
        for r in range(2, 4): e(f"v_add_u32 v{dst+4*o+r}, v{dst+4*o+r-1}, v{t+2}")
    for o in range(2): e(f"v_and_b32 v{dst+4*o}, 0x1fff, v{dst+4*o}")
    for o in range(2): e(f"v_add_u32 v{dst+4*o}, {sbase}, v{dst+4*o}")
def twiddle(e, re, im, c, s, n, tmp, conj):
    for p in range(0, n, 2):
        e(f"v_pk_mul_f32 {vr(tmp+p,2)}, {vr(im+p,2)}, {vr(s+p,2)}")
        e(f"v_pk_mul_f32 {vr(tmp+n+p,2)}, {vr(re+p,2)}, {vr(s+p,2)}")
    ng = " neg_lo:[0,0,1] neg_hi:[0,0,1]"
    for p in range(0, n, 2):
        e(f"v_pk_fma_f32 {vr(tmp+p,2)}, {vr(re+p,2)}, {vr(c+p,2)}, {vr(tmp+p,2)}" + (ng if conj else ""))
        e(f"v_pk_fma_f32 {vr(tmp+n+p,2)}, {vr(im+p,2)}, {vr(c+p,2)}, {vr(tmp+n+p,2)}" + ("" if conj else ng))
def packfrag(e, dst, lo, hi):
    e(f"v_cvt_pk_bf16_f32 v{dst}, v{lo}, v{lo+1}"); e(f"v_cvt_pk_bf16_f32 v{dst+1}, v{lo+2}, v{lo+3}")
    e(f"v_cvt_pk_bf16_f32 v{dst+2}, v{hi}, v{hi+1}"); e(f"v_cvt_pk_bf16_f32 v{dst+3}, v{hi+2}, v{hi+3}")

a("s_load_dwordx16 s[20:35], s[0:1], 0")
a("s_load_dwordx2 s[40:41], s[0:1], 80")
a("s_load_dwordx2 s[36:37], s[0:1], 64")
if DEBUG:
    a(f"{CLK} s[70:71]")
    for i in range(72, 102, 2): a(f"s_mov_b64 s[{i}:{i+1}], 0")
a("s_cmp_ge_u32 s2, 256")
a("s_cbranch_scc1 Lend")
a("s_getpc_b64 s[52:53]")
a.label("Lpc")
a("v_lshrrev_b32 v2, 6, v0")
a("v_and_b32 v0, 63, v0")
a(f"s_and_b32 {XCD}, s2, 7")
a(f"v_readfirstlane_b32 {WAVE}, v2")
a(f"s_lshr_b32 {IDX}, s2, 3")
a(f"s_and_b32 {R_}, {IDX}, 3")
a("s_mov_b32 s54, Lcode_end-Lpc")
a("s_mov_b32 s55, 0x20000")
a(f"s_cmp_lg_u32 {WAVE}, 7")
a("s_cbranch_scc1 Lnopf")
a("v_lshlrev_b32 v2, 7, v0")
a(f"s_lshl_b32 s57, {R_}, 13")
a("buffer_load_dword v255, v2, s[52:55], s57 offen")
a.label("Lnopf")
a("v_lshlrev_b32 v1, 4, v0")
a(f"s_lshr_b32 {JL}, {IDX}, 2")
a(f"s_and_b32 {HF}, {XCD}, 1")
a(f"s_and_b32 s57, {XCD}, 6")
a(f"s_lshl_b32 s57, s57, 1")
a(f"s_add_u32 {R_}, {R_}, s57")
a(f"s_lshl_b32 {RHO}, {R_}, 4"); a(f"s_add_u32 {RHO}, {RHO}, {JL}"); a(f"s_lshl_b32 s57, {HF}, 3"); a(f"s_add_u32 {RHO}, {RHO}, s57")
a("s_mov_b32 s11, 0x20000")
a(f"s_mul_i32 {JG}, {HF}, 7"); a(f"s_add_u32 {JG}, {JG}, {JL}")
a(f"v_mov_b32 v{VCT}, {CT}")
a(f"s_and_b32 s57, {WAVE}, 6")
a("s_cmp_eq_u32 s57, 4")
a("s_cbranch_scc1 Lloader")
a(f"s_lshl_b32 {KAP}, {XCD}, 5")
a(f"s_add_u32 {KAP}, {KAP}, {IDX}")
a(f"s_mov_b32 s14, {WS_BYTES}"); a("s_mov_b32 s15, 0x20000")
a(f"s_mov_b32 {MASKHI}, 0xffff0000")
a(f"s_cmp_ge_u32 {WAVE}, 4")
a("s_cbranch_scc1 Lawld")
a(f"s_lshr_b32 s57, {RHO}, 5"); a("s_lshl_b32 s57, s57, 7"); a(f"s_and_b32 s58, {RHO}, 31"); a("s_add_u32 s57, s57, s58")
a(f"s_lshl_b32 s58, {WAVE}, 5"); a("s_add_u32 s57, s57, s58"); a("s_lshl_b32 s57, s57, 10")
a(f"s_lshl_b32 s61, {WAVE}, 11"); a(f"s_add_u32 s61, s61, {XR}")
a("s_mov_b32 m0, s61")
a("s_add_u32 s58, s57, 0xffc00")
a("s_mov_b32 s10, 2097152")
a("v_mov_b64 v[4:5], 0"); a("v_mov_b64 v[6:7], 0"); a(f"v_add_u32 v3, v1, v{VCT}")
a("ds_write_b128 v3, v[4:7]")
a("s_waitcnt lgkmcnt(0)")
a("s_mov_b32 s8, s20"); a("s_mov_b32 s9, s21")
for k in range(2): a(f"buffer_load_dwordx4 v1, {sW}, s{57+k} offen offset:{1024*k} lds")
wsadj()
a(f"s_load_dwordx2 {sTAG}, s[40:41], {TAG}")
a("s_barrier")
a("s_branch Lcw")
a.label("Lawld")
RR = "s63"
B1V = 218; VAW = 219; T0 = 220
a(f"s_and_b32 {RR}, {WAVE}, 1")
a("s_waitcnt lgkmcnt(0)")
wsadj()
if opt("ftouch", 1):
    a("s_mov_b32 s12, s40"); a("s_mov_b32 s13, s41")
    a(f"s_lshl_b32 s57, s2, 1"); a(f"s_add_u32 s57, s57, {RR}"); a("s_lshl_b32 s57, s57, 7")
    a("v_mov_b32 v4, 0")
    a(f"buffer_load_dword v253, v4, {sWS}, s57 offen sc1")
a(f"s_load_dwordx2 {sTAG}, s[40:41], {TAG}")
a("s_barrier")
a("s_branch Law")

a.label("Lloader")
a(f"s_and_b32 s57, {WAVE}, 1"); a("s_lshl_b32 s56, s57, 14")
a("s_lshl_b32 s38, s57, 8"); a(f"s_add_u32 s38, s38, {CT+cFULL}")
a("s_mov_b64 s[16:17], s[52:53]"); a("s_mov_b32 s18, s54"); a("s_mov_b32 s19, 0x20000")
a("v_mov_b32 v17, Ltab-Lpc")
a(f"s_mov_b32 s14, {WS_BYTES}"); a("s_mov_b32 s15, 0x20000")
a(f"s_cmp_eq_u32 {JL}, 7")
a("s_cbranch_scc1 Lhelper_loader")
a(f"s_and_b32 s63, {IDX}, 3"); a("s_lshl_b32 s63, s63, 1"); a(f"s_add_u32 s63, s63, {JL}")
a(f"s_bfe_u32 s57, {XCD}, 0x10001"); a("s_add_u32 s63, s63, s57")
a(f"s_lshl_b32 s57, {HF}, 2"); a("s_add_u32 s63, s63, s57"); a("s_and_b32 s63, s63, 7")
a("s_mov_b32 s64, 8"); a("s_mov_b32 s65, 1"); a("s_mov_b32 s66, 0")
a(f"s_cmp_eq_u32 {WAVE}, 5")
a("s_cbranch_scc1 Lld_w")
a("v_lshrrev_b32 v6, 4, v0")
a("v_bfe_u32 v7, v0, 3, 1")
a("v_lshlrev_b32 v7, 20, v7")
a("v_lshl_add_u32 v7, v6, 15, v7")
a("v_and_b32 v8, 7, v0")
a("v_xor_b32 v8, v8, v6")
a("v_lshl_add_u32 v2, v8, 4, v7")
a("v_xor_b32 v3, 64, v2")
a("v_mov_b32 v4, v2"); a("v_mov_b32 v5, v3")
a(f"s_lshr_b32 s59, {R_}, 1"); a("s_lshl_b32 s59, s59, 17")
a(f"s_and_b32 s57, {R_}, 1"); a("s_lshl_b32 s57, s57, 14"); a("s_add_u32 s59, s59, s57")
a("s_mov_b32 s60, 128"); a("s_mov_b32 s61, 4096")
a("s_mov_b32 s10, 2097152")
a("s_waitcnt lgkmcnt(0)")
a("s_mov_b32 s8, s20"); a("s_mov_b32 s9, s21")
a("s_branch Lld_go")
a.label("Lld_w")
a("v_bfe_u32 v6, v0, 2, 2")
a("v_mul_u32_u24 v6, 3584, v6")
a("v_lshrrev_b32 v7, 4, v0")
a("v_lshl_add_u32 v6, v7, 6, v6")
a("v_and_b32 v7, 3, v0")
a("v_lshl_add_u32 v2, v7, 4, v6")
for j in range(1, 4): a(f"v_add_u32 v{2+j}, {j*(4*3584-1024)}, v2")
a(f"s_lshl_b32 s59, {JG}, 8")
a(f"s_mov_b32 s60, {64*3584}"); a(f"s_mov_b32 s61, {16*3584}")
a("s_mov_b32 s10, 1835008")
a("s_waitcnt lgkmcnt(0)")
a("s_mov_b32 s8, s28"); a("s_mov_b32 s9, s29")
a.label("Lld_go")
wsadj()
a("s_barrier")
stamp(1)
def grp(first=False):
    if not first:
        a("s_add_u32 s68, s68, 4096"); a("s_mov_b32 m0, s68"); a("s_add_u32 s67, s67, s61")
    for j in range(4): a(f"buffer_load_dwordx4 v{2+j}, {sW}, s67 offen offset:{1024*j} lds")
def issue():
    a("s_mul_i32 s67, s63, s60"); a("s_and_b32 s68, s66, 3"); a("s_lshl_b32 s68, s68, 15"); a("s_add_u32 s68, s68, s56")
    a("s_mov_b32 m0, s68"); a("s_add_u32 s67, s67, s59")
    grp(True)
    a("s_add_u32 s63, s63, s65"); a("s_sub_u32 s57, s63, s64"); a("s_cmp_ge_u32 s63, s64"); a("s_cselect_b32 s63, s57, s63")
    grp()
    a("s_add_u32 s66, s66, 1"); a("s_lshl_b32 s39, s66, 2")
    grp(); grp()
def dflag(val):
    a("s_mov_b32 m0, s38"); a("s_nop 0")
    a(f"buffer_load_dword v17, {sOUT}, {val} offen lds")
a.label("Lld_issue")
issue()
dflag("s39")
a("s_cmp_lt_u32 s66, 4")
a("s_cbranch_scc1 Lld_issue")
a("s_cmp_eq_u32 s66, 4")
a("s_cbranch_scc1 Lld_pf")
a("s_cmp_eq_u32 s66, 8")
a("s_cbranch_scc1 Lld_tail")
a("s_barrier")
a("s_branch Lld_issue")
a.label("Lld_pf")
a("v_min_u32 v9, 31, v0"); a("v_lshlrev_b32 v9, 7, v9")
a(f"s_mul_i32 s57, {XCD}, 28"); a(f"s_add_u32 s57, s57, {IDX}")
a("s_lshl_b32 s58, s57, 13"); a("s_lshr_b32 s57, s56, 2"); a("s_add_u32 s58, s58, s57")
a("s_mov_b32 s4, s32"); a("s_mov_b32 s5, s33"); a("s_mov_b32 s6, 1835008"); a("s_mov_b32 s7, 0x20000")
if opt("npf", 1): a(f"buffer_load_dword v27, v9, {sX}, s58 offen")
a(f"s_load_dwordx2 {sTAG}, s[40:41], {TAG}")
a("s_barrier")
a("s_branch Lld_issue")
a.label("Lld_tail")
stamp(2)
a("s_mov_b32 s12, s40"); a("s_mov_b32 s13, s41")
a(f"s_lshr_b32 s57, s56, 4")
a(f"s_lshl_b32 {KAP}, {XCD}, 5"); a(f"s_add_u32 {KAP}, {KAP}, {IDX}")
a(f"s_lshr_b32 s3, {KAP}, 7"); a("s_lshl_b32 s3, s3, 11"); a("s_add_u32 s3, s3, s57"); a(f"s_add_u32 s3, s3, {F1}")
a("v_bfe_u32 v7, v0, 2, 2"); a("v_lshlrev_b32 v7, 10, v7")
a("v_lshrrev_b32 v16, 5, v0"); a("v_lshl_add_u32 v7, v16, 12, v7")
a("v_bfe_u32 v6, v0, 4, 1"); a("v_lshl_add_u32 v7, v6, 6, v7")
a("v_and_b32 v6, 3, v0"); a("v_lshl_add_u32 v2, v6, 4, v7")
for j in range(1, 4): a(f"v_add_u32 v{2+j}, {j*(8192-1024)}, v2")
a("s_mov_b32 s8, s32"); a("s_mov_b32 s9, s33"); a("s_mov_b32 s10, 1835008")
a(f"s_mul_i32 s59, {HF}, {896*1024}")
a(f"s_lshl_b32 s58, {JL}, 7"); a("s_add_u32 s59, s59, s58")
a(f"s_mov_b32 s60, {128*1024}"); a(f"s_mov_b32 s61, {32*1024}")
a(f"s_and_b32 s63, {IDX}, 3"); a("s_lshl_b32 s63, s63, 1"); a(f"s_add_u32 s63, s63, {JL}"); a(f"s_and_b32 s57, {WAVE}, 1"); a("s_add_u32 s63, s63, s57")
for _ in range(2): a("s_sub_u32 s57, s63, 7"); a("s_cmp_ge_u32 s63, 7"); a("s_cselect_b32 s63, s57, s63")
a("s_mov_b32 s64, 7"); a("s_mov_b32 s65, 2")
a("v_lshlrev_b32 v16, 5, v16"); a("v_bfe_u32 v6, v0, 1, 4"); a("v_add_u32 v16, v16, v6")
a("v_lshlrev_b32 v16, 13, v16"); a("v_and_b32 v6, 1, v0"); a("v_lshl_add_u32 v16, v6, 4, v16")
a("s_lshl_b32 s20, s56, 6"); a(f"s_lshl_b32 s58, {KAP}, 5"); a("s_add_u32 s20, s20, s58"); a(f"s_add_u32 s20, s20, {ZB}")
a("v_and_b32 v15, 31, v0"); a("v_lshlrev_b32 v15, 3, v15")
a(f"s_lshr_b32 s26, {KAP}, 6"); a("s_lshl_b32 s26, s26, 8"); a(f"s_add_u32 s26, s26, {FW}")
a("s_waitcnt lgkmcnt(0)")
tag_fix()
a("s_barrier")
a.label("Lld_w2")
issue()
a("s_cmp_lg_u32 s66, 9")
a("s_cbranch_scc1 Lld_noe")
a(f"s_lshr_b32 s57, s56, 4")
a(f"s_lshl_b32 s58, {R_}, 11"); a("s_add_u32 s58, s58, s57"); a(f"s_add_u32 s58, s58, {SB}")
a(f"s_add_u32 s68, s57, {ST3}"); a("s_mov_b32 m0, s68")
a(f"s_add_u32 s67, s58, {0x8000-2048}")
a(f"buffer_load_dwordx4 v1, {sWS}, s58 offen sc1 lds")
a(f"buffer_load_dwordx4 v1, {sWS}, s67 offen offset:2048 sc1 lds")
a("s_add_u32 s68, s68, 4096"); a("s_mov_b32 m0, s68")
a(f"s_lshl_b32 s58, {JG}, 11"); a("s_add_u32 s58, s58, s57"); a(f"s_add_u32 s58, s58, {CS2}")
a(f"buffer_load_dwordx4 v1, {sWS}, s58 offen sc1 lds")
dflag(36)
poll_issue(1, "s3", 8, 4)
a.label("Lld_noe")
a("s_cmp_lg_u32 s66, 10")
a("s_cbranch_scc1 Lld_noz")
poll_check(1, "s3", 8, 16, 4, tags=[0, 2], sleep=8)
a("s_lshr_b32 s68, s56, 3"); a(f"s_add_u32 s68, s68, {ST}")
for k in range(4):
    a(f"s_add_u32 m0, s68, {1024*(k>>1) + 4096*(k&1)}")
    a(f"s_add_u32 s57, s20, {(16*(k>>1) + 64*(k&1))*8192}")
    a(f"buffer_load_dwordx4 v16, {sWS}, s57 offen sc1 lds")
dflag(40)
stamp(3)
a.label("Lld_noz")
a("s_cmp_eq_u32 s66, 12")
a("s_cbranch_scc1 Lld_done")
a("s_sub_u32 s39, s66, 3")
a(f"s_add_u32 s57, s66, {WAVE}")
a("s_cmp_lg_u32 s57, 16")
a("s_cbranch_scc1 Lld_nx")
poll_issue(15, "s26", 12, 2)
lds_spin(VCT, cFREE, 4, "s39", 20, sleep=1)
poll_check(15, "s26", 12, 0, 2, sleep=8)
a(f"s_lshl_b32 s67, {KAP}, 13"); a(f"s_add_u32 s67, s67, {WT}")
for g in range(2):
    a(f"s_mov_b32 m0, {WTL + 4096*g}"); a("s_nop 0")
    for j in range(4): a(f"buffer_load_dwordx4 v1, {sWS}, s67 offen offset:{1024*j} sc1 lds")
    if g == 0: a("s_add_u32 s67, s67, 4096")
dflag(44)
a("s_branch Lld_done")
a.label("Lld_nx")
lds_spin(VCT, cFREE, 4, "s39", 20, sleep=1)
a("s_branch Lld_w2")
a.label("Lld_done")
stamp(5)
a("s_barrier")
a("s_barrier")
a("s_waitcnt vmcnt(0) lgkmcnt(0)")
stamp(4)
dump_stamps(1, 4)
dump_stamps(3, 5)
a("s_endpgm")
def helper_loader():
    a.label("Lhelper_loader")
    a(f"s_lshl_b32 s67, {XCD}, 2"); a(f"s_and_b32 s57, {IDX}, 3"); a("s_add_u32 s67, s67, s57")
    a("s_mul_i32 s67, s67, 32896")
    a("s_mov_b32 s10, 1052672")
    a(f"s_cmp_eq_u32 {WAVE}, 5")
    a("s_cselect_b32 s68, 36864, 0")
    a("s_waitcnt lgkmcnt(0)")
    a("s_cselect_b32 s8, s24, s22"); a("s_cselect_b32 s9, s25, s23")
    wsadj()
    a("s_barrier")
    a(f"s_load_dwordx2 {sTAG}, s[40:41], {TAG}")
    stamp(1)
    a("s_mov_b32 s69, 9")
    a.label("Lig2")
    a("s_mov_b32 m0, s68")
    a("s_add_u32 s68, s68, 4096")
    for j in range(4): a(f"buffer_load_dwordx4 v1, {sW}, s67 offen offset:{1024*j} lds")
    a("s_add_u32 s67, s67, 4096")
    a("s_sub_u32 s69, s69, 1")
    a("s_cmp_lg_u32 s69, 0")
    a("s_cbranch_scc1 Lig2")
    dflag(4)
    lds_spin(VCT, cFREE, 4, 8, 20, sleep=4)
    a("s_mov_b32 s66, 8")
    a("s_branch Lld_tail")
helper_loader()

a.label("Law")
if WARM:
    a("s_mov_b64 exec, 0")
    a(f"s_cmp_eq_u32 {RR}, 0")
    a("s_cbranch_scc1 Lchain_0")
    a("s_branch Lchain_1")
    a.label("Lwret")
    a("s_mov_b64 exec, -1")
    stamp(11)
a("s_setprio 1")
a("s_mov_b32 s12, s40"); a("s_mov_b32 s13, s41")
RC = 72
a(f"s_lshl_b32 s60, {RR}, 12"); a(f"s_add_u32 s64, s60, {ST3}"); a("v_add_u32 v7, s64, v1")
a(f"s_lshl_b32 s66, {RHO}, 13"); a("s_add_u32 s66, s66, s60"); a(f"s_add_u32 s66, s66, {ZB}")
a(f"s_lshl_b32 s60, {RR}, 11"); a(f"s_lshl_b32 s58, {RHO}, 3"); a("s_add_u32 s60, s60, s58"); a(f"s_add_u32 s60, s60, {F1}")
a("v_and_b32 v5, 7, v0"); a(f"v_lshl_add_u32 v6, v5, 3, v{VCT}")
a(f"s_lshl_b32 s67, {RHO}, 7"); a(f"s_lshl_b32 s58, {RR}, 15"); a("s_add_u32 s67, s67, s58"); a(f"s_add_u32 s67, s67, {SB}")
a("s_waitcnt lgkmcnt(0)")
tag_fix()
a(f"v_mov_b32 v{RC+2}, s42"); a(f"v_mov_b32 v{RC+3}, s43")
stamp(2)
lds_spin(VCT, cRWF, 4, 1, 20, sleep=1)
STV = 100; EB = 104; KC = 108; t = 112
a(f"ds_read_b64 {vr(STV,2)}, v6 offset:{cREC}")
C0 = -2*math.sqrt(2/math.pi)*math.log2(math.e); C1 = C0*0.044715
a(f"v_mov_b32 v{EB+3}, s42")
a("s_waitcnt lgkmcnt(0)")
a(f"v_rcp_f32 v{KC+2}, v{STV+1}")
a(f"v_mul_f32 v{KC}, v{STV+1}, v{STV+1}")
a(f"v_cvt_pk_bf16_f32 v{EB+1}, v{STV}, v{KC+2}")
a(f"v_mul_f32 v{KC+1}, {f2u(C0)}, v{STV+1}"); a(f"v_mul_f32 v{KC}, v{KC}, v{STV+1}")
a(f"v_lshlrev_b32 v{t+1}, 16, v{EB+1}"); a(f"v_and_b32 v{t+2}, {MASKHI}, v{EB+1}")
a(f"v_sub_f32 v{t+1}, v{STV}, v{t+1}"); a(f"v_sub_f32 v{t+2}, v{KC+2}, v{t+2}")
a(f"v_mul_f32 v{KC}, {f2u(C1)}, v{KC}")
a(f"v_cvt_pk_bf16_f32 v{EB}, v{STV}, v{t+1}"); a(f"v_cvt_pk_bf16_f32 v{EB+2}, v{t+2}, 0")
a(f"s_cmp_eq_u32 {RR}, 0"); a("s_cselect_b64 vcc, 0, -1")
for k in range(3): a(f"v_cndmask_b32 v{EB+k}, v{EB+k}, v{KC+k}, vcc")
lds_spin(VCT, cRWF, 4, 2, 20, sleep=1)
for k in range(4): a(f"ds_read_b128 {vr(80+4*k,4)}, v7 offset:{1024*k}")
stamp(3)
ZFIRST = opt("zfirst", 1)
def zstores():
    a("s_mov_b64 exec, 0xff")
    a(f"buffer_store_dwordx4 {vr(EB,4)}, v1, {sWS}, s67 offen sc1")
    a("s_mov_b64 exec, -1")
    a("s_waitcnt lgkmcnt(0)")
    for k in range(4): a(f"buffer_store_dwordx4 {vr(80+4*k,4)}, v1, {sWS}, s66 offen offset:{1024*k} sc1")
    stamp(5)
if ZFIRST: zstores()
a(f"s_cmp_eq_u32 {JL}, 7")
a("s_cbranch_scc1 Law_nocs")
a("v_lshrrev_b32 v4, 5, v0"); a("v_lshlrev_b32 v4, 9, v4"); a("v_add_u32 v4, v4, v1")
a(f"s_lshr_b32 s57, {XCD}, 2"); a("s_lshl_b32 s57, s57, 13"); a(f"s_lshl_b32 s58, {RR}, 9"); a("s_add_u32 s57, s57, s58"); a("s_add_u32 s57, s57, 16384")
a("v_add_u32 v4, s57, v4")
a(f"s_lshl_b32 s68, {JG}, 14"); a("s_add_u32 s68, s68, s58"); a(f"s_add_u32 s68, s68, {CSB}")
a(f"s_lshl_b32 s58, {R_}, 10"); a("s_add_u32 s68, s68, s58")
lds_spin(VCT, cFULL+256, 1, 1, 20, sleep=1)
for n in range(4): a(f"ds_read_b128 {vr(176+4*n,4)}, v4 offset:{2048*n}")
a("v_and_b32 v5, 4, v0"); a("v_cmp_eq_u32 vcc, 0, v5")
a("v_and_b32 v4, 3, v0"); a("v_lshlrev_b32 v4, 6, v4"); a("v_lshl_add_u32 v4, v5, 2, v4")
a("v_and_b32 v5, 16, v0"); a("v_lshl_add_u32 v4, v5, 4, v4"); a("v_and_b32 v5, 32, v0"); a("v_add_u32 v4, v4, v5")
a("s_waitcnt lgkmcnt(0)")
for k in range(16):
    a(f"v_lshlrev_b32 v{112+2*k}, 16, v{176+k}"); a(f"v_and_b32 v{113+2*k}, {MASKHI}, v{176+k}")
for k in range(8): a(f"v_pk_add_f32 {vr(112+2*k,2)}, {vr(112+2*k,2)}, {vr(128+2*k,2)}")
for k in range(4): a(f"v_pk_add_f32 {vr(112+2*k,2)}, {vr(112+2*k,2)}, {vr(120+2*k,2)}")
for k in range(4): a(f"v_permlane32_swap_b32 v{112+k}, v{116+k}")
for k in range(4): a(f"v_add_f32 v{112+k}, v{112+k}, v{116+k}")
for sh in (8, 4):
    for k in range(4): a(f"v_add_f32_dpp v{112+k}, v{112+k}, v{112+k} row_ror:{sh} row_mask:0xf bank_mask:0xf")
a(f"v_cndmask_b32 v{RC}, v114, v112, vcc"); a(f"v_cndmask_b32 v{RC+1}, v115, v113, vcc")
stamp(4)
AWF = opt("awf", 0)
if AWF: lds_spin(VCT, cFULL, 2, AWF, 20, sleep=1)
a("s_mov_b32 exec_lo, 0x00ff00ff"); a("s_mov_b32 exec_hi, 0x00ff00ff")
a(f"buffer_store_dwordx4 {vr(RC,4)}, v4, {sWS}, s68 offen sc1")
a("s_mov_b64 exec, -1")
a.label("Law_nocs")
if not ZFIRST: zstores()
a(f"s_cmp_eq_u32 {JL}, 7")
a("s_cbranch_scc1 Law_nob")
for _ in range(opt("awb", 1)): a("s_barrier")
a.label("Law_nob")
a("s_waitcnt vmcnt(0)")
flag_store("s60", T0)
stamp(6)
a(f"s_cmp_eq_u32 {JL}, 7")
a("s_cbranch_scc1 Law_h")
a.label("Law_end")
dump_stamps(2, 6)
a("s_endpgm")
def aw_helper(RC=72):
    a.label("Law_h")
    a(f"s_lshl_b32 s65, {XCD}, 2"); a(f"s_and_b32 s58, {IDX}, 3"); a("s_add_u32 s65, s65, s58")
    a(f"s_lshl_b32 s58, {RR}, 5"); a("s_add_u32 s58, s58, s65")
    a("s_cmp_ge_u32 s58, 28")
    a("s_cbranch_scc1 Law_end")
    a("s_mov_b32 s8, s30"); a("s_mov_b32 s9, s31"); a("s_mov_b32 s10, 3584")
    a("v_and_b32 v6, 31, v0"); a("v_lshlrev_b32 v6, 2, v6"); a("v_lshrrev_b32 v5, 5, v0"); a("v_lshl_add_u32 v6, v5, 1, v6")
    a("s_lshl_b32 s58, s65, 7")
    a(f"buffer_load_ushort v{B1V}, v6, {sW}, s58 offen")
    a("v_lshlrev_b32 v6, 3, v6")
    a("v_lshlrev_b32 v4, 9, v5"); a("v_add_u32 v4, v4, v1")
    a("s_lshr_b32 s68, s65, 1"); a("s_lshl_b32 s68, s68, 14"); a("s_and_b32 s58, s65, 1"); a("s_lshl_b32 s58, s58, 9"); a("s_add_u32 s68, s68, s58"); a(f"s_add_u32 s68, s68, {CSB}")
    a("s_lshl_b32 s65, s65, 10"); a(f"s_add_u32 s65, s65, {CS2}")
    a("s_mov_b32 s66, 0")
    CV = 128
    a.label("Lcs_again")
    a("s_sleep 16")
    for n in range(8):
        a(f"s_add_u32 s57, s68, {2048*n}")
        a(f"buffer_load_dwordx4 {vr(CV+4*n,4)}, v4, {sWS}, s57 offen sc1")
    a("s_add_u32 s66, s66, 1")
    a("s_waitcnt vmcnt(0)")
    a(f"s_cmp_ge_u32 s66, {SPIN_MAX}")
    a("s_cbranch_scc1 Lcs_ok")
    for n in range(8): a(f"v_cmp_ne_u64 s[{20+2*n}:{21+2*n}], {sTAG}, {vr(CV+4*n+2,2)}")
    for n in range(1, 8): a(f"s_or_b64 s[20:21], s[20:21], s[{20+2*n}:{21+2*n}]")
    a("s_cbranch_scc1 Lcs_again")
    a.label("Lcs_ok")
    for n in range(4): a(f"v_pk_add_f32 {vr(CV+4*n,2)}, {vr(CV+4*n,2)}, {vr(CV+16+4*n,2)}")
    for n in range(2): a(f"v_pk_add_f32 {vr(CV+4*n,2)}, {vr(CV+4*n,2)}, {vr(CV+8+4*n,2)}")
    a(f"v_pk_add_f32 {vr(CV,2)}, {vr(CV,2)}, {vr(CV+4,2)}")
    a(f"v_permlane32_swap_b32 v{CV}, v{CV+1}")
    a(f"v_add_f32 v96, v{CV}, v{CV+1}")
    a(f"v_cvt_pk_bf16_f32 v{RC}, v96, v96")
    a(f"v_and_b32 v97, {MASKHI}, v{RC}"); a("v_sub_f32 v97, v96, v97")
    a(f"v_cvt_pk_bf16_f32 v{RC+1}, v97, 0")
    a(f"v_lshl_or_b32 v{RC+1}, v{B1V}, 16, v{RC+1}")
    a(f"v_mov_b32 v{RC+2}, v{B1V}"); a(f"v_mov_b32 v{RC+3}, s42")
    a(f"buffer_store_dwordx4 {vr(RC,4)}, v6, {sWS}, s65 offen sc1")
    stamp(7)
    a("s_branch Law_end")
cold.append(aw_helper)

a.label("Lcw")
incw[0] = True
ACC = 64
TW1c, TW1s = 152, 160
TW2c, TW2s = 168, 172
UVa, UVb = 176, 180
WIN = 200
FM, FN = 208, 216
VW, VY, VFR, VPK = 129, 130, 131, 128
FLG = 138
a("s_setprio 2")
a(f"s_mov_b32 {ONES}, 0x3f803f80")
a(f"s_and_b32 {H16}, {WAVE}, 1"); a(f"s_lshl_b32 {H16}, {H16}, 4")
a("s_mov_b32 s18, 2097152"); a("s_mov_b32 s19, 0x20000")
a("s_mov_b32 s12, s40"); a("s_mov_b32 s13, s41")
a("s_mov_b32 s16, s36"); a("s_mov_b32 s17, s37")
a(f"s_lshr_b32 s64, {WAVE}, 1")
a(f"s_lshl_b32 s58, {WAVE}, 2"); a(f"v_add_u32 v{VFR}, s58, v{VCT}")
gen_fm_fn(a, FM, FN, 132, 133, 4, 5)
a(f"v_mul_f32 v6, {f2u(1/32)}, v{FN}"); a(f"v_mul_f32 v7, {f2u(1/32)}, v{FN+1}")
for o in range(2):
    for t in range(2): gen_mat(FT + (2*o+t)*6, 6+o, FM+4*t, T0)
G16, TWRc, TWRs, ZA = 32, 40, 48, 56
a(f"v_cvt_f32_u32 v{T0+8}, v133")
a(f"v_add_f32 v{T0+9}, 1.0, v{T0+8}"); a(f"v_add_f32 v{T0+10}, 2.0, v{T0+8}"); a(f"v_add_f32 v{T0+11}, 1.0, v{T0+10}")
a("v_cvt_f32_u32 v6, v132"); a(f"v_mul_f32 v6, {f2u(1/16)}, v6")
gen_mat(G16, 6, T0+8, T0)
for o in range(2):
    a(f"v_mul_f32 v6, {f2u(1/512)}, v{FN+o}")
    gen_tw(a, TWRc+4*o, TWRs+4*o, 6, T0+8, 4)
a(f"s_lshl_b32 s57, {WAVE}, 3"); a(f"s_add_u32 s57, s57, {ST3}")
gen_zaddr(a, ZA, "s57", 132, 133, 4)
warm(0)
XF, SS, XU, D1, D2 = 64, 72, 80, 96, 112
a("v_lshlrev_b32 v4, 3, v0")
a(f"s_lshl_b32 s58, {H16}, 5"); a("s_add_u32 s58, s58, s61")
a("v_add_u32 v4, s58, v4"); a("v_xor_b32 v5, 512, v4")
for k in range(4): a(f"v_mov_b32 v{SS+k}, 0")
a("v_bfe_u32 v6, v0, 4, 1"); a(f"s_lshl_b32 s58, {WAVE}, 4"); a(f"s_add_u32 s58, s58, {CT+cREC}"); a("v_lshl_add_u32 v6, v6, 3, s58")
a("v_mov_b32 v7, 1")
if G1ST and not opt('kst', 0): stamp(1, True)
a("s_waitcnt vmcnt(0) lgkmcnt(0)")
for t in range(2):
    a(f"ds_read_b64_tr_b16 {vr(XF+4*t,2)}, v{4+t}")
    a(f"ds_read_b64_tr_b16 {vr(XF+4*t+2,2)}, v{4+t} offset:1024")
tag_fix()
if G1ST and not opt('kst', 0): stamp(13, True)
a("s_waitcnt lgkmcnt(0)")
for t in range(2):
    for d in range(2):
        for u in range(2):
            x = XF + 4*t + 2*u + d
            a(f"v_dot2c_f32_bf16 v{SS+u}, {ONES}, v{x}")
            a(f"v_dot2c_f32_bf16 v{SS+2+u}, v{x}, v{x}")
unl = []
for k in range(8):
    unl.append(f"v_lshlrev_b32 v{XU+2*k}, 16, v{XF+k}"); unl.append(f"v_and_b32 v{XU+2*k+1}, {MASKHI}, v{XF+k}")
def un(n):
    for _ in range(n):
        if unl: a(unl.pop(0))
un(3)
for b in (SS, SS+2): a(f"v_permlane16_swap_b32 v{b}, v{b+1}")
for b in (SS, SS+2): a(f"v_add_f32 v{b}, v{b}, v{b+1}")
for b in (SS, SS+2): a(f"v_mov_b32 v{b+1}, v{b}")
un(1)
for b in (SS, SS+2): a(f"v_permlane32_swap_b32 v{b}, v{b+1}")
for b in (SS, SS+2): a(f"v_add_f32 v{b}, v{b}, v{b+1}")
for sh in (8, 4, 2, 1):
    un(1)
    for b in (SS, SS+2): a(f"v_add_f32_dpp v{b}, v{b}, v{b} row_ror:{sh} row_mask:0xf bank_mask:0xf")
RC = 76
a(f"v_mul_f32 v{RC}, {f2u(-1/512)}, v{SS}")
a(f"v_mul_f32 v{SS+2}, {f2u(1/512)}, v{SS+2}")
a(f"v_fma_f32 v{SS+2}, -v{RC}, v{RC}, v{SS+2}")
a(f"v_max_f32 v{SS+2}, 0, v{SS+2}")
a(f"v_add_f32 v{SS+1}, {f2u(1e-5)}, v{SS+2}")
a(f"v_mov_b32 v{SS}, {f2u(1e-10)}")
a(f"v_rsq_f32 v{SS+1}, v{SS+1}")
a(f"v_fmac_f32 v{SS}, {f2u(1+1e-5)}, v{SS+2}")
a(f"v_rsq_f32 v{RC+1}, v{SS}")
a(f"v_mul_f32 v{SS+3}, v{RC}, v{SS+1}")
un(2)
a(f"ds_write_b64 v6, {vr(RC,2)}")
a(f"ds_write_b32 v{VFR}, v7 offset:{cRWF}")
for k in range(2):
    a(f"v_readlane_b32 s{20+2*k}, v{SS+1}, {16*k}"); a(f"v_readlane_b32 s{21+2*k}, v{SS+3}, {16*k}")
un(99)
for k in range(8):
    sp = 20 + 2*((k >> 1) & 1)
    a(f"v_pk_fma_f32 {vr(XU+2*k,2)}, {vr(XU+2*k,2)}, s[{sp}:{sp+1}], s[{sp}:{sp+1}] op_sel:[0,0,1] op_sel_hi:[1,0,1]")
for k in range(8): a(f"v_cvt_pk_bf16_f32 v{XF+k}, v{XU+2*k}, v{XU+2*k+1}")
for o in range(2):
    for t in range(2):
        for ri in range(2):
            d = vr(D1 + 8*o + 4*ri, 4)
            a(f"v_mfma_f32_16x16x32_bf16 {d}, {vr(XF+4*t,4)}, {Fx(ri,o,t)}, {'0' if t == 0 else d}")
a(f"v_mul_f32 v6, {f2u(1/1024)}, v{FN}"); a(f"v_mul_f32 v195, {f2u(1/1024)}, v{FN+1}")
for o in range(2):
    twiddle(a, D1+8*o, D1+8*o+4, TWRc+4*o, TWRs+4*o, 4, XU+8*o, False)
    packfrag(a, XF+4*o, XU+8*o, XU+8*o+4)
    if o == 1 or True:
        pass
for o in range(2):
    a(f"v_mfma_f32_16x16x32_bf16 {vr(D2+8*o,4)}, {vr(G16+2,4)}, {vr(XF+4*o,4)}, 0")
    a(f"v_mfma_f32_16x16x32_bf16 {vr(D2+8*o+4,4)}, {vr(G16,4)}, {vr(XF+4*o,4)}, 0")
for k in range(8): a(f"v_mul_f32 v{TW1s+k}, v6, v{FM+k}")
for o in range(2):
    for r in range(4): a(f"v_cvt_pk_bf16_f32 v{XU+4*o+r}, v{D2+8*o+r}, v{D2+8*o+4+r}")
a(f"v_readlane_b32 s20, v{XU}, 32"); a(f"v_readlane_b32 s21, v{XU+4}, 32"); a(f"v_readlane_b32 s22, v{XU}, 0"); a(f"v_readlane_b32 s23, v{XU+4}, 0")
for k in (1, 2, 3, 5, 6, 7): a(f"ds_write_b32 v{ZA+k}, v{XU+k}")
a(f"s_cmp_eq_u32 {H16}, 0"); a("s_cselect_b32 s20, s20, s22"); a("s_cselect_b32 s21, s23, s21")
a("v_mov_b32 v4, 2")
a(f"v_writelane_b32 v{XU}, s20, 0"); a(f"v_writelane_b32 v{XU+4}, s21, 0")
for k in (0, 4): a(f"ds_write_b32 v{ZA+k}, v{XU+k}")
a(f"ds_write_b32 v{VFR}, v4 offset:{cRWF}")
if G1ST and not opt('kst', 0): stamp(14, True)
VTG = 250
def late_setup(e):
    for k in range(8): e(f"v_cos_f32 v{TW1c+k}, v{TW1s+k}")
    for k in range(8): e(f"v_sin_f32 v{TW1s+k}, v{TW1s+k}")
    gen_tw(e, TW2c, TW2s, 195, FM, 4)
    e("v_lshrrev_b32 v192, 5, v0"); e("v_lshlrev_b32 v192, 7, v192")
    e("v_bfe_u32 v193, v0, 1, 4"); e("v_add_u32 v192, v192, v193")
    e("v_and_b32 v193, 1, v0"); e("v_lshl_add_u32 v192, v193, 6, v192")
    e("s_lshl_b32 s53, s64, 9"); e(f"s_add_u32 s53, s53, {H16}")
    e("v_add_u32 v192, s53, v192"); e("v_cvt_f32_u32 v192, v192"); e(f"v_mul_f32 v{T0}, {f2u(1/2048)}, v192")
    for n in range(1, 4): e(f"v_add_f32 v{T0+n}, {f2u((256*(n>>1) + 32*(n&1))/2048)}, v{T0}")
    for n in range(4): e(f"v_cos_f32 v{T0+4+n}, v{T0+n}")
    for n in range(4): e(f"v_sin_f32 v{T0+n}, v{T0+n}")
    for n in range(4): e(f"v_add_f32 v{T0+8+n}, v{T0+4+n}, v{T0+n}")
    for n in range(4): e(f"v_sub_f32 v{T0+n}, v{T0+4+n}, v{T0+n}")
    for n in range(4):
        e(f"v_cvt_pk_bf16_f32 v{UVa+n}, v{T0+8+n}, v{T0+n}"); e(f"v_cvt_pk_bf16_f32 v{UVb+n}, v{T0+n}, v{T0+8+n}")
    e("v_lshrrev_b32 v193, 5, v0"); e("v_lshlrev_b32 v193, 5, v193"); e("v_bfe_u32 v194, v0, 1, 4"); e("v_add_u32 v193, v193, v194")
    e(f"v_lshlrev_b32 v{VY}, 5, v193"); e("v_and_b32 v194, 1, v0"); e(f"v_lshl_add_u32 v{VY}, v194, 4, v{VY}")
    e("v_lshrrev_b32 v193, 1, v0"); e("v_lshlrev_b32 v193, 4, v193"); e("v_lshl_add_u32 v190, v194, 3, v193")
    e(f"s_lshl_b32 s53, {WAVE}, 10"); e(f"s_add_u32 s52, s53, {ST}"); e("v_add_u32 v190, s52, v190")
    e(f"s_add_u32 s52, s53, {ST2}"); e("v_add_u32 v188, s52, v1"); e("v_xor_b32 v189, 1024, v188")
    e("s_lshl_b32 s53, s64, 12"); e(f"s_mul_i32 s52, {H16}, 192"); e("s_add_u32 s52, s53, s52"); e(f"s_add_u32 s52, s52, {ST}")
    e("v_add_u32 v184, s52, v1")
    for k in range(1, 4): e(f"v_xor_b32 v{184+k}, {1024*k}, v184")
    e("v_lshl_add_u32 v196, v194, 2, v193")
    e(f"s_lshl_b32 s53, {WAVE}, 10"); e(f"s_add_u32 s52, s53, {ST}"); e("v_add_u32 v196, s52, v196"); e("v_add_u32 v197, 4096, v196"); e(f"v_add_u32 v{VPK}, s52, v1")
    e("v_lshlrev_b32 v194, 8, v133"); e(f"v_lshl_add_u32 v{VW}, v132, 2, v194")
    e(f"s_lshl_b32 s52, {H16}, 8"); e(f"s_lshl_b32 s53, {WAVE}, 6"); e("s_add_u32 s53, s53, s52"); e(f"s_add_u32 s53, s53, {WTL}")
    e(f"v_add_u32 v{VW}, s53, v{VW}"); e(f"v_xor_b32 v191, 4096, v{VW}")
    e("s_lshl_b32 s53, s64, 7"); e(f"s_add_u32 s66, s53, {H16}"); e("s_lshl_b32 s66, s66, 5")
    e(f"s_lshl_b32 s53, {KAP}, 13"); e("s_add_u32 s66, s66, s53"); e(f"s_add_u32 s66, s66, {YB}")
    e(f"s_lshl_b32 s63, {R_}, 2"); e(f"s_add_u32 s63, s63, {WAVE}")
    e(f"s_mul_i32 s65, s63, {112*1024}"); e(f"s_mul_i32 s53, {HF}, {56*1024}"); e("s_add_u32 s65, s65, s53"); e(f"s_add_u32 s65, s65, {HB}")
    e(f"s_and_b32 s52, {IDX}, 3"); e("s_lshl_b32 s52, s52, 1"); e(f"s_add_u32 s52, s52, {JL}")
    e("s_sub_u32 s53, s52, 7"); e("s_cmp_ge_u32 s52, 7\ns_cselect_b32 s52, s53, s52")
    for n in range(7):
        e("s_lshl_b32 s53, s52, 13"); e(f"s_add_u32 s{20+2*n}, s65, s53"); e(f"s_add_u32 s{21+2*n}, s{20+2*n}, 4096")
        if n < 6: e("s_add_u32 s52, s52, 1"); e("s_cmp_eq_u32 s52, 7\ns_cselect_b32 s52, 0, s52")
    e(f"s_lshl_b32 s61, {R_}, 1"); e(f"s_add_u32 s61, s61, {HF}"); e("s_lshl_b32 s61, s61, 1"); e("s_add_u32 s61, s61, s64")
    e("s_lshl_b32 s61, s61, 8"); e(f"s_add_u32 s61, s61, {F2}")
    e(f"s_lshl_b32 s53, {JL}, 4"); e("s_add_u32 s60, s61, s53"); e(f"s_lshr_b32 s53, {H16}, 1"); e("s_add_u32 s60, s60, s53")
    e("v_min_u32 v132, 13, v0"); e("v_lshlrev_b32 v132, 3, v132")
    e(f"v_mov_b32 v{VTG}, s42"); e(f"v_mov_b32 v{VTG+1}, s43"); e(f"v_mov_b32 v{VTG-1}, 0")
def flag_c(soff, off=0):
    a("s_mov_b64 exec, 1")
    a(f"buffer_store_dwordx2 {vr(VTG,2)}, v{VTG-1}, {sWS}, {soff} offen offset:{off} sc1")
    a("s_mov_b64 exec, -1")
a(f"s_cmp_eq_u32 {JL}, 7")
a("s_cbranch_scc1 Lhelper")

AX, AW = 2, 6
a("v_and_b32 v7, 31, v0")
a("v_lshrrev_b32 v2, 5, v0"); a("v_bfe_u32 v3, v0, 1, 3"); a("v_xor_b32 v2, v2, v3")
a("v_lshlrev_b32 v2, 4, v2"); a("v_lshl_add_u32 v2, v7, 7, v2")
a("s_lshl_b32 s58, s64, 13")
a("v_add_u32 v2, s58, v2")
for ks in range(1, 4): a(f"v_xor_b32 v{2+ks}, {ks*32}, v2")
a("v_lshrrev_b32 v6, 5, v0"); a("v_lshlrev_b32 v6, 11, v6")
a("v_bfe_u32 v7, v0, 2, 2"); a("v_lshl_add_u32 v6, v7, 6, v6")
a("v_bfe_u32 v7, v0, 4, 1"); a("v_lshl_add_u32 v6, v7, 5, v6")
a("v_and_b32 v7, 3, v0"); a("v_lshl_add_u32 v6, v7, 3, v6")
a(f"s_lshl_b32 s58, {H16}, 5"); a("s_add_u32 s58, s58, 16384")
a("v_add_u32 v6, s58, v6")
fill1 = []; e = fill1.append
e("v_and_b32 v134, 31, v0"); e("v_lshlrev_b32 v134, 4, v134")
e("s_lshl_b32 s53, s64, 10"); e(f"s_add_u32 s53, s53, {ST3}"); e("v_add_u32 v135, s53, v1"); e("v_add_u32 v139, s53, v134") if False else None
e(f"s_lshl_b32 s52, {H16}, 6"); e(f"s_add_u32 s52, s52, {ST3+4096}"); e("v_add_u32 v136, s52, v134"); e("v_add_u32 v134, s53, v134")
e(f"s_lshl_b32 s67, {R_}, 2"); e(f"s_and_b32 s53, {WAVE}, 2"); e("s_add_u32 s67, s67, s53")
e(f"s_lshl_b32 s52, {JG}, 13"); e(f"s_lshl_b32 s53, {H16}, 8"); e("s_add_u32 s52, s52, s53"); e(f"s_add_u32 s52, s52, {HB}")
e(f"s_mul_i32 s67, s67, {112*1024}"); e("s_add_u32 s67, s67, s52"); e(f"s_add_u32 s68, s67, {112*1024}")
late_setup(e)
if opt("nofill", 0):
    while fill1: a(fill1.pop(0))
def f1(n):
    for _ in range(n):
        if fill1: a(fill1.pop(0))
FR = 32
def rdA(buf, fb, slot, ks):
    b = FR + 16*buf + 4*fb
    for j in range(2): a(f"ds_read_b64_tr_b16 {vr(b+2*j,2)}, v{AW} offset:{slot*32768 + ks*4096 + j*1024 + fb*256}")
def rdB(buf, tb, slot, ks):
    a(f"ds_read_b128 {vr(FR+16*buf+8+4*tb,4)}, v{AX+ks} offset:{slot*32768 + tb*4096}")
def acc(fb, tb): return vr(ACC + 32*fb + 16*tb, 16)
def g1_mfma(buf, fb, tb, first=False):
    b = FR + 16*buf
    a(f"v_mfma_f32_32x32x16_bf16 {acc(fb,tb)}, {vr(b+4*fb,4)}, {vr(b+8+4*tb,4)}, {'0' if first else acc(fb,tb)}")
a("s_mov_b32 s69, 0x10000")
lds_spin(VCT, cFULL, 2, 1, FLG, sleep=1)
if G1ST: stamp(3)
for n in range(2): rdA(n, 0, 0, n); rdB(n, 0, 0, n); rdB(n, 1, 0, n); rdA(n, 1, 0, n)
EB, KC, EA, EAM = 140, 144, 236, 220
def flag_rd(): a(f"ds_read2_b32 {vr(FLG,2)}, v{VCT} offset0:{cFULL//4} offset1:{cFULL//4+64}")
def ext_reads():
    a(f"ds_read_b128 {vr(EB,4)}, v135")
    for fb in range(2): a(f"ds_read_b128 {vr(EA+4*fb,4)}, v136 offset:{512*fb}")
    for tb in range(2): a(f"ds_read_b128 {vr(KC+4*tb,4)}, v134 offset:{2048+512*tb}")
def g1_step(N):
    n = N & 7; st = N >> 2
    ks = n & 3; buf = n & 1; f = (N == 0)
    nn = (n + 2) & 7; ns, nk = nn >> 2, nn & 3
    KS0 = opt("kst", 0)
    if KS0 and KS0 <= N < KS0 + 12: stamp(1 + N - KS0 + (2 if N - KS0 >= 1 else 0), True)
    a(f"s_waitcnt lgkmcnt({7 if (ks == 0 and st >= 6) else 6})")
    g1_mfma(buf, 0, 0, f)
    if ks == 2:
        a(f"v_min_u32 v{FLG}, v{FLG}, v{FLG+1}")
        if st >= 5: a(f"v_mov_b32 v137, {st+1}")
        def pre():
            if n == 6 and N != 30:
                for r in list(range(AX, AX+4)) + [AW]: a(f"v_xor_b32 v{r}, s69, v{r}")
        lds_check(FLG, st + 2, VCT, cFULL, 2, pre=pre, sleep=opt("csleep", 1))
        if G1ST and not KS0: stamp(4 + st, True)
        if N == 30: return
    if ks == 1: flag_rd()
    if ks == 3:
        if st < 5: a("s_barrier")
        else: a(f"ds_write_b32 v{VFR}, v137 offset:{cFREE}")
    if ks != 2: f1(3)
    g1_mfma(buf, 0, 1, f)
    rdA(buf, 0, ns, nk); f1(2)
    g1_mfma(buf, 1, 0, f)
    rdB(buf, 0, ns, nk); f1(3)
    g1_mfma(buf, 1, 1, f)
    rdB(buf, 1, ns, nk)
    rdA(buf, 1, ns, nk); f1(1)
for N in range(31): g1_step(N)
assert not fill1
ext_reads()
g1_mfma(0, 0, 1); a("v_cmp_gt_u32 s[52:53], 32, v0"); g1_mfma(0, 1, 0); g1_mfma(0, 1, 1)
a("s_waitcnt lgkmcnt(0)")
a(f"ds_write_b32 v{VFR}, v137 offset:{cFREE}")
g1_mfma(1, 0, 0)
def ext_cmp():
    for r in (EB+3, EA+3, EA+7, KC+3): a(f"v_xor_b32 v{r}, s42, v{r}")
    a(f"v_xor_b32 v{KC+7}, s42, v{KC+7}")
    a(f"v_or3_b32 v{FLG}, v{EB+3}, v{EA+3}, v{EA+7}"); a(f"v_or3_b32 v{FLG}, v{FLG}, v{KC+3}, v{KC+7}")
    a(f"v_cmp_ne_u32 vcc, 0, v{FLG}")
ext_cmp()
g1_mfma(1, 0, 1)
a("s_cmp_lg_u64 vcc, 0")
a("s_cbranch_scc1 Lext_slow")
a.label("Lext_ok")
def ext_slow():
    a.label("Lext_slow")
    stamp(2, True)
    a("v_and_b32 v2, 31, v0"); a("v_lshlrev_b32 v2, 4, v2")
    a(f"s_lshl_b32 s57, {R_}, 11"); a("s_lshl_b32 s58, s64, 10"); a("s_add_u32 s57, s57, s58"); a(f"s_add_u32 s36, s57, {SB}"); a(f"s_add_u32 s37, s36, 0x8000")
    a(f"s_lshl_b32 s57, {JG}, 11"); a(f"s_lshl_b32 s58, {H16}, 6"); a("s_add_u32 s57, s57, s58"); a(f"s_add_u32 s38, s57, {CS2}")
    a("s_mov_b32 s58, 0")
    a.label("Lext_lp")
    a("s_sleep 4")
    a(f"buffer_load_dwordx4 {vr(EB,4)}, v1, {sWS}, s36 offen sc1")
    for k in range(2):
        a(f"buffer_load_dwordx4 {vr(EA+4*k,4)}, v2, {sWS}, s38 offen offset:{512*k} sc1")
        a(f"buffer_load_dwordx4 {vr(KC+4*k,4)}, v2, {sWS}, s37 offen offset:{512*k} sc1")
    a("s_add_u32 s58, s58, 1")
    a("s_waitcnt vmcnt(0)")
    ext_cmp()
    a(f"s_cmp_ge_u32 s58, {SPIN_MAX}")
    a("s_cbranch_scc1 Lext_ok")
    a("s_cmp_lg_u64 vcc, 0")
    a("s_cbranch_scc1 Lext_lp")
    a("s_branch Lext_ok")
cold.append(ext_slow)
stamp(6)
if G1ST and not opt('kst', 0): stamp(12, True)
def mask(fb):
    for k in range(4): a(f"v_cndmask_b32 v{EAM+8*fb+k}, 0, v{EA+4*fb+k}, s[52:53]")
    for k in range(4): a(f"v_cndmask_b32 v{EAM+8*fb+4+k}, v{EA+4*fb+k}, 0, s[52:53]")
def ext(fb, tb): a(f"v_mfma_f32_32x32x16_bf16 {acc(fb,tb)}, {vr(EAM+8*fb+4*tb,4)}, {vr(EB,4)}, {acc(fb,tb)}")
mask(0)
ext(0, 0); ext(0, 1)
mask(1)
late = [lambda: g1_mfma(1, 1, 0), lambda: g1_mfma(1, 1, 1), lambda: ext(1, 0), lambda: ext(1, 1)]
GT = 32; AF = 220; ZIN = 240
def z_reads():
    a(f"ds_read_b128 {vr(ZIN,4)}, v{VPK}"); a(f"ds_read_b128 {vr(ZIN+4,4)}, v{VPK} offset:4096")
cnt = 0
FA_AT = opt("fa_at", 7)
for fb in range(2):
    for tb in range(2):
        for th in range(2):
            x = ACC + 32*fb + 16*tb + 8*th; k = KC + 4*tb; o = 40 + 4*(cnt & 1)
            if cnt == 7:
                flag_rd(); z_reads()
            def lt():
                if late: late.pop(0)()
            if cnt == 0: lt(); lt()
            for p in range(0, 8, 2): a(f"v_pk_mul_f32 {vr(GT+p,2)}, {vr(x+p,2)}, {vr(x+p,2)}")
            for p in range(0, 8, 2): a(f"v_pk_fma_f32 {vr(GT+p,2)}, {vr(GT+p,2)}, {vr(k,2)}, {vr(k,2)} op_sel:[0,0,1] op_sel_hi:[1,0,1]")
            lt()
            for p in range(0, 8, 2): a(f"v_pk_mul_f32 {vr(GT+p,2)}, {vr(GT+p,2)}, {vr(x+p,2)}")
            for p in range(8): a(f"v_exp_f32 v{GT+p}, v{GT+p}")
            lt()
            for p in range(0, 8, 2): a(f"v_pk_fma_f32 {vr(GT+p,2)}, {vr(GT+p,2)}, {vr(k+2,2)}, {vr(k+2,2)} op_sel_hi:[1,0,0]")
            for p in range(8): a(f"v_rcp_f32 v{GT+p}, v{GT+p}")
            for p in range(0, 8, 2): a(f"v_pk_mul_f32 {vr(GT+p,2)}, {vr(GT+p,2)}, {vr(x+p,2)}")
            for p in range(4): a(f"v_cvt_pk_bf16_f32 v{o+p}, v{GT+2*p}, v{GT+2*p+1}")
            a(f"buffer_store_dwordx4 {vr(o,4)}, v1, {sWS}, s{67+tb} offen offset:{2048*fb+1024*th} sc1")
            if cnt == FA_AT:
                a(f"s_waitcnt vmcnt({FA_AT-3})")
                flag_c("s60")
                stamp(7)
            cnt += 1
a("s_waitcnt lgkmcnt(0)")
def helper_code():
    a.label("Lhelper")
    a(f"s_lshl_b32 s67, {XCD}, 2"); a(f"s_and_b32 s58, {IDX}, 3"); a("s_add_u32 s67, s67, s58")
    a("v_bfe_u32 v2, v0, 3, 1"); a("v_bfe_u32 v3, v0, 2, 1"); a("v_lshl_add_u32 v2, v3, 5, v2")
    a("v_and_b32 v3, 3, v0"); a("v_lshl_add_u32 v2, v3, 3, v2"); a("v_mul_u32_u24 v2, 514, v2")
    a("v_lshrrev_b32 v3, 4, v0"); a(f"s_lshl_b32 s58, {WAVE}, 6"); a("v_add_u32 v3, s58, v3")
    a("v_lshl_add_u32 v4, v3, 1, v2")
    a("v_cmp_eq_u32 vcc, 0, v3"); a("v_add_u32 v5, 512, v4"); a("v_cndmask_b32 v5, v4, v5, vcc")
    a("v_lshlrev_b32 v3, 13, v3"); a("v_and_b32 v6, 15, v0"); a("v_lshl_add_u32 v3, v6, 4, v3")
    a("s_lshl_b32 s68, s67, 8"); a(f"s_add_u32 s68, s68, {WT}")
    stamp(2)
    lds_spin(VCT, cFULL, 2, 1, FLG, sleep=2)
    stamp(7)
    a("s_mov_b32 s69, 0")
    a.label("Lhl")
    for u in range(4):
        for tt in range(4):
            ad = "v5" if u == 0 else "v4"
            a(f"ds_read_u16 v{32+4*u+tt}, {ad} offset:{u*8 + tt*1028}")
            a(f"ds_read_u16 v{48+4*u+tt}, {ad} offset:{36864 + u*8 + tt*1028}")
    a("s_waitcnt lgkmcnt(0)")
    for u in range(4):
        for tt in range(4): a(f"v_lshl_or_b32 v{64+4*u+tt}, v{48+4*u+tt}, 16, v{32+4*u+tt}")
        a(f"buffer_store_dwordx4 {vr(64+4*u,4)}, v3, {sWS}, s68 offen sc1")
        a(f"s_add_u32 s68, s68, {4*8192}")
    a("v_add_u32 v4, 32, v4"); a("v_mov_b32 v5, v4")
    a("s_add_u32 s69, s69, 1"); a("s_cmp_lt_u32 s69, 4"); a("s_cbranch_scc1 Lhl")
    a(f"s_lshl_b32 s68, {WAVE}, 8"); a("s_lshl_b32 s67, s67, 3"); a("s_add_u32 s68, s68, s67"); a(f"s_add_u32 s68, s68, {FW}")
    late_setup(a)
    a("s_waitcnt vmcnt(0)")
    flag_c("s68")
    a("v_mov_b32 v2, 8")
    a(f"ds_write_b32 v{VFR}, v2 offset:{cFREE}")
    stamp(6)
    a("s_barrier")
    a(f"v_mov_b64 {vr(FLG,2)}, 0")
    a("s_branch Lcol")
cold.append(helper_code)

warm(1)
a.label("Lcol")
stamp(8)
a(f"v_min_u32 v{FLG}, v{FLG}, v{FLG+1}")
def post_z():
    z_reads(); a("s_waitcnt lgkmcnt(0)")
lds_check(FLG, 10, VCT, cFULL, 2, post=post_z)
EE = 32
for n in range(4):
    P = ZIN + 4*(n >> 1) + 2*(n & 1); M = P + 1
    a(f"v_dot2_f32_bf16 v{EE+n}, v{P}, {ONES}, 0")
    a(f"v_dot2_f32_bf16 v{EE+4+n}, v{P}, {ONES}, 0 neg_lo:[0,1,0]")
    a(f"v_dot2_f32_bf16 v{EE+8+n}, v{P}, v{UVa+n}, 0 neg_hi:[0,1,0]")
    a(f"v_dot2_f32_bf16 v{EE+12+n}, v{P}, v{UVb+n}, 0")
    a(f"v_dot2_f32_bf16 v{EE+n}, v{M}, {ONES}, v{EE+n}")
    a(f"v_dot2_f32_bf16 v{EE+4+n}, v{M}, {ONES}, v{EE+4+n} neg_hi:[0,1,0]")
    a(f"v_dot2_f32_bf16 v{EE+8+n}, v{M}, v{UVb+n}, v{EE+8+n} neg_hi:[0,1,0]")
    a(f"v_dot2_f32_bf16 v{EE+12+n}, v{M}, v{UVa+n}, v{EE+12+n} neg_lo:[0,1,0] neg_hi:[0,1,0]")
for j in range(2):
    for cpt in range(4): a(f"v_cvt_pk_bf16_f32 v{48+2*cpt+j}, v{EE+4*cpt+2*j}, v{EE+4*cpt+2*j+1}")
    for eo in range(2): a(f"ds_write2_b32 v{196+eo}, v{48+4*eo+j}, v{48+4*eo+2+j} offset0:{128*j} offset1:{128*j+2}")
a("s_waitcnt lgkmcnt(0)")
a("s_barrier")
for k in (0, 2, 1, 3): a(f"ds_read_b128 {vr(AF+4*k,4)}, v{184+k}")
def w_reads():
    for o in range(2):
        for r in range(0, 4, 2): a(f"ds_read2_b32 {vr(WIN+4*o+r,2)}, v{VW if o == 0 else 191} offset0:{64*r} offset1:{64*r+64}")
if not G1ST: stamp(3)
D1 = 64; TT = 80; TF = 48; D2 = 96; WU = 112
for be in range(2):
    a(f"s_waitcnt lgkmcnt({2 - 2*be})")
    for tau in range(2):
        for ri in range(2):
            d = vr(D1 + 8*be + 4*ri, 4)
            a(f"v_mfma_f32_16x16x32_bf16 {d}, {vr(AF+8*tau+4*be,4)}, {Fx(ri,0,tau)}, {'0' if tau == 0 else d}")
a(f"ds_read_b32 v{FLG}, v{VCT} offset:{cFULL+256}")
w_reads()
for be in range(2):
    twiddle(a, D1+8*be, D1+8*be+4, TW1c+4*be, TW1s+4*be, 4, TT+8*be, False)
    packfrag(a, TF+4*be, TT+8*be, TT+8*be+4)
    if be == 0:
        a("s_nop 0")
        for o in range(2):
            for ri in range(2): a(f"v_mfma_f32_16x16x32_bf16 {vr(D2+8*o+4*ri,4)}, {Fx(ri,o,0)}, {vr(TF,4)}, 0")
a("s_waitcnt lgkmcnt(0)")
def post_w():
    w_reads(); a("s_waitcnt lgkmcnt(0)")
lds_check(FLG, 11, VCT, cFULL+256, 1, post=post_w)
for o in range(2):
    for ri in range(2):
        d = vr(D2+8*o+4*ri, 4)
        a(f"v_mfma_f32_16x16x32_bf16 {d}, {Fx(ri,o,1)}, {vr(TF+4,4)}, {d}")
for k in range(8): a(f"v_lshlrev_b32 v{WU+k}, 16, v{WIN+k}")
for k in range(8): a(f"v_and_b32 v{WU+8+k}, {MASKHI}, v{WIN+k}")
FB_POS = opt("fbpos", 0)
def flagB():
    a("s_waitcnt vmcnt(0)")
    flag_c("s60", 128)
    poll_issue(132, "s61", 252)
    stamp(9)
if FB_POS == 0: flagB()
for o in range(2):
    twiddle(a, D2+8*o, D2+8*o+4, WU+4*o, WU+8+4*o, 4, TT+8*o, True)
    packfrag(a, TF+4*o, TT+8*o+4, TT+8*o)
    if o == 0:
        a("s_nop 0")
        for oo in (1, 0):
            for ri in range(2): a(f"v_mfma_f32_16x16x32_bf16 {vr(D1+8*oo+4*ri,4)}, {vr(TF,4)}, {Fx(ri,oo,0)}, 0")
for oo in (1, 0):
    for ri in range(2):
        d = vr(D1+8*oo+4*ri, 4)
        a(f"v_mfma_f32_16x16x32_bf16 {d}, {vr(TF+4,4)}, {Fx(ri,oo,1)}, {d}")
if FB_POS == 1: flagB()
twiddle(a, D1+12, D1+8, TW2c, TW2s, 4, TT+8, True)
packfrag(a, TF+8, TT+12, TT+8)
a(f"ds_write_b128 v188, {vr(TF+8,4)}")
twiddle(a, D1+4, D1, TW1c, TW1s, 4, TT, True)
packfrag(a, TF, TT+4, TT)
if FB_POS == 2: flagB()
a("s_waitcnt lgkmcnt(0)")
a("s_barrier")
a(f"ds_read_b128 {vr(TF+8,4)}, v189")
stamp(4)
for o in range(2):
    for ri in range(2):
        a(f"v_mfma_f32_16x16x32_bf16 {vr(D2+8*o+4*ri,4)}, {Fx(ri,o,0)}, {vr(TF,4)}, 0")
a("v_lshrrev_b32 v2, 5, v0"); a("v_lshlrev_b32 v2, 9, v2")
a("v_bfe_u32 v3, v0, 2, 2"); a("v_lshl_add_u32 v2, v3, 6, v2")
a("v_bfe_u32 v3, v0, 4, 1"); a("v_lshl_add_u32 v2, v3, 5, v2")
a("v_and_b32 v3, 3, v0"); a("v_lshl_add_u32 v2, v3, 3, v2")
a("v_add_u32 v3, 0x10000, v2")
a("s_waitcnt lgkmcnt(0)")
for o in range(2):
    for ri in range(2):
        d = vr(D2+8*o+4*ri, 4)
        a(f"v_mfma_f32_16x16x32_bf16 {d}, {Fx(ri,o,1)}, {vr(TF+8,4)}, {d}")
for o in range(2):
    for r in range(4): a(f"v_cvt_pk_bf16_f32 v{TF+4*o+r}, v{D2+8*o+4+r}, v{D2+8*o+r}")
    a(f"ds_write_b128 v{184 if o == 0 else 186}, {vr(TF+4*o,4)}")
a(f"v_mov_b32 v4, v{VY}"); a("v_mov_b32 v5, v132")
a("s_waitcnt lgkmcnt(0)")
a("s_barrier")
EP = 64
for j in range(2):
    a(f"ds_read_b64 {vr(EP+2*j,2)}, v190 offset:{512*j}"); a(f"ds_read_b64 {vr(EP+4+2*j,2)}, v190 offset:{4096+512*j}")
NK = 56
def kpos(m):
    ph, r = divmod(m, 28); return r >> 1, ph, r & 1
def g2_rd(m, db):
    n, ph, th = kpos(m); b = 32 + 8*(m & 3) + 4*db
    off = n*8192 + ph*4096 + th*2048 + db*256
    for j in range(2): a(f"ds_read_b64_tr_b16 {vr(b+2*j,2)}, v{2 + (off >> 16)} offset:{(off & 0xffff) + j*1024}")
HR = 104; NR = 18; PF = opt("pf", 14)
def hload(m):
    n, ph, th = kpos(m)
    a(f"buffer_load_dwordx4 {vr(HR+4*(m%NR),4)}, v1, {sWS}, s{20+n} offen offset:{ph*2048+th*1024} sc1")
EARLYH = opt("earlyh", 6)
vmq = []
poll_check(5, "s61", 252, 0)
stamp(5)
for m in range(EARLYH): hload(m); vmq.append(("h", m))
a("s_waitcnt lgkmcnt(0)")
for m in range(4):
    for db in range(2):
        if (m, db) != (3, 1): g2_rd(m, db)
RO = 72; RA = 88
for n in range(4):
    a(f"v_dot2_f32_bf16 v{RA+n}, v{EP+n}, {ONES}, 0 neg_hi:[0,1,0]")
    a(f"v_dot2_f32_bf16 v{RA+4+n}, v{EP+n}, {ONES}, 0")
for n in range(4):
    O = EP + 4 + n
    a(f"v_dot2_f32_bf16 v{RO+4*n}, v{O}, v{UVa+n}, v{RA+n}")
    a(f"v_dot2_f32_bf16 v{RO+4*n+1}, v{O}, v{UVb+n}, v{RA+4+n} neg_lo:[0,1,0]")
    a(f"v_dot2_f32_bf16 v{RO+4*n+2}, v{O}, v{UVb+n}, v{RA+4+n} neg_hi:[0,1,0]")
    a(f"v_dot2_f32_bf16 v{RO+4*n+3}, v{O}, v{UVa+n}, v{RA+n} neg_lo:[0,1,0] neg_hi:[0,1,0]")
g2_rd(3, 1)
a(f"s_cmp_eq_u32 {KAP}, 0")
a("s_cbranch_scc1 Lk0")
a.label("Lnk0")
def k0_code():
    a.label("Lk0")
    for n in range(4):
        a(f"v_pk_add_f32 {vr(RO+4*n+2,2)}, {vr(RO+4*n+2,2)}, {vr(RO+4*n,2)}")
        a(f"v_pk_mul_f32 {vr(RO+4*n+2,2)}, {vr(RO+4*n+2,2)}, 0.5 op_sel_hi:[1,0]")
        a(f"v_mov_b64 {vr(RO+4*n,2)}, 0")
    a("s_branch Lnk0")
cold.append(k0_code)
YO = 96
for n in range(4):
    a(f"v_cvt_pk_bf16_f32 v{YO+2*n}, v{RO+4*n}, v{RO+4*n+1}"); a(f"v_cvt_pk_bf16_f32 v{YO+1+2*n}, v{RO+4*n+2}, v{RO+4*n+3}")
a(f"buffer_store_dwordx4 {vr(YO,4)}, v4, {sWS}, s66 offen sc1"); vmq.append("Y0")
a(f"buffer_store_dwordx4 {vr(YO+4,4)}, v4, {sWS}, s66 offen offset:2048 sc1"); vmq.append("Y1")
stamp(10)

for m in range(EARLYH, PF): hload(m); vmq.append(("h", m))
a(f"s_lshl_b32 s60, {WAVE}, 11"); a(f"s_lshl_b32 s58, {KAP}, 3"); a("s_add_u32 s60, s60, s58"); a(f"s_add_u32 s60, s60, {F3}")
a(f"s_lshr_b32 s65, {RHO}, 7"); a("s_lshl_b32 s65, s65, 1"); a(f"s_bfe_u32 s58, {RHO}, 0x10004"); a("s_add_u32 s65, s65, s58")
a("s_lshl_b32 s65, s65, 11"); a(f"s_lshl_b32 s58, {WAVE}, 9"); a("s_add_u32 s65, s65, s58"); a(f"s_add_u32 s65, s65, {F3}")
a("v_lshlrev_b32 v7, 3, v0")
a(f"s_lshl_b32 s66, {WAVE}, 19"); a(f"s_lshl_b32 s58, {RHO}, 5"); a("s_add_u32 s66, s66, s58"); a(f"s_add_u32 s66, s66, {YB}")
a(f"s_add_u32 s67, s66, {32*8192}")
a(f"s_lshl_b32 s68, {WAVE}, 3"); a(f"s_add_u32 s68, s68, {ST2}")
a(f"s_mov_b32 s69, {f2u(2.0**-21)}")
a(f"s_lshl_b32 s36, {H16}, 5")
a(f"s_lshl_b32 s37, {WAVE}, 11"); a(f"s_add_u32 s38, s37, {XR}"); a(f"s_add_u32 s37, s37, {ST2}")
a("s_mov_b32 s8, s34"); a("s_mov_b32 s9, s35"); a("s_mov_b32 s10, 1024")
a("s_add_u32 s61, s61, 128")
ZA = 176; B16 = 184; TIc = 192; TIs = 200; FM = 208; VC, VG4 = 216, 217; VB2 = 218; VYG = 220; VYW = 221; VXR = 222; FT0 = 224
fill = []; fe = fill.append
gen_fm_fn(fe, FM, None, VC, VG4, FT0, FT0+1)
fe(f"v_lshrrev_b32 v{VYG}, 1, v0"); fe(f"v_lshlrev_b32 v{VYG}, 13, v{VYG}"); fe(f"v_and_b32 v{FT0}, 1, v0"); fe(f"v_lshl_add_u32 v{VYG}, v{FT0}, 4, v{VYG}")
fe(f"v_lshlrev_b32 v{VB2}, 5, v{VC}"); fe(f"v_lshl_add_u32 v{VB2}, v{VG4}, 1, v{VB2}"); fe(f"v_add_u32 v{VB2}, s36, v{VB2}"); fe(f"v_xor_b32 v{VB2+1}, 512, v{VB2}")
fe(f"v_add_u32 v{VYW}, s37, v1")
for o in range(2): fe(f"v_add_u32 v{VXR+o}, s38, v{VB2+o}")
gen_zaddr(fe, ZA, "s68", VC, VG4, FT0)
fe(f"v_cvt_f32_u32 v{FT0+8}, v{VG4}")
fe(f"v_add_f32 v{FT0+9}, 1.0, v{FT0+8}"); fe(f"v_add_f32 v{FT0+10}, 2.0, v{FT0+8}"); fe(f"v_add_f32 v{FT0+11}, 1.0, v{FT0+10}")
fe(f"v_cvt_f32_u32 v{FT0+12}, v{VC}"); fe(f"v_mul_f32 v{FT0+13}, {f2u(1/16)}, v{FT0+12}")
gen_tw(fe, FT0, FT0+4, FT0+13, FT0+8, 4)
fe(f"v_mul_f32 v{FT0+13}, {f2u(1/512)}, v{FT0+12}")
for j in range(4):
    fe(f"v_cvt_pk_bf16_f32 v{B16+j}, v{FT0+j}, -v{FT0+4+j}"); fe(f"v_cvt_pk_bf16_f32 v{B16+4+j}, v{FT0+4+j}, v{FT0+j}")
gen_tw(fe, TIc, TIs, FT0+13, FM, 8)
for k in range(16): fe(f"v_mul_f32 v{TIc+k}, s69, v{TIc+k}")
for _ in range(opt("prefill", 40)): a(fill.pop(0))
POLL_AT, CHK_AT = opt("pollat", 36), opt("chkat", 46)
PB_AT = opt("pbat", 4)
YG = 240; B2 = 96
def young(tag): return len(vmq) - 1 - vmq.index(tag)
for m in range(NK):
    b = 32 + 8*(m & 3)
    for db in range(2):
        rem = min(7, (NK - 1 - m)*2 + (1 - db))
        w = f"lgkmcnt({2*rem})"
        if db == 0: w = f"vmcnt({young(('h', m))}) " + w
        a(f"s_waitcnt {w}")
        d = vr(ACC+16*db, 16)
        a(f"v_mfma_f32_32x32x16_bf16 {d}, {vr(b+4*db,4)}, {vr(HR+4*(m%NR),4)}, {'0' if m == 0 else d}")
        if m + 4 < NK: g2_rd(m + 4, db)
        if db == 0 and m == EARLYH: flag_c("s60"); vmq.append("f3")
        if db == 0 and m + PF == 28: poll_check(5, "s61", 252, young("pollB"))
        if db == 0 and m + PF < NK: hload(m + PF); vmq.append(("h", m + PF))
        if db == 1 and m == PB_AT: poll_issue(5, "s61", 252); vmq.append("pollB")
        if db == 1 and m == POLL_AT: poll_issue(7, "s65", 252); vmq.append("poll")
        if db == 1 and m == CHK_AT:
            stamp(1)
            poll_check(7, "s65", 252, young("poll"))
            a(f"buffer_load_dwordx4 {vr(YG,4)}, v{VYG}, {sWS}, s66 offen sc1"); vmq.append("yg0")
            a(f"buffer_load_dwordx4 {vr(YG+4,4)}, v{VYG}, {sWS}, s67 offen sc1"); vmq.append("yg1")
            for o in range(2): a(f"buffer_load_dwordx2 {vr(B2+2*o,2)}, v{VB2+o}, {sW}, 0 offen"); vmq.append(f"b2{o}")
        if fill: a(fill.pop(0))
assert not fill
stamp(11)
a(f"s_lshl_b32 s57, {HF}, 6"); a("s_add_u32 s57, s57, s63"); a("s_lshl_b32 s57, s57, 15"); a(f"s_lshl_b32 s58, {JL}, 12"); a("s_add_u32 s57, s57, s58")
a(f"s_add_u32 s57, s57, {PB}")
for k in range(4):
    o = 32 + 4*k
    for p in range(4): a(f"v_cvt_pk_bf16_f32 v{o+p}, v{ACC+8*k+2*p}, v{ACC+8*k+2*p+1}")
    a(f"buffer_store_dwordx4 {vr(o,4)}, v1, {sWS}, s57 offen offset:{1024*k} sc1")
a("s_waitcnt vmcnt(4)")
a(f"ds_write_b128 v{VYW}, {vr(YG,4)}"); a(f"ds_write_b128 v{VYW}, {vr(YG+4,4)} offset:1024")
XV = 136
for o in range(2):
    for u in range(2): a(f"ds_read_b64 {vr(XV+4*o+2*u,2)}, v{VXR+o} offset:{1024*u}")
D1 = 64; TT = 80; TF = 96; D2 = 104
for o in range(2):
    for k in range(2):
        a(f"v_lshlrev_b32 v{120+4*o+2*k}, 16, v{B2+2*o+k}"); a(f"v_and_b32 v{121+4*o+2*k}, 0xffff0000, v{B2+2*o+k}")
a("s_waitcnt lgkmcnt(0)")
a("s_barrier")
YA = 128
for k in range(8): a(f"ds_read_b32 v{YA+k}, v{ZA+k}")
for o in range(2):
    for ri in range(2):
        u = 1 - ri; d = D2 + 8*o + 4*ri
        for k in range(2):
            a(f"v_lshlrev_b32 v{d+2*k}, 16, v{XV+4*o+2*u+k}"); a(f"v_and_b32 v{d+2*k+1}, 0xffff0000, v{XV+4*o+2*u+k}")
        for k in range(2): a(f"v_pk_add_f32 {vr(d+2*k,2)}, {vr(d+2*k,2)}, {vr(120+4*o+2*k,2)}")
a("s_waitcnt lgkmcnt(0)")
for tau in range(2):
    for ri in range(2):
        a(f"v_mfma_f32_16x16x32_bf16 {vr(D1+8*tau+4*ri,4)}, {vr(YA+4*tau,4)}, {vr(B16+4*ri,4)}, 0")
APITCH = 2064
a(f"s_lshl_b32 s60, s63, 7"); a(f"s_lshl_b32 s58, {JL}, 4"); a("s_add_u32 s60, s60, s58"); a(f"s_lshl_b32 s58, {HF}, 3"); a("s_add_u32 s60, s60, s58"); a(f"s_add_u32 s60, s60, {F4}")
a("s_waitcnt vmcnt(0)")
flag_c("s60")
stamp(12)
a(f"s_mul_i32 s58, {WAVE}, {2*APITCH}")
for o in range(2): a(f"v_lshlrev_b32 v{146+o}, 1, v{VB2+o}")
for o in range(2): a(f"v_add_u32 v{146+o}, s58, v{146+o}")
for tau in range(2): twiddle(a, D1+8*tau, D1+8*tau+4, TIc+4*tau, TIs+4*tau, 4, TT+8*tau, True)
for tau in range(2): packfrag(a, TF+4*tau, TT+8*tau+4, TT+8*tau)
for tau in range(2):
    for o in range(2):
        for ri in range(2):
            d = vr(D2+8*o+4*ri, 4)
            a(f"v_mfma_f32_16x16x32_bf16 {d}, {vr(TF+4*tau,4)}, {Fx(ri,o,tau)}, {d}")
a("v_and_b32 v2, 7, v0"); a("v_lshrrev_b32 v3, 4, v0"); a("v_bfe_u32 v4, v0, 3, 1")
a("v_lshlrev_b32 v5, 10, v3"); a("v_lshl_add_u32 v5, v4, 9, v5"); a("v_lshl_add_u32 v5, v2, 4, v5")
a("v_lshlrev_b32 v6, 4, v3"); a("v_lshl_add_u32 v6, v4, 2, v6")
a(f"v_mul_u32_u24 v7, {APITCH}, v2"); a("v_lshl_add_u32 v7, v6, 2, v7"); a(f"s_lshl_b32 s58, {WAVE}, 9"); a("v_add_u32 v7, s58, v7")
for o in range(2):
    for ri in range(2): a(f"ds_write_b128 v{146+o}, {vr(D2+8*o+4*ri,4)} offset:{(1-ri)*APITCH}")
OPITCH = 272
a(f"v_mul_u32_u24 v148, {OPITCH}, v2"); a("v_lshl_add_u32 v148, v6, 1, v148")
a(f"s_mul_i32 s58, {WAVE}, {8*OPITCH}"); a(f"s_add_u32 s58, s58, 32768"); a("v_add_u32 v148, s58, v148")
a(f"v_mul_u32_u24 v149, {OPITCH}, v3"); a("v_and_b32 v6, 15, v0"); a("v_lshl_add_u32 v149, v6, 4, v149"); a("v_add_u32 v149, s58, v149")
a("v_lshrrev_b32 v150, 5, v0"); a("v_lshlrev_b32 v150, 15, v150"); a("v_bfe_u32 v4, v0, 4, 1"); a("v_lshl_add_u32 v150, v4, 20, v150"); a("v_lshl_add_u32 v150, v6, 4, v150")
a("v_and_b32 v2, 3, v0"); a("v_lshlrev_b32 v2, 3, v2")
a(f"s_lshr_b32 s63, {RHO}, 2")
a("s_lshl_b32 s60, s63, 7"); a(f"s_lshl_b32 s58, {WAVE}, 5"); a("s_add_u32 s60, s60, s58"); a(f"s_add_u32 s60, s60, {F4}")
poll_issue(2, "s60", 252)
a("s_lshl_b32 s57, s63, 15"); a(f"s_lshl_b32 s58, {WAVE}, 13"); a("s_add_u32 s57, s57, s58")
a(f"s_and_b32 s58, {RHO}, 3"); a("s_lshl_b32 s58, s58, 7"); a("s_add_u32 s57, s57, s58"); a(f"s_add_u32 s20, s57, {PB}")
for k in range(1, 4): a(f"s_add_u32 s{20+k}, s20, {(k>>1)*64*32768 + (k&1)*4096}")
a(f"s_lshr_b32 s57, {RHO}, 5"); a("s_lshl_b32 s57, s57, 7"); a(f"s_and_b32 s58, {RHO}, 31"); a("s_add_u32 s57, s57, s58"); a("s_lshl_b32 s57, s57, 10")
a(f"s_lshl_b32 s58, {WAVE}, 8"); a("s_add_u32 s28, s57, s58"); a(f"s_add_u32 s29, s28, {64*1024}")
a("s_mov_b32 s30, 0x00003f80"); a("s_mov_b32 s31, 0x3f800000")
a("s_waitcnt lgkmcnt(0)")
a("s_barrier")
FA = 64
for u in range(2):
    for k in range(2): a(f"ds_read_b128 {vr(FA+8*u+4*k,4)}, v7 offset:{u*256 + k*32}")
stamp(13)
poll_check(2, "s60", 252, 0)
stamp(14)
PL = 80
for k in range(4): a(f"buffer_load_dwordx4 {vr(PL+4*k,4)}, v5, {sWS}, s{20+k} offen sc1")
a("s_waitcnt lgkmcnt(0)")
for k in range(4):
    a(f"s_waitcnt vmcnt({3-k})")
    u = k & 1
    for d in range(4):
        a(f"v_dot2c_f32_bf16 v{FA+8*u+2*d}, s30, v{PL+4*k+d}"); a(f"v_dot2c_f32_bf16 v{FA+8*u+2*d+1}, s31, v{PL+4*k+d}")
for u in range(2):
    for d in range(4): a(f"v_cvt_pk_bf16_f32 v{112+4*u+d}, v{FA+8*u+2*d}, v{FA+8*u+2*d+1}")
    a(f"ds_write2_b64 v148, {vr(112+4*u,2)}, {vr(114+4*u,2)} offset0:{16*u} offset1:{16*u+2}")
a("s_waitcnt lgkmcnt(0)")
a(f"ds_read_b128 {vr(120,4)}, v149"); a(f"ds_read_b128 {vr(124,4)}, v149 offset:{4*OPITCH}")
a("s_waitcnt lgkmcnt(1)")
a(f"buffer_store_dwordx4 {vr(120,4)}, v150, {sOUT}, s28 offen")
a("s_waitcnt lgkmcnt(0)")
a(f"buffer_store_dwordx4 {vr(124,4)}, v150, {sOUT}, s29 offen")
a("s_or_b32 s57, s2, s46")
a("s_cmp_lg_u32 s57, 0")
a("s_cbranch_scc1 Lnotag")
a(f"s_mov_b32 s60, {TAG}")
flag_c("s60")
a.label("Lnotag")
warm(None)
if DEBUG:
    a("s_waitcnt vmcnt(0)")
    stamp(15)
if opt("x_hold", 0):
    a.label("Lhold")
    a("s_memrealtime s[20:21]"); a("s_waitcnt lgkmcnt(0)"); a("s_sub_u32 s20, s20, s70"); a(f"s_cmp_lt_u32 s20, {opt('x_hold',0)}"); a("s_cbranch_scc1 Lhold")
dump_stamps(0, opt("sw", 0))
if "--dbg" in sys.argv:
    a("s_cmp_lg_u32 s2, 5"); a("s_cbranch_scc1 Lend")
    a(f"s_cmp_lg_u32 {WAVE}, 0"); a("s_cbranch_scc1 Lend")
    a("s_load_dwordx2 s[20:21], s[0:1], 72")
    a("s_waitcnt lgkmcnt(0)")
    for i in range(16):
        a(f"s_sub_u32 s57, s{70+2*i}, s70"); a(f"v_mov_b32 v{32+i}, s57")
    a("v_mov_b32 v2, 0")
    a("s_mov_b64 exec, 1")
    for i in range(4): a(f"global_store_dwordx4 v2, v[{32+4*i}:{35+4*i}], s[20:21] offset:{16*i}")
a.label("Lend")
a("s_endpgm")
while cold: cold.pop(0)()
a.label("Ltab")
a.label("Lcode_end")

a.fix()
print("layout (widened, nops, pads, bytes):", a.layout({"0": "Lwret", "1": "Lwret"} if WARM else {}), file=sys.stderr)
bad = a.check_edges()
slow = {l.text[:-1]: [1] for l in a.L if l.label and ((l.text.startswith("Lcs") and "_" not in l.text) or (l.text.startswith("Lpa") and not l.text.startswith("Lpad")))}
base = {}
for name, dec in (("gemmC", base), ("gemmC-slow", dict(slow, **base)),
                  ("helpC", dict(slow, **{"Lhelper":[1], "Lhl":[1,0], "Lnopf":[1], "Lk0":[1], "Lnotag":[1]})),
                  ("gemmC-ext", {"Lext_slow":[1], "Lext_lp":[1,0]}),
                  ("aw", {"Lawld":[1]}),
                  ("awh", {"Lawld":[1], "Law_h":[1], "Law_nocs":[1], "Law_nob":[1], "Lcs_again":[1,0]}),
                  ("ldx", {"Lloader":[1], "Lld_pf":[1], "Lld_issue":[1,1,1], "Lld_tail":[0,0,0,1], "Lld_noe":[0,1,1,1], "Lld_noz":[1,0,1,1], "Lld_done":[0,0,0,1], "Lld_nx":[1,1,1]}),
                  ("ldw", dict(slow, **{"Lloader":[1], "Lld_w":[1], "Lld_pf":[1], "Lld_issue":[1,1,1], "Lld_tail":[0,0,0,1], "Lld_noe":[0,1,1], "Lld_noz":[1,0,1], "Lld_nx":[1,1,0]})),
                  ("ldh", {"Lloader":[1], "Lhelper_loader":[1], "Lld_noz":[1]})):
    seq = a.path(dec)
    nb = sum(1 for i in seq if i.op == "s_barrier")
    print(name, "instrs", len(seq), "barriers", nb, file=sys.stderr)
    bad += a.check_waits(seq)
if bad: print("CHECK FAILURES:", bad, file=sys.stderr)
hdr = open("parallel_sum__spectral_gfnet__mixer_channel_mlp__prompt.s.ref").read().split("; Override")[0]
out = hdr + f"; @launch grid=(256,1,1) block=(512,1,1) lds={LDS_BYTES}\n"
out += '.amdgcn_target "amdgcn-amd-amdhsa--gfx950"\n.text\n'
out += f".globl {NAME}\n.p2align 8\n.type {NAME},@function\n{NAME}:\n" + a.text().replace("Ltab:\nLcode_end:", ".type Ltab,@object\nLtab:\n.long " + ", ".join(str(k) for k in range(16)) + "\nLcode_end:") + "\n"
out += f""".section .rodata,"a"
.p2align 6
.amdhsa_kernel {NAME}
  .amdhsa_next_free_vgpr 256
  .amdhsa_next_free_sgpr 102
  .amdhsa_accum_offset 256
  .amdhsa_group_segment_fixed_size 0
  .amdhsa_kernarg_size 88
  .amdhsa_user_sgpr_count 2
  .amdhsa_user_sgpr_kernarg_segment_ptr 1
  .amdhsa_system_sgpr_workgroup_id_x 1
.end_amdhsa_kernel
"""
fn = [x for x in sys.argv[1:] if not x.startswith("--")][0]
open(fn, "w").write(out)
```

```python
import sys, math, struct
sys.path.insert(0, "work")
from asmlib import *
NAME = "parallel_sum__spectral_gfnet__mixer_channel_mlp__prompt_kernel"
DEBUG = "--stamps" in sys.argv
CLK = "s_memtime" if "--cyc" in sys.argv else "s_memrealtime"
def opt(name, default):
    for x in sys.argv:
        if x.startswith("--" + name + "="): return int(x.split("=")[1], 0)
    return default
def f2u(x): return "0x%08x" % struct.unpack("<I", struct.pack("<f", x))[0]

TAG = 0x0
F1, FW, F2, F3, F4 = 0x1000, 0x3000, 0xA000, 0x6000, 0x8000
SB = 0x80000
STAMPS = 0x20000
CS2 = 0x18000
CSB = 0x40000
ZB, WT, YB, HB, PB = 0x100000, 0x340000, 0x580000, 0x800000, 0x1000000
GP = 8192 + opt('gpad', 128)
WS_BYTES = 0x1800000
XR = 131072
ST = XR + 8192
ST2 = ST + 8192
ST3 = ST2 + 8192
CT = ST2 + 4096
cFREE, cRWF, cREC = 16, 32, 64
cFULL = 256
WTL = 114688
LDS_BYTES = 163840
SPIN_MAX = opt('spin', 400000)

a = Asm()
sX, sW, sWS, sOUT = "s[4:7]", "s[8:11]", "s[12:15]", "s[16:19]"
sTAG = "s[42:43]"
XCD, IDX, WAVE, R_, JL, HF, RHO, KAP = "s44", "s45", "s46", "s47", "s48", "s49", "s50", "s51"
ONES = "s56"
VCT = 254
G1ST = "--g1st" in sys.argv
incw = [False]
def stamp(i, force=False):
    if G1ST and incw[0] and not force and i not in (2, 3, 15): return
    if DEBUG: a(f"{CLK} s[{70+2*i}:{71+2*i}]")
def dstamp(sreg, lo, hi, base):
    if not DEBUG or "--dst" not in sys.argv: return
    a("s_waitcnt lgkmcnt(0)")
    a(f"{CLK} s[52:53]")
    a("s_waitcnt lgkmcnt(0)")
    for k in range(lo, hi+1):
        i = base + k - lo
        a(f"s_cmp_eq_u32 {sreg}, {k}")
        a(f"s_cselect_b64 s[{70+2*i}:{71+2*i}], s[52:53], s[{70+2*i}:{71+2*i}]")
def dump_stamps(role, wave):
    if not DEBUG or opt("probe", -1) >= 0: return
    lbl = newlbl("ds")
    a(f"s_cmp_lg_u32 {WAVE}, {wave}")
    a(f"s_cbranch_scc1 {lbl}")
    a("s_waitcnt vmcnt(0) lgkmcnt(0)")
    for i in range(32): a(f"v_mov_b32 v{32+i}, s{70+i}")
    a("v_mov_b32 v2, 0")
    a(f"s_lshl_b32 s57, s2, 7")
    a(f"s_add_u32 s57, s57, {STAMPS + role*0x8000}")
    a("s_mov_b64 exec, 1")
    for i in range(8): a(f"buffer_store_dwordx4 v[{32+4*i}:{35+4*i}], v2, {sWS}, s57 offen offset:{16*i}")
    a("s_mov_b64 exec, -1")
    a.label(lbl)
WARM = opt("warm", 0)
wid = [0]
def warm(c):
    if not WARM: return
    wid[0] += 1
    a.label(f"Lwarm_on_{c}_{wid[0]}" if c is not None else f"Lwarm_off_{wid[0]}")
def vr(b, n): return f"v[{b}:{b+n-1}]"
uid = [0]
def newlbl(p): uid[0] += 1; return f"L{p}{uid[0]}"

cold = []
def flag_store(soff_reg, vtmp):
    a(f"v_mov_b32 v{vtmp}, s42"); a(f"v_mov_b32 v{vtmp+1}, s43"); a(f"v_mov_b32 v{vtmp+2}, 0")
    a("s_mov_b64 exec, 1")
    a(f"buffer_store_dwordx2 {vr(vtmp,2)}, v{vtmp+2}, {sWS}, {soff_reg} offen sc1")
    a("s_mov_b64 exec, -1")
def poll_issue(vaddr, soff, vd, n=2):
    a(f"buffer_load_dwordx{n} {vr(vd,n)}, v{vaddr}, {sWS}, {soff} offen sc1")
def poll_check(vaddr, soff, vd, vmwait, n=2, tags=None, sleep=2):
    again = newlbl("pa"); done = newlbl("pd")
    tags = tags or [n-2]
    def cmp():
        a(f"v_cmp_ne_u64 vcc, {sTAG}, {vr(vd+tags[0],2)}")
        if len(tags) > 1:
            a(f"v_cmp_ne_u64 s[52:53], {sTAG}, {vr(vd+tags[1],2)}")
            a("s_nop 0")
            a("s_or_b64 vcc, vcc, s[52:53]")
        else:
            a("s_nop 0")
            a("s_cmp_lg_u64 vcc, 0")
    a(f"s_waitcnt vmcnt({vmwait})")
    cmp()
    a(f"s_cbranch_scc1 {again}")
    a.label(done)
    def slow():
        lp = newlbl("pl")
        a.label(again)
        a("s_mov_b32 s58, 0")
        a.label(lp)
        a(f"s_sleep {sleep}")
        poll_issue(vaddr, soff, vd, n)
        a("s_add_u32 s58, s58, 1")
        a("s_waitcnt vmcnt(0)")
        a(f"s_cmp_ge_u32 s58, {SPIN_MAX}")
        a(f"s_cbranch_scc1 {done}")
        cmp()
        a(f"s_cbranch_scc1 {lp}")
        a(f"s_branch {done}")
    cold.append(slow)
def lds_spin(vaddr, off, nw, thr, vt, sleep=0):
    lp = newlbl("ls")
    a.label(lp)
    if sleep: a(f"s_sleep {sleep}")
    a({1: f"ds_read_b32 v{vt}, v{vaddr} offset:{off}", 2: f"ds_read2_b32 {vr(vt,2)}, v{vaddr} offset0:{off//4} offset1:{off//4+64}", 4: f"ds_read_b128 {vr(vt,4)}, v{vaddr} offset:{off}", 6: f"ds_read_b128 {vr(vt,4)}, v{vaddr} offset:{off}"}[nw])
    if nw == 6: a(f"ds_read_b64 {vr(vt+4,2)}, v{vaddr} offset:{off+16}")
    a("s_waitcnt lgkmcnt(0)")
    if nw == 2: a(f"v_min_u32 v{vt}, v{vt}, v{vt+1}")
    if nw == 4: a(f"v_min3_u32 v{vt}, v{vt}, v{vt+1}, v{vt+2}"); a(f"v_min_u32 v{vt}, v{vt}, v{vt+3}")
    if nw == 6: a(f"v_min3_u32 v{vt}, v{vt}, v{vt+1}, v{vt+2}"); a(f"v_min3_u32 v{vt+3}, v{vt+3}, v{vt+4}, v{vt+5}"); a(f"v_min_u32 v{vt}, v{vt}, v{vt+3}")
    a(f"v_readfirstlane_b32 s58, v{vt}")
    a("s_add_u32 s55, s55, 1")
    a("s_lshr_b32 s54, s55, 24")
    a("s_lshl_b32 s54, s54, 8")
    a("s_or_b32 s58, s58, s54")
    a(f"s_cmp_lt_u32 s58, {thr}")
    a(f"s_cbranch_scc1 {lp}")

def lds_check(vflag, thr, vaddr, off, nw, pre=None, post=None, enter=None, sleep=1):
    slow_l = newlbl("cs"); back = newlbl("cb")
    a(f"v_readfirstlane_b32 s58, v{vflag}")
    if pre: pre()
    a(f"s_cmp_lt_u32 s58, {thr}")
    a(f"s_cbranch_scc1 {slow_l}")
    a.label(back)
    def slow():
        a.label(slow_l)
        if enter: enter()
        lds_spin(vaddr, off, nw, thr, vflag, sleep=sleep)
        if post: post()
        a(f"s_branch {back}")
    cold.append(slow)


FT = 8
def Fre(o, t): return vr(FT + (2*o+t)*6 + 2, 4)
def Fim(o, t): return vr(FT + (2*o+t)*6, 4)
def Fx(ri, o, t): return Fre(o, t) if ri == 0 else Fim(o, t)
H16 = "s59"
MASKHI = "s3"
JG = "s62"
WSOFF = opt("wsoff", 0); CX = opt("cx", 4)
def wsadj():
    if WSOFF: a(f"s_add_u32 s40, s40, {WSOFF}"); a("s_addc_u32 s41, s41, 0")
def tag_fix(): a("s_add_u32 s42, s42, 0x9e3779b9"); a("s_addc_u32 s43, s43, 0x7f4a7c15")
def gen_fm_fn(e, FM, FN, c, g4, t0, t1):
    e(f"v_and_b32 v{c}, 15, v0")
    e(f"v_lshrrev_b32 v{g4}, 4, v0"); e(f"v_lshlrev_b32 v{g4}, 2, v{g4}")
    if FN is not None:
        e(f"v_add_u32 v{t0}, {H16}, v{c}"); e(f"v_xor_b32 v{t1}, 16, v{t0}")
        e(f"v_cvt_f32_u32 v{FN}, v{t0}"); e(f"v_cvt_f32_u32 v{FN+1}, v{t1}")
    e(f"v_add_u32 v{t0}, {H16}, v{g4}"); e(f"v_xor_b32 v{t1}, 16, v{t0}")
    e(f"v_cvt_f32_u32 v{FM}, v{t0}"); e(f"v_cvt_f32_u32 v{FM+4}, v{t1}")
    for t in range(2):
        e(f"v_add_f32 v{FM+4*t+1}, 1.0, v{FM+4*t}"); e(f"v_add_f32 v{FM+4*t+2}, 2.0, v{FM+4*t}"); e(f"v_add_f32 v{FM+4*t+3}, 1.0, v{FM+4*t+2}")
def gen_mat(dst, vn, vm, tmp):
    for e in range(4): a(f"v_mul_f32 v{tmp+e}, v{vn}, v{vm+e}")
    for e in range(4): a(f"v_cos_f32 v{tmp+4+e}, v{tmp+e}")
    for e in range(4): a(f"v_sin_f32 v{tmp+e}, v{tmp+e}")
    a(f"v_cvt_pk_bf16_f32 v{dst+2}, v{tmp+4}, v{tmp+5}"); a(f"v_cvt_pk_bf16_f32 v{dst+3}, v{tmp+6}, v{tmp+7}")
    a(f"v_cvt_pk_bf16_f32 v{dst+4}, v{tmp}, v{tmp+1}"); a(f"v_cvt_pk_bf16_f32 v{dst+5}, v{tmp+2}, v{tmp+3}")
    a(f"v_xor_b32 v{dst}, 0x80008000, v{dst+4}"); a(f"v_xor_b32 v{dst+1}, 0x80008000, v{dst+5}")
def gen_tw(e, dc, ds, vn, vm, n):
    for k in range(n): e(f"v_mul_f32 v{ds+k}, v{vn}, v{vm+k}")
    for k in range(n): e(f"v_cos_f32 v{dc+k}, v{ds+k}")
    for k in range(n): e(f"v_sin_f32 v{ds+k}, v{ds+k}")
def gen_zaddr(e, dst, sbase, c, g4, t):
    e(f"v_add_u32 v{t}, {H16}, v{c}")
    e(f"v_lshl_add_u32 v{t}, v{g4}, 5, v{t}")
    e(f"v_xor_b32 v{t+1}, 16, v{t}")
    e(f"v_lshrrev_b32 v{t+3}, 5, v0")
    e(f"v_lshlrev_b32 v{t+2}, 6, v{t+3}"); e(f"v_sub_u32 v{t+2}, 32, v{t+2}")
    e(f"v_mul_u32_u24 v{t+3}, 0x4004, v{t+3}")
    for o in range(2): e(f"v_mad_i32_i24 v{dst+4*o}, v{t+o}, v{t+2}, v{t+3}")
    e(f"v_lshlrev_b32 v{t+2}, 5, v{t+2}")
    for o in range(2): e(f"v_add3_u32 v{dst+4*o+1}, v{dst+4*o}, v{t+2}, {sbase}")
    for o in range(2):
        for r in range(2, 4): e(f"v_add_u32 v{dst+4*o+r}, v{dst+4*o+r-1}, v{t+2}")
    for o in range(2): e(f"v_and_b32 v{dst+4*o}, 0x1fff, v{dst+4*o}")
    for o in range(2): e(f"v_add_u32 v{dst+4*o}, {sbase}, v{dst+4*o}")
def twiddle(e, re, im, c, s, n, tmp, conj):
    for p in range(0, n, 2):
        e(f"v_pk_mul_f32 {vr(tmp+p,2)}, {vr(im+p,2)}, {vr(s+p,2)}")
        e(f"v_pk_mul_f32 {vr(tmp+n+p,2)}, {vr(re+p,2)}, {vr(s+p,2)}")
    ng = " neg_lo:[0,0,1] neg_hi:[0,0,1]"
    for p in range(0, n, 2):
        e(f"v_pk_fma_f32 {vr(tmp+p,2)}, {vr(re+p,2)}, {vr(c+p,2)}, {vr(tmp+p,2)}" + (ng if conj else ""))
        e(f"v_pk_fma_f32 {vr(tmp+n+p,2)}, {vr(im+p,2)}, {vr(c+p,2)}, {vr(tmp+n+p,2)}" + ("" if conj else ng))
def packfrag(e, dst, lo, hi):
    e(f"v_cvt_pk_bf16_f32 v{dst}, v{lo}, v{lo+1}"); e(f"v_cvt_pk_bf16_f32 v{dst+1}, v{lo+2}, v{lo+3}")
    e(f"v_cvt_pk_bf16_f32 v{dst+2}, v{hi}, v{hi+1}"); e(f"v_cvt_pk_bf16_f32 v{dst+3}, v{hi+2}, v{hi+3}")

a("s_load_dwordx16 s[20:35], s[0:1], 0")
a("s_load_dwordx2 s[40:41], s[0:1], 80")
a("s_load_dwordx2 s[36:37], s[0:1], 64")
if DEBUG:
    a(f"{CLK} s[70:71]")
    for i in range(72, 102, 2): a(f"s_mov_b64 s[{i}:{i+1}], 0")
a("s_cmp_ge_u32 s2, 256")
a("s_cbranch_scc1 Lend")
a("s_getpc_b64 s[52:53]")
a.label("Lpc")
a("v_lshrrev_b32 v2, 6, v0")
a("v_and_b32 v0, 63, v0")
a(f"s_and_b32 {XCD}, s2, 7")
a(f"v_readfirstlane_b32 {WAVE}, v2")
a(f"s_lshr_b32 {IDX}, s2, 3")
a(f"s_and_b32 {R_}, {IDX}, 3")
a("s_mov_b32 s54, Lcode_end-Lpc")
a("s_mov_b32 s55, 0x20000")
a(f"s_cmp_lg_u32 {WAVE}, 7")
a("s_cbranch_scc1 Lnopf")
a("v_lshlrev_b32 v2, 7, v0")
a(f"s_lshl_b32 s57, {R_}, 13")
a("buffer_load_dword v255, v2, s[52:55], s57 offen")
a.label("Lnopf")
a("v_lshlrev_b32 v1, 4, v0")
a(f"s_lshr_b32 {JL}, {IDX}, 2")
a(f"s_and_b32 {HF}, {XCD}, 1")
a(f"s_and_b32 s57, {XCD}, 6")
a(f"s_lshl_b32 s57, s57, 1")
a(f"s_add_u32 {R_}, {R_}, s57")
a(f"s_lshl_b32 {RHO}, {R_}, 4"); a(f"s_add_u32 {RHO}, {RHO}, {JL}"); a(f"s_lshl_b32 s57, {HF}, 3"); a(f"s_add_u32 {RHO}, {RHO}, s57")
a("s_mov_b32 s11, 0x20000")
a(f"s_mul_i32 {JG}, {HF}, 7"); a(f"s_add_u32 {JG}, {JG}, {JL}")
a(f"v_mov_b32 v{VCT}, {CT}")
a(f"s_and_b32 s57, {WAVE}, 6")
a("s_cmp_eq_u32 s57, 4")
a("s_cbranch_scc1 Lloader")
a(f"s_lshl_b32 {KAP}, {XCD}, 5")
a(f"s_add_u32 {KAP}, {KAP}, {IDX}")
a(f"s_mov_b32 s14, {WS_BYTES}"); a("s_mov_b32 s15, 0x20000")
a(f"s_mov_b32 {MASKHI}, 0xffff0000")
a(f"s_cmp_ge_u32 {WAVE}, 4")
a("s_cbranch_scc1 Lawld")
a(f"s_lshr_b32 s57, {RHO}, 5"); a("s_lshl_b32 s57, s57, 7"); a(f"s_and_b32 s58, {RHO}, 31"); a("s_add_u32 s57, s57, s58")
a(f"s_lshl_b32 s58, {WAVE}, 5"); a("s_add_u32 s57, s57, s58"); a("s_lshl_b32 s57, s57, 10")
a(f"s_lshl_b32 s61, {WAVE}, 11"); a(f"s_add_u32 s61, s61, {XR}")
a("s_mov_b32 m0, s61")
a("s_add_u32 s58, s57, 0xffc00")
a("s_mov_b32 s10, 2097152")
a("v_mov_b64 v[4:5], 0"); a("v_mov_b64 v[6:7], 0"); a(f"v_add_u32 v3, v1, v{VCT}")
a("ds_write_b128 v3, v[4:7]")
a("s_waitcnt lgkmcnt(0)")
a("s_mov_b32 s8, s20"); a("s_mov_b32 s9, s21")
for k in range(2): a(f"buffer_load_dwordx4 v1, {sW}, s{57+k} offen offset:{1024*k} lds")
a("s_mov_b32 s4, s30"); a("s_mov_b32 s5, s31"); a("s_mov_b32 s6, 3584"); a("s_mov_b32 s7, 0x20000")
a("v_lshlrev_b32 v2, 1, v0"); a(f"s_lshl_b32 s57, {JG}, 8"); a(f"s_and_b32 s58, {WAVE}, 1"); a("s_lshl_b32 s58, s58, 7"); a("s_add_u32 s57, s57, s58")
a(f"buffer_load_ushort v198, v2, {sX}, s57 offen")
wsadj()
a(f"s_load_dwordx2 {sTAG}, s[40:41], {TAG}")
a("s_barrier")
a("s_branch Lcw")
a.label("Lawld")
RR = "s63"
B1V = 218; VAW = 219; T0 = 220
a(f"s_and_b32 {RR}, {WAVE}, 1")
a("s_waitcnt lgkmcnt(0)")
wsadj()
if opt("ftouch", 1):
    a("s_mov_b32 s12, s40"); a("s_mov_b32 s13, s41")
    a(f"s_lshl_b32 s57, s2, 1"); a(f"s_add_u32 s57, s57, {RR}"); a("s_lshl_b32 s57, s57, 7")
    a("v_mov_b32 v4, 0")
    a(f"buffer_load_dword v253, v4, {sWS}, s57 offen sc1")
a(f"s_load_dwordx2 {sTAG}, s[40:41], {TAG}")
a("s_barrier")
a("s_branch Law")

a.label("Lloader")
a(f"s_and_b32 s57, {WAVE}, 1"); a("s_lshl_b32 s56, s57, 14")
a("s_lshl_b32 s38, s57, 8"); a(f"s_add_u32 s38, s38, {CT+cFULL}")
a("s_mov_b64 s[16:17], s[52:53]"); a("s_mov_b32 s18, s54"); a("s_mov_b32 s19, 0x20000")
a("v_mov_b32 v17, Ltab-Lpc"); a("v_mov_b64 v[14:15], 0"); a("v_mov_b32 v16, 0")
a(f"s_mov_b32 s14, {WS_BYTES}"); a("s_mov_b32 s15, 0x20000")
a(f"s_cmp_eq_u32 {JL}, 7")
a("s_cbranch_scc1 Lhelper_loader")
a(f"s_and_b32 s63, {IDX}, 3"); a("s_lshl_b32 s63, s63, 1"); a(f"s_add_u32 s63, s63, {JL}")
a(f"s_bfe_u32 s57, {XCD}, 0x10001"); a("s_add_u32 s63, s63, s57")
a(f"s_lshl_b32 s57, {HF}, 2"); a("s_add_u32 s63, s63, s57"); a("s_and_b32 s63, s63, 7")
a("s_mov_b32 s64, 8"); a("s_mov_b32 s65, 1"); a("s_mov_b32 s66, 0")
a(f"s_cmp_eq_u32 {WAVE}, 5")
a("s_cbranch_scc1 Lld_w")
a("v_lshrrev_b32 v6, 4, v0")
a("v_bfe_u32 v7, v0, 3, 1")
a("v_lshlrev_b32 v7, 20, v7")
a("v_lshl_add_u32 v7, v6, 15, v7")
a("v_and_b32 v8, 7, v0")
a("v_xor_b32 v8, v8, v6")
a("v_lshl_add_u32 v2, v8, 4, v7")
a("v_xor_b32 v3, 64, v2")
a("v_mov_b32 v4, v2"); a("v_mov_b32 v5, v3")
a(f"s_lshr_b32 s59, {R_}, 1"); a("s_lshl_b32 s59, s59, 17")
a(f"s_and_b32 s57, {R_}, 1"); a("s_lshl_b32 s57, s57, 14"); a("s_add_u32 s59, s59, s57")
a("s_mov_b32 s60, 128"); a("s_mov_b32 s61, 4096")
a("s_mov_b32 s10, 2097152")
a("s_waitcnt lgkmcnt(0)")
a("s_mov_b32 s8, s20"); a("s_mov_b32 s9, s21")
a("s_branch Lld_go")
a.label("Lld_w")
a("v_bfe_u32 v6, v0, 2, 2")
a("v_mul_u32_u24 v6, 3584, v6")
a("v_lshrrev_b32 v7, 4, v0")
a("v_lshl_add_u32 v6, v7, 6, v6")
a("v_and_b32 v7, 3, v0")
a("v_lshl_add_u32 v2, v7, 4, v6")
for j in range(1, 4): a(f"v_add_u32 v{2+j}, {j*(4*3584-1024)}, v2")
a(f"s_lshl_b32 s59, {JG}, 8")
a(f"s_mov_b32 s60, {64*3584}"); a(f"s_mov_b32 s61, {16*3584}")
a("s_mov_b32 s10, 1835008")
a("s_waitcnt lgkmcnt(0)")
a("s_mov_b32 s8, s28"); a("s_mov_b32 s9, s29")
a.label("Lld_go")
wsadj()
a("s_barrier")
stamp(1)
def grp(first=False):
    if not first:
        a("s_add_u32 s68, s68, 4096"); a("s_mov_b32 m0, s68"); a("s_add_u32 s67, s67, s61")
    for j in range(4): a(f"buffer_load_dwordx4 v{2+j}, {sW}, s67 offen offset:{1024*j} lds")
def issue():
    a("s_mul_i32 s67, s63, s60"); a("s_and_b32 s68, s66, 3"); a("s_lshl_b32 s68, s68, 15"); a("s_add_u32 s68, s68, s56")
    a("s_mov_b32 m0, s68"); a("s_add_u32 s67, s67, s59")
    grp(True)
    a("s_add_u32 s63, s63, s65"); a("s_sub_u32 s57, s63, s64"); a("s_cmp_ge_u32 s63, s64"); a("s_cselect_b32 s63, s57, s63")
    grp()
    a("s_add_u32 s66, s66, 1"); a("s_lshl_b32 s39, s66, 2")
    grp(); grp()
def dflag(val):
    a("s_mov_b32 m0, s38"); a("s_nop 0")
    a(f"buffer_load_dword v17, {sOUT}, {val} offen lds")
a.label("Lld_issue")
issue()
dflag("s39")
a("s_cmp_eq_u32 s66, 1")
a("s_cbranch_scc1 Lld_ts")
a("s_cmp_lt_u32 s66, 4")
a("s_cbranch_scc1 Lld_issue")
a("s_cmp_eq_u32 s66, 4")
a("s_cbranch_scc1 Lld_pf")
a("s_cmp_eq_u32 s66, 8")
a("s_cbranch_scc1 Lld_tail")
a("s_barrier")
a("s_branch Lld_issue")
def tail_setup():
    a(f"s_load_dwordx2 {sTAG}, s[40:41], {TAG}")
    a("s_mov_b32 s12, s40"); a("s_mov_b32 s13, s41")
    a(f"s_lshr_b32 s57, s56, 4")
    a(f"s_lshl_b32 s21, {R_}, 11"); a("s_add_u32 s21, s21, s57"); a(f"s_add_u32 s21, s21, {SB}")
    a(f"s_add_u32 s22, s21, {0x8000-2048}")
    a(f"s_add_u32 s23, s57, {ST3}")
    a(f"s_lshl_b32 s24, {JG}, 14"); a(f"s_lshr_b32 s58, {R_}, 2"); a("s_lshl_b32 s58, s58, 12"); a("s_add_u32 s24, s24, s58")
    a("s_add_u32 s24, s24, s57"); a(f"s_add_u32 s24, s24, {CSB}")
    a(f"s_lshl_b32 {KAP}, {XCD}, 5"); a(f"s_add_u32 {KAP}, {KAP}, {IDX}")
    a(f"s_lshr_b32 s3, {KAP}, 7"); a("s_lshl_b32 s3, s3, 11"); a("s_add_u32 s3, s3, s57"); a(f"s_add_u32 s3, s3, {F1}")
    a("v_bfe_u32 v7, v0, 2, 2"); a("v_lshlrev_b32 v7, 10, v7")
    a("v_lshrrev_b32 v16, 5, v0"); a("v_lshl_add_u32 v7, v16, 12, v7")
    a("v_bfe_u32 v6, v0, 4, 1"); a("v_lshl_add_u32 v7, v6, 6, v7")
    a("v_and_b32 v6, 3, v0"); a("v_lshl_add_u32 v14, v6, 4, v7")
    a(f"s_mul_i32 s25, {HF}, {896*1024}")
    a(f"s_xor_b32 s58, {JL}, {CX}"); a(f"s_lshl_b32 s58, s58, 7"); a("s_add_u32 s25, s25, s58")
    a(f"s_and_b32 s27, {IDX}, 3"); a("s_lshl_b32 s27, s27, 1"); a(f"s_add_u32 s27, s27, {JL}"); a(f"s_and_b32 s57, {WAVE}, 1"); a("s_add_u32 s27, s27, s57")
    for _ in range(2): a("s_sub_u32 s57, s27, 7"); a("s_cmp_ge_u32 s27, 7"); a("s_cselect_b32 s27, s57, s27")
    a("v_lshlrev_b32 v16, 5, v16"); a("v_bfe_u32 v6, v0, 1, 4"); a("v_add_u32 v16, v16, v6")
    a(f"v_mul_u32_u24 v16, {GP}, v16"); a("v_and_b32 v6, 1, v0"); a("v_lshl_add_u32 v16, v6, 4, v16")
    a("s_lshr_b32 s20, s56, 7"); a(f"s_mul_i32 s20, s20, {GP}"); a(f"s_lshl_b32 s58, {KAP}, 5"); a("s_add_u32 s20, s20, s58"); a(f"s_add_u32 s20, s20, {ZB}")
    a("v_and_b32 v15, 31, v0"); a("v_lshlrev_b32 v15, 3, v15")
    a(f"s_lshr_b32 s26, {KAP}, 6"); a("s_lshl_b32 s26, s26, 8"); a(f"s_add_u32 s26, s26, {FW}")
a.label("Lld_ts")
tail_setup()
a(f"s_cmp_eq_u32 {JL}, 7")
a("s_cbranch_scc0 Lld_issue")
lds_spin(VCT, cFREE, 4, 8, 20, sleep=4)
a("s_mov_b32 s66, 8")
a("s_branch Lld_tail2")
a.label("Lld_pf")
a("v_min_u32 v9, 31, v0"); a("v_lshlrev_b32 v9, 7, v9")
a(f"s_mul_i32 s57, {XCD}, 28"); a(f"s_add_u32 s57, s57, {IDX}")
a("s_lshl_b32 s58, s57, 13"); a("s_lshr_b32 s57, s56, 2"); a("s_add_u32 s58, s58, s57")
a("s_mov_b32 s4, s32"); a("s_mov_b32 s5, s33"); a("s_mov_b32 s6, 1835008"); a("s_mov_b32 s7, 0x20000")
if opt("npf", 1): a(f"buffer_load_dword v27, v9, {sX}, s58 offen")
a("s_barrier")
a("s_branch Lld_issue")
a.label("Lld_tail")
stamp(2)
a("s_mov_b32 s12, s40"); a("s_mov_b32 s13, s41")
a("s_mov_b32 m0, s23"); a("s_add_u32 s23, s23, 4096")
a(f"buffer_load_dwordx4 v1, {sWS}, s21 offen sc1 lds")
a(f"buffer_load_dwordx4 v1, {sWS}, s22 offen offset:2048 sc1 lds")
a("s_mov_b32 m0, s23"); a("s_nop 0")
a(f"buffer_load_dwordx4 v1, {sWS}, s24 offen sc1 lds")
a(f"buffer_load_dwordx4 v1, {sWS}, s24 offen offset:2048 sc1 lds")
dflag(36)
a.label("Lld_tail2")
poll_issue(1, "s3", 8, 4)
a("v_mov_b32 v2, v14")
for j in range(1, 4): a(f"v_add_u32 v{2+j}, {j*(8192-1024)}, v2")
a("s_mov_b32 s8, s32"); a("s_mov_b32 s9, s33"); a("s_mov_b32 s10, 1835008")
a("s_mov_b32 s59, s25"); a(f"s_mov_b32 s60, {128*1024}"); a(f"s_mov_b32 s61, {32*1024}")
a("s_mov_b32 s63, s27"); a("s_mov_b32 s64, 7"); a("s_mov_b32 s65, 2")
a("s_waitcnt lgkmcnt(0)")
tag_fix()
a.label("Lld_w2")
issue()
a(f"s_cmp_lg_u32 s66, {opt('zat', 9)}")
a("s_cbranch_scc1 Lld_noz")
poll_check(1, "s3", 8, 16, 4, tags=[0, 2], sleep=8)
a("s_lshr_b32 s68, s56, 3"); a(f"s_add_u32 s68, s68, {ST}")
for k in range(4):
    a(f"s_add_u32 m0, s68, {1024*(k>>1) + 4096*(k&1)}")
    a(f"s_add_u32 s57, s20, {(16*(k>>1) + 64*(k&1))*GP}")
    a(f"buffer_load_dwordx4 v16, {sWS}, s57 offen sc1 lds")
dflag(40)
stamp(3)
a.label("Lld_noz")
a("s_cmp_eq_u32 s66, 12")
a("s_cbranch_scc1 Lld_done")
a("s_sub_u32 s39, s66, 3")
a(f"s_add_u32 s57, s66, {WAVE}")
a("s_cmp_lg_u32 s57, 16")
a("s_cbranch_scc1 Lld_nx")
poll_issue(15, "s26", 12, 2)
lds_spin(VCT, cFREE, 4, "s39", 20, sleep=1)
poll_check(15, "s26", 12, 0, 2, sleep=8)
a(f"s_mul_i32 s67, {KAP}, {GP}"); a(f"s_add_u32 s67, s67, {WT}")
for g in range(2):
    a(f"s_mov_b32 m0, {WTL + 4096*g}"); a("s_nop 0")
    for j in range(4): a(f"buffer_load_dwordx4 v1, {sWS}, s67 offen offset:{1024*j} sc1 lds")
    if g == 0: a("s_add_u32 s67, s67, 4096")
dflag(44)
a("s_branch Lld_done")
a.label("Lld_nx")
lds_spin(VCT, cFREE, 4, "s39", 20, sleep=1)
a("s_branch Lld_w2")
a.label("Lld_done")
stamp(5)
a("s_barrier")
a("s_barrier")
a("s_waitcnt vmcnt(0) lgkmcnt(0)")
stamp(4)
dump_stamps(1, 4)
dump_stamps(3, 5)
a("s_endpgm")
def helper_loader():
    a.label("Lhelper_loader")
    a("v_mov_b64 v[2:3], 0"); a("v_mov_b64 v[4:5], 0")
    a(f"s_lshl_b32 s67, {XCD}, 2"); a(f"s_and_b32 s57, {IDX}, 3"); a("s_add_u32 s67, s67, s57")
    a("s_mul_i32 s67, s67, 32896")
    a("s_mov_b32 s10, 1052672")
    a(f"s_cmp_eq_u32 {WAVE}, 5")
    a("s_cselect_b32 s68, 36864, 0")
    a("s_waitcnt lgkmcnt(0)")
    a("s_cselect_b32 s8, s24, s22"); a("s_cselect_b32 s9, s25, s23")
    wsadj()
    a("s_barrier")
    stamp(1)
    a("s_mov_b32 s69, 9")
    a.label("Lig2")
    a("s_mov_b32 m0, s68")
    a("s_add_u32 s68, s68, 4096")
    for j in range(4): a(f"buffer_load_dwordx4 v1, {sW}, s67 offen offset:{1024*j} lds")
    a("s_add_u32 s67, s67, 4096")
    a("s_sub_u32 s69, s69, 1")
    a("s_cmp_lg_u32 s69, 0")
    a("s_cbranch_scc1 Lig2")
    dflag(4)
    a("s_branch Lld_ts")
helper_loader()

a.label("Law")
if WARM:
    a("s_mov_b64 exec, 0")
    a(f"s_cmp_eq_u32 {RR}, 0")
    a("s_cbranch_scc1 Lchain_0")
    a("s_branch Lchain_1")
    a.label("Lwret")
    a("s_mov_b64 exec, -1")
    stamp(11)
a(f"s_setprio {opt('awprio', 3)}")
a("s_mov_b32 s12, s40"); a("s_mov_b32 s13, s41")
RC = 72
a(f"s_lshl_b32 s60, {RR}, 12"); a(f"s_add_u32 s64, s60, {ST3}"); a("v_add_u32 v7, s64, v1")
a(f"s_mul_i32 s66, {RHO}, {GP}"); a("s_add_u32 s66, s66, s60"); a(f"s_add_u32 s66, s66, {ZB}")
a(f"s_lshl_b32 s60, {RR}, 11"); a(f"s_lshl_b32 s58, {RHO}, 3"); a("s_add_u32 s60, s60, s58"); a(f"s_add_u32 s60, s60, {F1}")
a("v_and_b32 v5, 7, v0"); a(f"v_lshl_add_u32 v6, v5, 3, v{VCT}")
a(f"s_lshl_b32 s67, {RHO}, 7"); a(f"s_lshl_b32 s58, {RR}, 15"); a("s_add_u32 s67, s67, s58"); a(f"s_add_u32 s67, s67, {SB}")
a("s_waitcnt lgkmcnt(0)")
tag_fix()
a(f"v_mov_b32 v{RC+2}, s42"); a(f"v_mov_b32 v{RC+3}, s43")
stamp(2)
lds_spin(VCT, cRWF, 4, 1, 20, sleep=1)
STV = 100; EB = 104; KC = 108; t = 112
a(f"ds_read_b64 {vr(STV,2)}, v6 offset:{cREC}")
C0 = -2*math.sqrt(2/math.pi)*math.log2(math.e); C1 = C0*0.044715
a(f"v_mov_b32 v{EB+3}, s42")
a("s_waitcnt lgkmcnt(0)")
a(f"v_rcp_f32 v{KC+2}, v{STV+1}")
a(f"v_mul_f32 v{KC}, v{STV+1}, v{STV+1}")
a(f"v_cvt_pk_bf16_f32 v{EB+1}, v{STV}, v{KC+2}")
a(f"v_mul_f32 v{KC+1}, {f2u(C0)}, v{STV+1}"); a(f"v_mul_f32 v{KC}, v{KC}, v{STV+1}")
a(f"v_lshlrev_b32 v{t+1}, 16, v{EB+1}"); a(f"v_and_b32 v{t+2}, {MASKHI}, v{EB+1}")
a(f"v_sub_f32 v{t+1}, v{STV}, v{t+1}"); a(f"v_sub_f32 v{t+2}, v{KC+2}, v{t+2}")
a(f"v_mul_f32 v{KC}, {f2u(C1)}, v{KC}")
a(f"v_cvt_pk_bf16_f32 v{EB}, v{STV}, v{t+1}"); a(f"v_cvt_pk_bf16_f32 v{EB+2}, v{t+2}, 0")
a(f"s_cmp_eq_u32 {RR}, 0"); a("s_cselect_b64 vcc, 0, -1")
for k in range(3): a(f"v_cndmask_b32 v{EB+k}, v{EB+k}, v{KC+k}, vcc")
lds_spin(VCT, cRWF, 4, 2, 20, sleep=1)
for k in range(4): a(f"ds_read_b128 {vr(80+4*k,4)}, v7 offset:{1024*k}")
stamp(3)
ZFIRST = opt("zfirst", 1)
def zstores():
    a("s_mov_b64 exec, 0xff")
    a(f"buffer_store_dwordx4 {vr(EB,4)}, v1, {sWS}, s67 offen sc1")
    a("s_mov_b64 exec, -1")
    a("s_waitcnt lgkmcnt(0)")
    for k in range(4): a(f"buffer_store_dwordx4 {vr(80+4*k,4)}, v1, {sWS}, s66 offen offset:{1024*k} sc1")
    stamp(5)
if ZFIRST: zstores()
a(f"s_cmp_eq_u32 {JL}, 7")
a("s_cbranch_scc1 Law_nocs")
if opt("wpf", 0):
    a("v_min_u32 v8, 37, v0"); a("v_lshlrev_b32 v8, 7, v8")
    a(f"s_mul_i32 s57, {XCD}, 28"); a(f"s_add_u32 s57, s57, {IDX}"); a(f"s_mul_i32 s57, s57, {37*128}")
    a(f"s_cmp_eq_u32 {RR}, 1")
    a("s_cselect_b32 s8, s24, s22"); a("s_cselect_b32 s9, s25, s23"); a("s_mov_b32 s10, 1052672")
    a(f"buffer_load_dword v252, v8, {sW}, s57 offen")
a("v_lshrrev_b32 v9, 4, v0"); a("v_lshlrev_b32 v9, 11, v9")
a("v_bfe_u32 v5, v0, 2, 2"); a("v_lshl_add_u32 v9, v5, 6, v9"); a("v_and_b32 v5, 3, v0"); a("v_lshl_add_u32 v9, v5, 3, v9")
a(f"s_lshl_b32 s58, {RR}, 9"); a("s_add_u32 s57, s58, 16384")
a("v_add_u32 v9, s57, v9")
a(f"s_lshl_b32 s68, {JG}, 14"); a("s_add_u32 s68, s68, s58"); a(f"s_add_u32 s68, s68, {CSB}")
a(f"s_lshl_b32 s58, {R_}, 10"); a("s_add_u32 s68, s68, s58")
a("v_cmp_gt_u32 vcc, 16, v0")
for k in range(4): a(f"v_mov_b32 v{24+k}, 0x3f803f80")
for st in range(2):
    lds_spin(VCT, cFULL+256, 1, st + 1, 20, sleep=1)
    for kk in range(2):
        for fb in range(4):
            for j in range(2): a(f"ds_read_b64_tr_b16 {vr(128+16*kk+4*fb+2*j,2)}, v9 offset:{st*32768 + kk*8192 + j*1024 + (fb>>1)*256 + (fb&1)*32}")
    for kk in range(2):
        a(f"s_waitcnt lgkmcnt({8-8*kk})")
        for fb in range(4):
            d = vr(112+4*fb, 4)
            a(f"v_mfma_f32_16x16x32_bf16 {d}, v[24:27], {vr(128+16*kk+4*fb,4)}, {'0' if st+kk == 0 else d}")
a(f"v_cndmask_b32 v{RC}, v120, v112, vcc"); a(f"v_cndmask_b32 v{RC+1}, v124, v116, vcc")
stamp(7)
a("s_mov_b32 exec_hi, 0")
a(f"buffer_store_dwordx4 {vr(RC,4)}, v1, {sWS}, s68 offen sc1")
a("s_mov_b64 exec, -1")
a("s_waitcnt vmcnt(1)")
flag_store("s60", T0)
stamp(4)
for _ in range(opt("awb", 4 if DEBUG else 2)): a("s_barrier")
a("s_branch Law_end")
a.label("Law_nocs")
a("s_waitcnt vmcnt(0)")
flag_store("s60", T0)
stamp(6)
a.label("Law_end")
dump_stamps(2, 6)
a("s_endpgm")

a.label("Lcw")
incw[0] = True
ACC = 64
TW1c, TW1s = 152, 160
TW2c, TW2s = 168, 172
UVa, UVb = 176, 180
WIN = 200
FM, FN = 208, 216
VW, VY, VFR, VPK = 129, 130, 131, 128
FLG = 138
a("s_setprio 2")
a(f"s_mov_b32 {ONES}, 0x3f803f80")
a(f"s_and_b32 {H16}, {WAVE}, 1"); a(f"s_lshl_b32 {H16}, {H16}, 4")
a("s_mov_b32 s18, 2097152"); a("s_mov_b32 s19, 0x20000")
a("s_mov_b32 s12, s40"); a("s_mov_b32 s13, s41")
a("s_mov_b32 s16, s36"); a("s_mov_b32 s17, s37")
a(f"s_lshr_b32 s64, {WAVE}, 1")
a(f"s_lshl_b32 s58, {WAVE}, 2"); a(f"v_add_u32 v{VFR}, s58, v{VCT}")
gen_fm_fn(a, FM, FN, 132, 133, 4, 5)
a(f"v_mul_f32 v6, {f2u(1/32)}, v{FN}"); a(f"v_mul_f32 v7, {f2u(1/32)}, v{FN+1}")
for o in range(2):
    for t in range(2): gen_mat(FT + (2*o+t)*6, 6+o, FM+4*t, T0)
G16, TWRc, TWRs, ZA = 32, 40, 48, 56
a(f"v_cvt_f32_u32 v{T0+8}, v133")
a(f"v_add_f32 v{T0+9}, 1.0, v{T0+8}"); a(f"v_add_f32 v{T0+10}, 2.0, v{T0+8}"); a(f"v_add_f32 v{T0+11}, 1.0, v{T0+10}")
a("v_cvt_f32_u32 v6, v132"); a(f"v_mul_f32 v6, {f2u(1/16)}, v6")
gen_mat(G16, 6, T0+8, T0)
for o in range(2):
    a(f"v_mul_f32 v6, {f2u(1/512)}, v{FN+o}")
    gen_tw(a, TWRc+4*o, TWRs+4*o, 6, T0+8, 4)
a(f"s_lshl_b32 s57, {WAVE}, 3"); a(f"s_add_u32 s57, s57, {ST3}")
gen_zaddr(a, ZA, "s57", 132, 133, 4)
warm(0)
XF, SS, XU, D1, D2 = 64, 72, 80, 96, 112
a("v_lshlrev_b32 v4, 3, v0")
a(f"s_lshl_b32 s58, {H16}, 5"); a("s_add_u32 s58, s58, s61")
a("v_add_u32 v4, s58, v4"); a("v_xor_b32 v5, 512, v4")
for k in range(4): a(f"v_mov_b32 v{SS+k}, 0")
a("v_bfe_u32 v6, v0, 4, 1"); a(f"s_lshl_b32 s58, {WAVE}, 4"); a(f"s_add_u32 s58, s58, {CT+cREC}"); a("v_lshl_add_u32 v6, v6, 3, s58")
a("v_mov_b32 v7, 1")
if G1ST and not opt('kst', 0): stamp(1, True)
a("s_waitcnt vmcnt(0) lgkmcnt(0)")
for t in range(2):
    a(f"ds_read_b64_tr_b16 {vr(XF+4*t,2)}, v{4+t}")
    a(f"ds_read_b64_tr_b16 {vr(XF+4*t+2,2)}, v{4+t} offset:1024")
tag_fix()
if G1ST and not opt('kst', 0): stamp(13, True)
a("s_waitcnt lgkmcnt(0)")
for t in range(2):
    for d in range(2):
        for u in range(2):
            x = XF + 4*t + 2*u + d
            a(f"v_dot2c_f32_bf16 v{SS+u}, {ONES}, v{x}")
            a(f"v_dot2c_f32_bf16 v{SS+2+u}, v{x}, v{x}")
unl = []
for k in range(8):
    unl.append(f"v_lshlrev_b32 v{XU+2*k}, 16, v{XF+k}"); unl.append(f"v_and_b32 v{XU+2*k+1}, {MASKHI}, v{XF+k}")
def un(n):
    for _ in range(n):
        if unl: a(unl.pop(0))
un(3)
for b in (SS, SS+2): a(f"v_permlane16_swap_b32 v{b}, v{b+1}")
for b in (SS, SS+2): a(f"v_add_f32 v{b}, v{b}, v{b+1}")
for b in (SS, SS+2): a(f"v_mov_b32 v{b+1}, v{b}")
un(1)
for b in (SS, SS+2): a(f"v_permlane32_swap_b32 v{b}, v{b+1}")
for b in (SS, SS+2): a(f"v_add_f32 v{b}, v{b}, v{b+1}")
for sh in (8, 4, 2, 1):
    un(1)
    for b in (SS, SS+2): a(f"v_add_f32_dpp v{b}, v{b}, v{b} row_ror:{sh} row_mask:0xf bank_mask:0xf")
RC = 76
a(f"v_mul_f32 v{RC}, {f2u(-1/512)}, v{SS}")
a(f"v_mul_f32 v{SS+2}, {f2u(1/512)}, v{SS+2}")
a(f"v_fma_f32 v{SS+2}, -v{RC}, v{RC}, v{SS+2}")
a(f"v_max_f32 v{SS+2}, 0, v{SS+2}")
a(f"v_add_f32 v{SS+1}, {f2u(1e-5)}, v{SS+2}")
a(f"v_mov_b32 v{SS}, {f2u(1e-10)}")
a(f"v_rsq_f32 v{SS+1}, v{SS+1}")
a(f"v_fmac_f32 v{SS}, {f2u(1+1e-5)}, v{SS+2}")
a(f"v_rsq_f32 v{RC+1}, v{SS}")
a(f"v_mul_f32 v{SS+3}, v{RC}, v{SS+1}")
un(2)
a(f"ds_write_b64 v6, {vr(RC,2)}")
a(f"ds_write_b32 v{VFR}, v7 offset:{cRWF}")
for k in range(2):
    a(f"v_readlane_b32 s{20+2*k}, v{SS+1}, {16*k}"); a(f"v_readlane_b32 s{21+2*k}, v{SS+3}, {16*k}")
un(99)
for k in range(8):
    sp = 20 + 2*((k >> 1) & 1)
    a(f"v_pk_fma_f32 {vr(XU+2*k,2)}, {vr(XU+2*k,2)}, s[{sp}:{sp+1}], s[{sp}:{sp+1}] op_sel:[0,0,1] op_sel_hi:[1,0,1]")
for k in range(8): a(f"v_cvt_pk_bf16_f32 v{XF+k}, v{XU+2*k}, v{XU+2*k+1}")
for o in range(2):
    for t in range(2):
        for ri in range(2):
            d = vr(D1 + 8*o + 4*ri, 4)
            a(f"v_mfma_f32_16x16x32_bf16 {d}, {vr(XF+4*t,4)}, {Fx(ri,o,t)}, {'0' if t == 0 else d}")
a(f"v_mul_f32 v6, {f2u(1/1024)}, v{FN}"); a(f"v_mul_f32 v195, {f2u(1/1024)}, v{FN+1}")
for o in range(2):
    twiddle(a, D1+8*o, D1+8*o+4, TWRc+4*o, TWRs+4*o, 4, XU+8*o, False)
    packfrag(a, XF+4*o, XU+8*o, XU+8*o+4)
    if o == 1 or True:
        pass
for o in range(2):
    a(f"v_mfma_f32_16x16x32_bf16 {vr(D2+8*o,4)}, {vr(G16+2,4)}, {vr(XF+4*o,4)}, 0")
    a(f"v_mfma_f32_16x16x32_bf16 {vr(D2+8*o+4,4)}, {vr(G16,4)}, {vr(XF+4*o,4)}, 0")
for k in range(8): a(f"v_mul_f32 v{TW1s+k}, v6, v{FM+k}")
for o in range(2):
    for r in range(4): a(f"v_cvt_pk_bf16_f32 v{XU+4*o+r}, v{D2+8*o+r}, v{D2+8*o+4+r}")
a(f"v_readlane_b32 s20, v{XU}, 32"); a(f"v_readlane_b32 s21, v{XU+4}, 32"); a(f"v_readlane_b32 s22, v{XU}, 0"); a(f"v_readlane_b32 s23, v{XU+4}, 0")
for k in (1, 2, 3, 5, 6, 7): a(f"ds_write_b32 v{ZA+k}, v{XU+k}")
a(f"s_cmp_eq_u32 {H16}, 0"); a("s_cselect_b32 s20, s20, s22"); a("s_cselect_b32 s21, s23, s21")
a("v_mov_b32 v4, 2")
a(f"v_writelane_b32 v{XU}, s20, 0"); a(f"v_writelane_b32 v{XU+4}, s21, 0")
for k in (0, 4): a(f"ds_write_b32 v{ZA+k}, v{XU+k}")
a(f"ds_write_b32 v{VFR}, v4 offset:{cRWF}")
if G1ST and not opt('kst', 0): stamp(14, True)
VTG = 250
def late_setup(e):
    for k in range(8): e(f"v_cos_f32 v{TW1c+k}, v{TW1s+k}")
    for k in range(8): e(f"v_sin_f32 v{TW1s+k}, v{TW1s+k}")
    gen_tw(e, TW2c, TW2s, 195, FM, 4)
    e("v_lshrrev_b32 v192, 5, v0"); e("v_lshlrev_b32 v192, 7, v192")
    e("v_bfe_u32 v193, v0, 1, 4"); e("v_add_u32 v192, v192, v193")
    e("v_and_b32 v193, 1, v0"); e("v_lshl_add_u32 v192, v193, 6, v192")
    e("s_lshl_b32 s53, s64, 9"); e(f"s_add_u32 s53, s53, {H16}")
    e("v_add_u32 v192, s53, v192"); e("v_cvt_f32_u32 v192, v192"); e(f"v_mul_f32 v{T0}, {f2u(1/2048)}, v192")
    for n in range(1, 4): e(f"v_add_f32 v{T0+n}, {f2u((256*(n>>1) + 32*(n&1))/2048)}, v{T0}")
    for n in range(4): e(f"v_cos_f32 v{T0+4+n}, v{T0+n}")
    for n in range(4): e(f"v_sin_f32 v{T0+n}, v{T0+n}")
    for n in range(4): e(f"v_add_f32 v{T0+8+n}, v{T0+4+n}, v{T0+n}")
    for n in range(4): e(f"v_sub_f32 v{T0+n}, v{T0+4+n}, v{T0+n}")
    for n in range(4):
        e(f"v_cvt_pk_bf16_f32 v{UVa+n}, v{T0+8+n}, v{T0+n}"); e(f"v_cvt_pk_bf16_f32 v{UVb+n}, v{T0+n}, v{T0+8+n}")
    e("v_lshrrev_b32 v193, 5, v0"); e("v_lshlrev_b32 v193, 5, v193"); e("v_bfe_u32 v194, v0, 1, 4"); e("v_add_u32 v193, v193, v194")
    e(f"v_lshlrev_b32 v{VY}, 5, v193"); e("v_and_b32 v194, 1, v0"); e(f"v_lshl_add_u32 v{VY}, v194, 4, v{VY}")
    e("v_lshrrev_b32 v193, 1, v0"); e("v_lshlrev_b32 v193, 4, v193"); e("v_lshl_add_u32 v190, v194, 3, v193")
    e(f"s_lshl_b32 s53, {WAVE}, 10"); e(f"s_add_u32 s52, s53, {ST}"); e("v_add_u32 v190, s52, v190")
    e(f"s_add_u32 s52, s53, {ST2}"); e("v_add_u32 v188, s52, v1"); e("v_xor_b32 v189, 1024, v188")
    e("s_lshl_b32 s53, s64, 12"); e(f"s_mul_i32 s52, {H16}, 192"); e("s_add_u32 s52, s53, s52"); e(f"s_add_u32 s52, s52, {ST}")
    e("v_add_u32 v184, s52, v1")
    for k in range(1, 4): e(f"v_xor_b32 v{184+k}, {1024*k}, v184")
    e("v_lshl_add_u32 v196, v194, 2, v193")
    e(f"s_lshl_b32 s53, {WAVE}, 10"); e(f"s_add_u32 s52, s53, {ST}"); e("v_add_u32 v196, s52, v196"); e("v_add_u32 v197, 4096, v196"); e(f"v_add_u32 v{VPK}, s52, v1")
    e("v_lshlrev_b32 v194, 8, v133"); e(f"v_lshl_add_u32 v{VW}, v132, 2, v194")
    e(f"s_lshl_b32 s52, {H16}, 8"); e(f"s_lshl_b32 s53, {WAVE}, 6"); e("s_add_u32 s53, s53, s52"); e(f"s_add_u32 s53, s53, {WTL}")
    e(f"v_add_u32 v{VW}, s53, v{VW}"); e(f"v_xor_b32 v191, 4096, v{VW}")
    e("s_lshl_b32 s53, s64, 7"); e(f"s_add_u32 s66, s53, {H16}"); e("s_lshl_b32 s66, s66, 5")
    e(f"s_mul_i32 s53, {KAP}, {GP}"); e("s_add_u32 s66, s66, s53"); e(f"s_add_u32 s66, s66, {YB}")
    e(f"s_lshl_b32 s63, {R_}, 2"); e(f"s_add_u32 s63, s63, {WAVE}")
    e(f"s_mul_i32 s65, s63, {112*1024}"); e(f"s_mul_i32 s53, {HF}, {56*1024}"); e("s_add_u32 s65, s65, s53"); e(f"s_add_u32 s65, s65, {HB}")
    e(f"s_and_b32 s52, {IDX}, 3"); e("s_lshl_b32 s52, s52, 1"); e(f"s_add_u32 s52, s52, {JL}")
    e("s_sub_u32 s53, s52, 7"); e("s_cmp_ge_u32 s52, 7\ns_cselect_b32 s52, s53, s52")
    for n in range(7):
        e("s_lshl_b32 s53, s52, 13"); e(f"s_add_u32 s{20+2*n}, s65, s53"); e(f"s_add_u32 s{21+2*n}, s{20+2*n}, 4096")
        if n < 6: e("s_add_u32 s52, s52, 1"); e("s_cmp_eq_u32 s52, 7\ns_cselect_b32 s52, 0, s52")
    e(f"s_lshl_b32 s61, {R_}, 1"); e(f"s_add_u32 s61, s61, {HF}"); e("s_lshl_b32 s61, s61, 1"); e("s_add_u32 s61, s61, s64")
    e("s_lshl_b32 s61, s61, 8"); e(f"s_add_u32 s61, s61, {F2}")
    e(f"s_lshl_b32 s53, {JL}, 4"); e("s_add_u32 s60, s61, s53"); e(f"s_lshr_b32 s53, {H16}, 1"); e("s_add_u32 s60, s60, s53")
    e("v_min_u32 v132, 13, v0"); e("v_lshlrev_b32 v132, 3, v132")
    e(f"v_mov_b32 v{VTG}, s42"); e(f"v_mov_b32 v{VTG+1}, s43"); e(f"v_mov_b32 v{VTG-1}, 0")
def flag_c(soff, off=0):
    a("s_mov_b64 exec, 1")
    a(f"buffer_store_dwordx2 {vr(VTG,2)}, v{VTG-1}, {sWS}, {soff} offen offset:{off} sc1")
    a("s_mov_b64 exec, -1")
a(f"s_cmp_eq_u32 {JL}, 7")
a("s_cbranch_scc1 Lhelper")

AX, AW = 2, 6
a("v_and_b32 v7, 31, v0")
a("v_lshrrev_b32 v2, 5, v0"); a("v_bfe_u32 v3, v0, 1, 3"); a("v_xor_b32 v2, v2, v3")
a("v_lshlrev_b32 v2, 4, v2"); a("v_lshl_add_u32 v2, v7, 7, v2")
a("s_lshl_b32 s58, s64, 13")
a("v_add_u32 v2, s58, v2")
for ks in range(1, 4): a(f"v_xor_b32 v{2+ks}, {ks*32}, v2")
a("v_lshrrev_b32 v6, 5, v0"); a("v_lshlrev_b32 v6, 11, v6")
a("v_bfe_u32 v7, v0, 2, 2"); a("v_lshl_add_u32 v6, v7, 6, v6")
a("v_bfe_u32 v7, v0, 4, 1"); a("v_lshl_add_u32 v6, v7, 5, v6")
a("v_and_b32 v7, 3, v0"); a("v_lshl_add_u32 v6, v7, 3, v6")
a(f"s_lshl_b32 s58, {H16}, 5"); a("s_add_u32 s58, s58, 16384")
a("v_add_u32 v6, s58, v6")
fill1 = []; e = fill1.append
e("v_and_b32 v134, 31, v0"); e("v_lshlrev_b32 v134, 4, v134")
e("s_lshl_b32 s53, s64, 10"); e(f"s_add_u32 s53, s53, {ST3}"); e("v_add_u32 v135, s53, v1"); e("v_add_u32 v139, s53, v134") if False else None
e("v_add_u32 v134, s53, v134")
e("v_lshrrev_b32 v136, 5, v0"); e("v_and_b32 v199, 15, v0"); e("v_lshl_add_u32 v136, v136, 4, v199"); e("v_lshlrev_b32 v199, 4, v136"); e(f"s_lshl_b32 s52, {H16}, 5"); e(f"s_add_u32 s52, s52, {ST3+4096}"); e("v_add_u32 v136, s52, v199")
e(f"s_lshl_b32 s67, {R_}, 2"); e(f"s_and_b32 s53, {WAVE}, 2"); e("s_add_u32 s67, s67, s53")
e(f"s_lshl_b32 s52, {JG}, 13"); e(f"s_lshl_b32 s53, {H16}, 8"); e("s_add_u32 s52, s52, s53"); e(f"s_add_u32 s52, s52, {HB}")
e(f"s_mul_i32 s67, s67, {112*1024}"); e("s_add_u32 s67, s67, s52"); e(f"s_add_u32 s68, s67, {112*1024}")
late_setup(e)
if opt("nofill", 0):
    while fill1: a(fill1.pop(0))
def f1(n):
    for _ in range(n):
        if fill1: a(fill1.pop(0))
FR = 32
def rdA(buf, fb, slot, ks):
    b = FR + 16*buf + 4*fb
    for j in range(2): a(f"ds_read_b64_tr_b16 {vr(b+2*j,2)}, v{AW} offset:{slot*32768 + ks*4096 + j*1024 + fb*256}")
def rdB(buf, tb, slot, ks):
    a(f"ds_read_b128 {vr(FR+16*buf+8+4*tb,4)}, v{AX+ks} offset:{slot*32768 + tb*4096}")
def acc(fb, tb): return vr(ACC + 32*fb + 16*tb, 16)
def g1_mfma(buf, fb, tb, first=False):
    b = FR + 16*buf
    a(f"v_mfma_f32_32x32x16_bf16 {acc(fb,tb)}, {vr(b+4*fb,4)}, {vr(b+8+4*tb,4)}, {'0' if first else acc(fb,tb)}")
a("s_mov_b32 s69, 0x10000")
lds_spin(VCT, cFULL, 2, 1, FLG, sleep=1)
if G1ST: stamp(3)
for n in range(2): rdA(n, 0, 0, n); rdB(n, 0, 0, n); rdB(n, 1, 0, n); rdA(n, 1, 0, n)
EB, KC, CR, EAM = 140, 144, 204, 220
def flag_rd(): a(f"ds_read2_b32 {vr(FLG,2)}, v{VCT} offset0:{cFULL//4} offset1:{cFULL//4+64}")
def ext_reads():
    for k in range(4): a(f"ds_read_b128 {vr(CR+4*k,4)}, v136 offset:{1024*k}")
    a(f"ds_read_b128 {vr(EB,4)}, v135")
    for tb in range(2): a(f"ds_read_b128 {vr(KC+4*tb,4)}, v134 offset:{2048+512*tb}")
def g1_step(N):
    n = N & 7; st = N >> 2
    ks = n & 3; buf = n & 1; f = (N == 0)
    nn = (n + 2) & 7; ns, nk = nn >> 2, nn & 3
    KS0 = opt("kst", 0)
    if KS0 and KS0 <= N < KS0 + 12: stamp(1 + N - KS0 + (2 if N - KS0 >= 1 else 0), True)
    a(f"s_waitcnt lgkmcnt({7 if (ks == 0 and st >= 6) else 6})")
    g1_mfma(buf, 0, 0, f)
    if ks == 2:
        a(f"v_min_u32 v{FLG}, v{FLG}, v{FLG+1}")
        if st >= 5: a(f"v_mov_b32 v137, {st+1}")
        def pre():
            if n == 6 and N != 30:
                for r in list(range(AX, AX+4)) + [AW]: a(f"v_xor_b32 v{r}, s69, v{r}")
        lds_check(FLG, st + 2, VCT, cFULL, 2, pre=pre, sleep=opt("csleep", 1))
        if G1ST and not KS0: stamp(4 + st, True)
        if N == 30: return
    if ks == 1: flag_rd()
    if ks == 3:
        if 1 <= st < 5: a("s_barrier")
        elif st >= 5: a(f"ds_write_b32 v{VFR}, v137 offset:{cFREE}")
    if ks != 2: f1(3)
    g1_mfma(buf, 0, 1, f)
    rdA(buf, 0, ns, nk); f1(2)
    g1_mfma(buf, 1, 0, f)
    rdB(buf, 0, ns, nk); f1(3)
    g1_mfma(buf, 1, 1, f)
    rdB(buf, 1, ns, nk)
    rdA(buf, 1, ns, nk); f1(1)
for N in range(31): g1_step(N)
assert not fill1
ext_reads()
g1_mfma(0, 0, 1)
a("v_cmp_gt_u32 s[52:53], 32, v0"); a("v_and_b32 v2, 16, v0"); a("v_cmp_eq_u32 s[36:37], 0, v2")
for k in range(4): a(f"v_mov_b32 v{EAM+4*k+3}, 0")
g1_mfma(0, 1, 0); g1_mfma(0, 1, 1)
a("s_waitcnt lgkmcnt(0)")
a(f"ds_write_b32 v{VFR}, v137 offset:{cFREE}")
g1_mfma(1, 0, 0)
def ext_cmp():
    for r in (EB+3, KC+3, KC+7, CR+2, CR+6, CR+10, CR+14): a(f"v_xor_b32 v{r}, s42, v{r}")
    a(f"v_or3_b32 v{FLG}, v{EB+3}, v{KC+3}, v{KC+7}"); a(f"v_or3_b32 v{FLG}, v{FLG}, v{CR+2}, v{CR+6}"); a(f"v_or3_b32 v{FLG}, v{FLG}, v{CR+10}, v{CR+14}")
    a(f"v_cmp_ne_u32 vcc, 0, v{FLG}")
ext_cmp()
g1_mfma(1, 0, 1)
a("s_cmp_lg_u64 vcc, 0")
a("s_cbranch_scc1 Lext_slow")
a.label("Lext_ok")
def ext_slow():
    a.label("Lext_slow")
    stamp(2, True)
    a("v_and_b32 v2, 31, v0"); a("v_lshlrev_b32 v2, 4, v2")
    a(f"s_lshl_b32 s57, {R_}, 11"); a("s_lshl_b32 s58, s64, 10"); a("s_add_u32 s57, s57, s58"); a(f"s_add_u32 s38, s57, {SB}"); a(f"s_add_u32 s39, s38, 0x8000")
    a(f"s_lshl_b32 s57, {JG}, 14"); a(f"s_lshr_b32 s58, {R_}, 2"); a("s_lshl_b32 s58, s58, 12"); a("s_add_u32 s57, s57, s58")
    a(f"s_lshl_b32 s58, {H16}, 5"); a("s_add_u32 s57, s57, s58"); a(f"s_add_u32 s57, s57, {CSB}")
    a("s_mov_b32 s58, 0")
    a.label("Lext_lp")
    a("s_sleep 4")
    a(f"buffer_load_dwordx4 {vr(EB,4)}, v1, {sWS}, s38 offen sc1")
    for k in range(2): a(f"buffer_load_dwordx4 {vr(KC+4*k,4)}, v2, {sWS}, s39 offen offset:{512*k} sc1")
    for k in range(4): a(f"buffer_load_dwordx4 {vr(CR+4*k,4)}, v199, {sWS}, s57 offen offset:{1024*k} sc1")
    a("s_add_u32 s58, s58, 1")
    a("s_waitcnt vmcnt(0)")
    ext_cmp()
    a(f"s_cmp_ge_u32 s58, {SPIN_MAX}")
    a("s_cbranch_scc1 Lext_ok")
    a("s_cmp_lg_u64 vcc, 0")
    a("s_cbranch_scc1 Lext_lp")
    a("s_branch Lext_ok")
cold.append(ext_slow)
stamp(6)
if G1ST and not opt('kst', 0): stamp(12, True)
a(f"v_pk_add_f32 {vr(CR,2)}, {vr(CR,2)}, {vr(CR+4,2)}"); a(f"v_pk_add_f32 {vr(CR+8,2)}, {vr(CR+8,2)}, {vr(CR+12,2)}")
a(f"v_pk_add_f32 {vr(CR,2)}, {vr(CR,2)}, {vr(CR+8,2)}")
g1_mfma(1, 1, 0)
a(f"v_cndmask_b32 v{CR}, v{CR+1}, v{CR}, s[36:37]")
a(f"v_cvt_pk_bf16_f32 v{CR+4}, v{CR}, v{CR}")
a(f"v_and_b32 v{CR+1}, {MASKHI}, v{CR+4}"); a(f"v_sub_f32 v{CR+1}, v{CR}, v{CR+1}")
a(f"v_cvt_pk_bf16_f32 v{CR+5}, v{CR+1}, 0")
g1_mfma(1, 1, 1)
a(f"v_lshl_or_b32 v{CR+5}, v198, 16, v{CR+5}"); a(f"v_mov_b32 v{CR+6}, v198")
for k in range(3): a(f"v_cndmask_b32 v{EAM+k}, 0, v{CR+4+k}, s[52:53]")
def ext(fb, tb): a(f"v_mfma_f32_32x32x16_bf16 {acc(fb,tb)}, {vr(EAM+8*fb+4*tb,4)}, {vr(EB,4)}, {acc(fb,tb)}")
for k in range(3): a(f"v_cndmask_b32 v{EAM+12+k}, v{CR+4+k}, 0, s[52:53]")
ext(0, 0)
for k in range(3): a(f"v_mov_b32 v{EAM+4+k}, v{EAM+12+k}"); a(f"v_mov_b32 v{EAM+8+k}, v{EAM+k}")
for k in range(3): a(f"v_permlane32_swap_b32 v{EAM+4+k}, v{EAM+8+k}")
late = [lambda: ext(0, 1), lambda: ext(1, 0), lambda: ext(1, 1)]
GT = 32; AF = 220; ZIN = 240
def z_reads():
    a(f"ds_read_b128 {vr(ZIN,4)}, v{VPK}"); a(f"ds_read_b128 {vr(ZIN+4,4)}, v{VPK} offset:4096")
cnt = 0
FA_AT = opt("fa_at", 7); HDELAY = opt("hdelay", 0); pend = []
for fb in range(2):
    for tb in range(2):
        for th in range(2):
            x = ACC + 32*fb + 16*tb + 8*th; k = KC + 4*tb; o = x if HDELAY else 40 + 4*(cnt & 1)
            if cnt == 7:
                flag_rd(); z_reads()
            def lt():
                if late: late.pop(0)()
            if cnt == 0: lt()
            for p in range(0, 8, 2): a(f"v_pk_mul_f32 {vr(GT+p,2)}, {vr(x+p,2)}, {vr(x+p,2)}")
            for p in range(0, 8, 2): a(f"v_pk_fma_f32 {vr(GT+p,2)}, {vr(GT+p,2)}, {vr(k,2)}, {vr(k,2)} op_sel:[0,0,1] op_sel_hi:[1,0,1]")
            lt()
            for p in range(0, 8, 2): a(f"v_pk_mul_f32 {vr(GT+p,2)}, {vr(GT+p,2)}, {vr(x+p,2)}")
            for p in range(8): a(f"v_exp_f32 v{GT+p}, v{GT+p}")
            lt()
            for p in range(0, 8, 2): a(f"v_pk_fma_f32 {vr(GT+p,2)}, {vr(GT+p,2)}, {vr(k+2,2)}, {vr(k+2,2)} op_sel_hi:[1,0,0]")
            for p in range(8): a(f"v_rcp_f32 v{GT+p}, v{GT+p}")
            for p in range(0, 8, 2): a(f"v_pk_mul_f32 {vr(GT+p,2)}, {vr(GT+p,2)}, {vr(x+p,2)}")
            for p in range(4): a(f"v_cvt_pk_bf16_f32 v{o+p}, v{GT+2*p}, v{GT+2*p+1}")
            pend.append(f"buffer_store_dwordx4 {vr(o,4)}, v1, {sWS}, s{67+tb} offen offset:{2048*fb+1024*th} sc1")
            if cnt >= HDELAY:
                while pend: a(pend.pop(0))
            if cnt == FA_AT and HDELAY < 4:
                a(f"s_waitcnt vmcnt({FA_AT-3})")
                flag_c("s60")
                stamp(7)
            cnt += 1
a("s_waitcnt lgkmcnt(0)")
def helper_code():
    a.label("Lhelper")
    a(f"s_lshl_b32 s67, {XCD}, 2"); a(f"s_and_b32 s58, {IDX}, 3"); a("s_add_u32 s67, s67, s58")
    a("v_bfe_u32 v2, v0, 3, 1"); a("v_bfe_u32 v3, v0, 2, 1"); a("v_lshl_add_u32 v2, v3, 5, v2")
    a("v_and_b32 v3, 3, v0"); a("v_lshl_add_u32 v2, v3, 3, v2"); a("v_mul_u32_u24 v2, 514, v2")
    a("v_lshrrev_b32 v3, 4, v0"); a(f"s_lshl_b32 s58, {WAVE}, 6"); a("v_add_u32 v3, s58, v3")
    a("v_lshl_add_u32 v4, v3, 1, v2")
    a("v_cmp_eq_u32 vcc, 0, v3"); a("v_add_u32 v5, 512, v4"); a("v_cndmask_b32 v5, v4, v5, vcc")
    a(f"v_mul_u32_u24 v3, {GP}, v3"); a("v_and_b32 v6, 15, v0"); a("v_lshl_add_u32 v3, v6, 4, v3")
    a("s_lshl_b32 s68, s67, 8"); a(f"s_add_u32 s68, s68, {WT}")
    late_setup(a)
    stamp(2)
    lds_spin(VCT, cFULL, 2, 1, FLG, sleep=2)
    stamp(7)
    def hrd(u):
        for tt in range(4):
            ad = "v5" if u == 0 else "v4"
            a(f"ds_read_u16 v{32+8*(u%3)+tt}, {ad} offset:{u*8 + tt*1028}")
            a(f"ds_read_u16 v{36+8*(u%3)+tt}, {ad} offset:{36864 + u*8 + tt*1028}")
    hrd(0)
    for u in range(16):
        if u < 15: hrd(u + 1)
        a(f"s_waitcnt lgkmcnt({8 if u < 15 else 0})")
        for tt in range(4): a(f"v_lshl_or_b32 v{64+4*(u&3)+tt}, v{36+8*(u%3)+tt}, 16, v{32+8*(u%3)+tt}")
        a(f"buffer_store_dwordx4 {vr(64+4*(u&3),4)}, v3, {sWS}, s68 offen sc1")
        a(f"s_add_u32 s68, s68, {4*GP}")
    a(f"s_lshl_b32 s68, {WAVE}, 8"); a("s_lshl_b32 s67, s67, 3"); a("s_add_u32 s68, s68, s67"); a(f"s_add_u32 s68, s68, {FW}")
    a("s_waitcnt vmcnt(0)")
    flag_c("s68")
    a("v_mov_b32 v2, 8")
    a(f"ds_write_b32 v{VFR}, v2 offset:{cFREE}")
    stamp(6)
    a(f"v_mov_b64 {vr(FLG,2)}, 0")
    a("s_branch Lcol")
cold.append(helper_code)

warm(1)
a.label("Lcol")
stamp(8)
a(f"v_min_u32 v{FLG}, v{FLG}, v{FLG+1}")
def post_z():
    z_reads(); a("s_waitcnt lgkmcnt(0)")
lds_check(FLG, 10, VCT, cFULL, 2, post=post_z)
EE = 32
for n in range(4):
    P = ZIN + 4*(n >> 1) + 2*(n & 1); M = P + 1
    a(f"v_dot2_f32_bf16 v{EE+n}, v{P}, {ONES}, 0")
    a(f"v_dot2_f32_bf16 v{EE+4+n}, v{P}, {ONES}, 0 neg_lo:[0,1,0]")
    a(f"v_dot2_f32_bf16 v{EE+8+n}, v{P}, v{UVa+n}, 0 neg_hi:[0,1,0]")
    a(f"v_dot2_f32_bf16 v{EE+12+n}, v{P}, v{UVb+n}, 0")
    a(f"v_dot2_f32_bf16 v{EE+n}, v{M}, {ONES}, v{EE+n}")
    a(f"v_dot2_f32_bf16 v{EE+4+n}, v{M}, {ONES}, v{EE+4+n} neg_hi:[0,1,0]")
    a(f"v_dot2_f32_bf16 v{EE+8+n}, v{M}, v{UVb+n}, v{EE+8+n} neg_hi:[0,1,0]")
    a(f"v_dot2_f32_bf16 v{EE+12+n}, v{M}, v{UVa+n}, v{EE+12+n} neg_lo:[0,1,0] neg_hi:[0,1,0]")
for j in range(2):
    for cpt in range(4): a(f"v_cvt_pk_bf16_f32 v{48+2*cpt+j}, v{EE+4*cpt+2*j}, v{EE+4*cpt+2*j+1}")
    for eo in range(2): a(f"ds_write2_b32 v{196+eo}, v{48+4*eo+j}, v{48+4*eo+2+j} offset0:{128*j} offset1:{128*j+2}")
a("s_waitcnt lgkmcnt(0)")
a("s_barrier")
for k in (0, 2, 1, 3): a(f"ds_read_b128 {vr(AF+4*k,4)}, v{184+k}")
def w_reads():
    for o in range(2):
        for r in range(0, 4, 2): a(f"ds_read2_b32 {vr(WIN+4*o+r,2)}, v{VW if o == 0 else 191} offset0:{64*r} offset1:{64*r+64}")
if not G1ST: stamp(3)
D1 = 64; TT = 80; TF = 48; D2 = 96; WU = 112
for be in range(2):
    a(f"s_waitcnt lgkmcnt({2 - 2*be})")
    for tau in range(2):
        for ri in range(2):
            d = vr(D1 + 8*be + 4*ri, 4)
            a(f"v_mfma_f32_16x16x32_bf16 {d}, {vr(AF+8*tau+4*be,4)}, {Fx(ri,0,tau)}, {'0' if tau == 0 else d}")
a(f"ds_read_b32 v{FLG}, v{VCT} offset:{cFULL+256}")
w_reads()
for be in range(2):
    twiddle(a, D1+8*be, D1+8*be+4, TW1c+4*be, TW1s+4*be, 4, TT+8*be, False)
    packfrag(a, TF+4*be, TT+8*be, TT+8*be+4)
    if be == 0:
        a("s_nop 0")
        for o in range(2):
            for ri in range(2): a(f"v_mfma_f32_16x16x32_bf16 {vr(D2+8*o+4*ri,4)}, {Fx(ri,o,0)}, {vr(TF,4)}, 0")
a("s_waitcnt lgkmcnt(0)")
def post_w():
    w_reads(); a("s_waitcnt lgkmcnt(0)")
lds_check(FLG, 11, VCT, cFULL+256, 1, post=post_w)
for o in range(2):
    for ri in range(2):
        d = vr(D2+8*o+4*ri, 4)
        a(f"v_mfma_f32_16x16x32_bf16 {d}, {Fx(ri,o,1)}, {vr(TF+4,4)}, {d}")
for k in range(8): a(f"v_lshlrev_b32 v{WU+k}, 16, v{WIN+k}")
for k in range(8): a(f"v_and_b32 v{WU+8+k}, {MASKHI}, v{WIN+k}")
FB_POS = opt("fbpos", 0)
def flagB():
    a("s_waitcnt vmcnt(0)")
    if HDELAY >= 4: flag_c("s60")
    flag_c("s60", 128)
    poll_issue(132, "s61", 252)
    stamp(9)
if FB_POS == 0: flagB()
for o in range(2):
    twiddle(a, D2+8*o, D2+8*o+4, WU+4*o, WU+8+4*o, 4, TT+8*o, True)
    packfrag(a, TF+4*o, TT+8*o+4, TT+8*o)
    if o == 0:
        a("s_nop 0")
        for oo in (1, 0):
            for ri in range(2): a(f"v_mfma_f32_16x16x32_bf16 {vr(D1+8*oo+4*ri,4)}, {vr(TF,4)}, {Fx(ri,oo,0)}, 0")
for oo in (1, 0):
    for ri in range(2):
        d = vr(D1+8*oo+4*ri, 4)
        a(f"v_mfma_f32_16x16x32_bf16 {d}, {vr(TF+4,4)}, {Fx(ri,oo,1)}, {d}")
if FB_POS == 1: flagB()
twiddle(a, D1+12, D1+8, TW2c, TW2s, 4, TT+8, True)
packfrag(a, TF+8, TT+12, TT+8)
a(f"ds_write_b128 v188, {vr(TF+8,4)}")
twiddle(a, D1+4, D1, TW1c, TW1s, 4, TT, True)
packfrag(a, TF, TT+4, TT)
if FB_POS == 2: flagB()
a("s_waitcnt lgkmcnt(0)")
a("s_barrier")
a(f"ds_read_b128 {vr(TF+8,4)}, v189")
stamp(4)
for o in range(2):
    for ri in range(2):
        a(f"v_mfma_f32_16x16x32_bf16 {vr(D2+8*o+4*ri,4)}, {Fx(ri,o,0)}, {vr(TF,4)}, 0")
a("v_lshrrev_b32 v2, 5, v0"); a("v_lshlrev_b32 v2, 9, v2")
a("v_bfe_u32 v3, v0, 2, 2"); a("v_lshl_add_u32 v2, v3, 6, v2")
a("v_bfe_u32 v3, v0, 4, 1"); a("v_lshl_add_u32 v2, v3, 5, v2")
a("v_and_b32 v3, 3, v0"); a("v_lshl_add_u32 v2, v3, 3, v2")
a("v_add_u32 v3, 0x10000, v2")
a("s_waitcnt lgkmcnt(0)")
for o in range(2):
    for ri in range(2):
        d = vr(D2+8*o+4*ri, 4)
        a(f"v_mfma_f32_16x16x32_bf16 {d}, {Fx(ri,o,1)}, {vr(TF+8,4)}, {d}")
for o in range(2):
    for r in range(4): a(f"v_cvt_pk_bf16_f32 v{TF+4*o+r}, v{D2+8*o+4+r}, v{D2+8*o+r}")
    a(f"ds_write_b128 v{184 if o == 0 else 186}, {vr(TF+4*o,4)}")
a(f"v_mov_b32 v4, v{VY}"); a("v_mov_b32 v5, v132")
a("s_waitcnt lgkmcnt(0)")
a("s_barrier")
EP = 64
for j in range(2):
    a(f"ds_read_b64 {vr(EP+2*j,2)}, v190 offset:{512*j}"); a(f"ds_read_b64 {vr(EP+4+2*j,2)}, v190 offset:{4096+512*j}")
NK = 56
def kpos(m):
    ph, r = divmod(m, 28); return r >> 1, ph, r & 1
def g2_rd(m, db):
    n, ph, th = kpos(m); b = 32 + 8*(m & 3) + 4*db
    off = n*8192 + ph*4096 + th*2048 + db*256
    for j in range(2): a(f"ds_read_b64_tr_b16 {vr(b+2*j,2)}, v{2 + (off >> 16)} offset:{(off & 0xffff) + j*1024}")
HR = 104; NR = 18; PF = opt("pf", 14)
def hload(m):
    n, ph, th = kpos(m)
    a(f"buffer_load_dwordx4 {vr(HR+4*(m%NR),4)}, v1, {sWS}, s{20+n} offen offset:{ph*2048+th*1024} sc1")
EARLYH = opt("earlyh", 6)
vmq = []
poll_check(5, "s61", 252, 0)
stamp(5)
for m in range(EARLYH): hload(m); vmq.append(("h", m))
a("s_waitcnt lgkmcnt(0)")
for m in range(4):
    for db in range(2):
        if (m, db) != (3, 1): g2_rd(m, db)
RO = 72; RA = 88
for n in range(4):
    a(f"v_dot2_f32_bf16 v{RA+n}, v{EP+n}, {ONES}, 0 neg_hi:[0,1,0]")
    a(f"v_dot2_f32_bf16 v{RA+4+n}, v{EP+n}, {ONES}, 0")
for n in range(4):
    O = EP + 4 + n
    a(f"v_dot2_f32_bf16 v{RO+4*n}, v{O}, v{UVa+n}, v{RA+n}")
    a(f"v_dot2_f32_bf16 v{RO+4*n+1}, v{O}, v{UVb+n}, v{RA+4+n} neg_lo:[0,1,0]")
    a(f"v_dot2_f32_bf16 v{RO+4*n+2}, v{O}, v{UVb+n}, v{RA+4+n} neg_hi:[0,1,0]")
    a(f"v_dot2_f32_bf16 v{RO+4*n+3}, v{O}, v{UVa+n}, v{RA+n} neg_lo:[0,1,0] neg_hi:[0,1,0]")
g2_rd(3, 1)
a(f"s_cmp_eq_u32 {KAP}, 0")
a("s_cbranch_scc1 Lk0")
a.label("Lnk0")
def k0_code():
    a.label("Lk0")
    for n in range(4):
        a(f"v_pk_add_f32 {vr(RO+4*n+2,2)}, {vr(RO+4*n+2,2)}, {vr(RO+4*n,2)}")
        a(f"v_pk_mul_f32 {vr(RO+4*n+2,2)}, {vr(RO+4*n+2,2)}, 0.5 op_sel_hi:[1,0]")
        a(f"v_mov_b64 {vr(RO+4*n,2)}, 0")
    a("s_branch Lnk0")
cold.append(k0_code)
YO = 96
for n in range(4):
    a(f"v_cvt_pk_bf16_f32 v{YO+2*n}, v{RO+4*n}, v{RO+4*n+1}"); a(f"v_cvt_pk_bf16_f32 v{YO+1+2*n}, v{RO+4*n+2}, v{RO+4*n+3}")
a(f"buffer_store_dwordx4 {vr(YO,4)}, v4, {sWS}, s66 offen sc1"); vmq.append("Y0")
a(f"buffer_store_dwordx4 {vr(YO+4,4)}, v4, {sWS}, s66 offen offset:2048 sc1"); vmq.append("Y1")
stamp(10)

for m in range(EARLYH, PF): hload(m); vmq.append(("h", m))
a(f"s_lshl_b32 s60, {WAVE}, 11"); a(f"s_lshl_b32 s58, {KAP}, 3"); a("s_add_u32 s60, s60, s58"); a(f"s_add_u32 s60, s60, {F3}")
a(f"s_lshr_b32 s65, {RHO}, 7"); a("s_lshl_b32 s65, s65, 1"); a(f"s_bfe_u32 s58, {RHO}, 0x10004"); a("s_add_u32 s65, s65, s58")
a("s_lshl_b32 s65, s65, 11"); a(f"s_lshl_b32 s58, {WAVE}, 9"); a("s_add_u32 s65, s65, s58"); a(f"s_add_u32 s65, s65, {F3}")
a("v_lshlrev_b32 v7, 3, v0")
a(f"s_mul_i32 s66, {WAVE}, {64*GP}"); a(f"s_lshl_b32 s58, {RHO}, 5"); a("s_add_u32 s66, s66, s58"); a(f"s_add_u32 s66, s66, {YB}")
a(f"s_add_u32 s67, s66, {32*GP}")
a(f"s_lshl_b32 s68, {WAVE}, 3"); a(f"s_add_u32 s68, s68, {ST2}")
a(f"s_mov_b32 s69, {f2u(2.0**-21)}")
a(f"s_lshl_b32 s36, {H16}, 5")
a(f"s_lshl_b32 s37, {WAVE}, 11"); a(f"s_add_u32 s38, s37, {XR}"); a(f"s_add_u32 s37, s37, {ST2}")
a("s_mov_b32 s8, s34"); a("s_mov_b32 s9, s35"); a("s_mov_b32 s10, 1024")
a("s_add_u32 s61, s61, 128")
ZA = 176; B16 = 184; TIc = 192; TIs = 200; FM = 208; VC, VG4 = 216, 217; VB2 = 218; VYG = 220; VYW = 221; VXR = 222; FT0 = 224
fill = []; fe = fill.append
gen_fm_fn(fe, FM, None, VC, VG4, FT0, FT0+1)
fe(f"v_lshrrev_b32 v{VYG}, 1, v0"); fe(f"v_mul_u32_u24 v{VYG}, {GP}, v{VYG}"); fe(f"v_and_b32 v{FT0}, 1, v0"); fe(f"v_lshl_add_u32 v{VYG}, v{FT0}, 4, v{VYG}")
fe(f"v_lshlrev_b32 v{VB2}, 5, v{VC}"); fe(f"v_lshl_add_u32 v{VB2}, v{VG4}, 1, v{VB2}"); fe(f"v_add_u32 v{VB2}, s36, v{VB2}"); fe(f"v_xor_b32 v{VB2+1}, 512, v{VB2}")
fe(f"v_add_u32 v{VYW}, s37, v1")
for o in range(2): fe(f"v_add_u32 v{VXR+o}, s38, v{VB2+o}")
gen_zaddr(fe, ZA, "s68", VC, VG4, FT0)
fe(f"v_cvt_f32_u32 v{FT0+8}, v{VG4}")
fe(f"v_add_f32 v{FT0+9}, 1.0, v{FT0+8}"); fe(f"v_add_f32 v{FT0+10}, 2.0, v{FT0+8}"); fe(f"v_add_f32 v{FT0+11}, 1.0, v{FT0+10}")
fe(f"v_cvt_f32_u32 v{FT0+12}, v{VC}"); fe(f"v_mul_f32 v{FT0+13}, {f2u(1/16)}, v{FT0+12}")
gen_tw(fe, FT0, FT0+4, FT0+13, FT0+8, 4)
fe(f"v_mul_f32 v{FT0+13}, {f2u(1/512)}, v{FT0+12}")
for j in range(4):
    fe(f"v_cvt_pk_bf16_f32 v{B16+j}, v{FT0+j}, -v{FT0+4+j}"); fe(f"v_cvt_pk_bf16_f32 v{B16+4+j}, v{FT0+4+j}, v{FT0+j}")
gen_tw(fe, TIc, TIs, FT0+13, FM, 8)
for k in range(16): fe(f"v_mul_f32 v{TIc+k}, s69, v{TIc+k}")
for _ in range(opt("prefill", 40)): a(fill.pop(0))
POLL_AT, CHK_AT = opt("pollat", 36), opt("chkat", 46)
PB_AT = opt("pbat", 4)
YG = 240; B2 = 96
def young(tag): return len(vmq) - 1 - vmq.index(tag)
for m in range(NK):
    b = 32 + 8*(m & 3)
    for db in range(2):
        rem = min(7, (NK - 1 - m)*2 + (1 - db))
        w = f"lgkmcnt({2*rem})"
        if db == 0: w = f"vmcnt({young(('h', m))}) " + w
        a(f"s_waitcnt {w}")
        d = vr(ACC+16*db, 16)
        a(f"v_mfma_f32_32x32x16_bf16 {d}, {vr(b+4*db,4)}, {vr(HR+4*(m%NR),4)}, {'0' if m == 0 else d}")
        if m + 4 < NK: g2_rd(m + 4, db)
        if db == 0 and m == EARLYH: flag_c("s60"); vmq.append("f3")
        if db == 0 and m + PF == 28: poll_check(5, "s61", 252, young("pollB"))
        if db == 0 and m + PF < NK: hload(m + PF); vmq.append(("h", m + PF))
        if db == 1 and m == PB_AT: poll_issue(5, "s61", 252); vmq.append("pollB")
        if db == 1 and m == POLL_AT: poll_issue(7, "s65", 252); vmq.append("poll")
        if db == 1 and m == CHK_AT:
            stamp(1)
            poll_check(7, "s65", 252, young("poll"))
            a(f"buffer_load_dwordx4 {vr(YG,4)}, v{VYG}, {sWS}, s66 offen sc1"); vmq.append("yg0")
            a(f"buffer_load_dwordx4 {vr(YG+4,4)}, v{VYG}, {sWS}, s67 offen sc1"); vmq.append("yg1")
            for o in range(2): a(f"buffer_load_dwordx2 {vr(B2+2*o,2)}, v{VB2+o}, {sW}, 0 offen"); vmq.append(f"b2{o}")
        if fill: a(fill.pop(0))
assert not fill
stamp(11)
a(f"s_lshl_b32 s57, {HF}, 6"); a("s_add_u32 s57, s57, s63"); a("s_lshl_b32 s57, s57, 15"); a(f"s_xor_b32 {JL}, {JL}, {CX}"); a(f"s_lshl_b32 s58, {JL}, 12"); a("s_add_u32 s57, s57, s58")
a(f"s_add_u32 s57, s57, {PB}")
for k in range(4):
    o = 32 + 4*k
    for p in range(4): a(f"v_cvt_pk_bf16_f32 v{o+p}, v{ACC+8*k+2*p}, v{ACC+8*k+2*p+1}")
    a(f"buffer_store_dwordx4 {vr(o,4)}, v1, {sWS}, s57 offen offset:{1024*k} sc1")
a("s_waitcnt vmcnt(4)")
a(f"ds_write_b128 v{VYW}, {vr(YG,4)}"); a(f"ds_write_b128 v{VYW}, {vr(YG+4,4)} offset:1024")
XV = 136
for o in range(2):
    for u in range(2): a(f"ds_read_b64 {vr(XV+4*o+2*u,2)}, v{VXR+o} offset:{1024*u}")
D1 = 64; TT = 80; TF = 96; D2 = 104
for o in range(2):
    for k in range(2):
        a(f"v_lshlrev_b32 v{120+4*o+2*k}, 16, v{B2+2*o+k}"); a(f"v_and_b32 v{121+4*o+2*k}, 0xffff0000, v{B2+2*o+k}")
a("s_waitcnt lgkmcnt(0)")
a("s_barrier")
YA = 128
for k in range(8): a(f"ds_read_b32 v{YA+k}, v{ZA+k}")
for o in range(2):
    for ri in range(2):
        u = 1 - ri; d = D2 + 8*o + 4*ri
        for k in range(2):
            a(f"v_lshlrev_b32 v{d+2*k}, 16, v{XV+4*o+2*u+k}"); a(f"v_and_b32 v{d+2*k+1}, 0xffff0000, v{XV+4*o+2*u+k}")
        for k in range(2): a(f"v_pk_add_f32 {vr(d+2*k,2)}, {vr(d+2*k,2)}, {vr(120+4*o+2*k,2)}")
a("s_waitcnt lgkmcnt(0)")
for tau in range(2):
    for ri in range(2):
        a(f"v_mfma_f32_16x16x32_bf16 {vr(D1+8*tau+4*ri,4)}, {vr(YA+4*tau,4)}, {vr(B16+4*ri,4)}, 0")
APITCH = 2064
a(f"s_lshl_b32 s60, s63, 7"); a(f"s_lshl_b32 s58, {JL}, 4"); a("s_add_u32 s60, s60, s58"); a(f"s_lshl_b32 s58, {HF}, 3"); a("s_add_u32 s60, s60, s58"); a(f"s_add_u32 s60, s60, {F4}")
a("s_waitcnt vmcnt(0)")
flag_c("s60")
stamp(12)
a(f"s_mul_i32 s58, {WAVE}, {2*APITCH}")
for o in range(2): a(f"v_lshlrev_b32 v{146+o}, 1, v{VB2+o}")
for o in range(2): a(f"v_add_u32 v{146+o}, s58, v{146+o}")
for tau in range(2): twiddle(a, D1+8*tau, D1+8*tau+4, TIc+4*tau, TIs+4*tau, 4, TT+8*tau, True)
for tau in range(2): packfrag(a, TF+4*tau, TT+8*tau+4, TT+8*tau)
for tau in range(2):
    for o in range(2):
        for ri in range(2):
            d = vr(D2+8*o+4*ri, 4)
            a(f"v_mfma_f32_16x16x32_bf16 {d}, {vr(TF+4*tau,4)}, {Fx(ri,o,tau)}, {d}")
a("v_and_b32 v2, 7, v0"); a("v_lshrrev_b32 v3, 4, v0"); a("v_bfe_u32 v4, v0, 3, 1")
a("v_lshlrev_b32 v5, 10, v3"); a("v_lshl_add_u32 v5, v4, 9, v5"); a("v_lshl_add_u32 v5, v2, 4, v5")
a("v_lshlrev_b32 v6, 4, v3"); a("v_lshl_add_u32 v6, v4, 2, v6")
a(f"v_mul_u32_u24 v7, {APITCH}, v2"); a("v_lshl_add_u32 v7, v6, 2, v7"); a(f"s_lshl_b32 s58, {WAVE}, 9"); a("v_add_u32 v7, s58, v7")
for o in range(2):
    for ri in range(2): a(f"ds_write_b128 v{146+o}, {vr(D2+8*o+4*ri,4)} offset:{(1-ri)*APITCH}")
OPITCH = 272
a(f"v_mul_u32_u24 v148, {OPITCH}, v2"); a("v_lshl_add_u32 v148, v6, 1, v148")
a(f"s_mul_i32 s58, {WAVE}, {8*OPITCH}"); a(f"s_add_u32 s58, s58, 32768"); a("v_add_u32 v148, s58, v148")
a(f"v_mul_u32_u24 v149, {OPITCH}, v3"); a("v_and_b32 v6, 15, v0"); a("v_lshl_add_u32 v149, v6, 4, v149"); a("v_add_u32 v149, s58, v149")
a("v_lshrrev_b32 v150, 5, v0"); a("v_lshlrev_b32 v150, 15, v150"); a("v_bfe_u32 v4, v0, 4, 1"); a("v_lshl_add_u32 v150, v4, 20, v150"); a("v_lshl_add_u32 v150, v6, 4, v150")
a("v_and_b32 v2, 3, v0"); a("v_lshlrev_b32 v2, 3, v2")
a(f"s_lshr_b32 s63, {RHO}, 2")
a("s_lshl_b32 s60, s63, 7"); a(f"s_lshl_b32 s58, {WAVE}, 5"); a("s_add_u32 s60, s60, s58"); a(f"s_add_u32 s60, s60, {F4}")
poll_issue(2, "s60", 252)
a("s_lshl_b32 s57, s63, 15"); a(f"s_lshl_b32 s58, {WAVE}, 13"); a("s_add_u32 s57, s57, s58")
a(f"s_and_b32 s58, {RHO}, 3"); a("s_lshl_b32 s58, s58, 7"); a("s_add_u32 s57, s57, s58"); a(f"s_add_u32 s20, s57, {PB}")
for k in range(1, 4): a(f"s_add_u32 s{20+k}, s20, {(k>>1)*64*32768 + (k&1)*4096}")
a(f"s_lshr_b32 s57, {RHO}, 5"); a("s_lshl_b32 s57, s57, 7"); a(f"s_and_b32 s58, {RHO}, 31"); a("s_add_u32 s57, s57, s58"); a("s_lshl_b32 s57, s57, 10")
a(f"s_lshl_b32 s58, {WAVE}, 8"); a("s_add_u32 s28, s57, s58"); a(f"s_add_u32 s29, s28, {64*1024}")
a("s_mov_b32 s30, 0x00003f80"); a("s_mov_b32 s31, 0x3f800000")
a("s_waitcnt lgkmcnt(0)")
a("s_barrier")
FA = 64
for u in range(2):
    for k in range(2): a(f"ds_read_b128 {vr(FA+8*u+4*k,4)}, v7 offset:{u*256 + k*32}")
stamp(13)
poll_check(2, "s60", 252, 0)
stamp(14)
PL = 80
for k in range(4): a(f"buffer_load_dwordx4 {vr(PL+4*k,4)}, v5, {sWS}, s{20+k} offen sc1")
a("s_waitcnt lgkmcnt(0)")
for k in range(4):
    a(f"s_waitcnt vmcnt({3-k})")
    u = k & 1
    for d in range(4):
        a(f"v_dot2c_f32_bf16 v{FA+8*u+2*d}, s30, v{PL+4*k+d}"); a(f"v_dot2c_f32_bf16 v{FA+8*u+2*d+1}, s31, v{PL+4*k+d}")
for u in range(2):
    for d in range(4): a(f"v_cvt_pk_bf16_f32 v{112+4*u+d}, v{FA+8*u+2*d}, v{FA+8*u+2*d+1}")
    a(f"ds_write2_b64 v148, {vr(112+4*u,2)}, {vr(114+4*u,2)} offset0:{16*u} offset1:{16*u+2}")
a("s_waitcnt lgkmcnt(0)")
a(f"ds_read_b128 {vr(120,4)}, v149"); a(f"ds_read_b128 {vr(124,4)}, v149 offset:{4*OPITCH}")
a("s_waitcnt lgkmcnt(1)")
OF = {0: "", 1: " sc1", 2: " nt", 3: " sc0 sc1"}[opt("outf", 1)]
a(f"buffer_store_dwordx4 {vr(120,4)}, v150, {sOUT}, s28 offen{OF}")
a("s_waitcnt lgkmcnt(0)")
a(f"buffer_store_dwordx4 {vr(124,4)}, v150, {sOUT}, s29 offen{OF}")
a("s_or_b32 s57, s2, s46")
a("s_cmp_lg_u32 s57, 0")
a("s_cbranch_scc1 Lnotag")
a(f"s_mov_b32 s60, {TAG}")
flag_c("s60")
a.label("Lnotag")
warm(None)
if DEBUG:
    a("s_waitcnt vmcnt(0)")
    stamp(15)
if opt("probe", -1) >= 0:
    pi = opt("probe", -1)
    if opt("pw", -1) >= 0:
        a(f"s_cmp_lg_u32 s2, {opt('pw', -1)}"); a("s_cbranch_scc1 Lend")
    else:
        a(f"s_cmp_ge_u32 s2, 224"); a("s_cbranch_scc1 Lend")
    a("s_waitcnt lgkmcnt(0)")
    a(f"s_add_u32 s22, s{70+2*pi}, 3000")
    a.label("Lhold")
    a("s_sleep 4")
    a("s_memrealtime s[20:21]"); a("s_waitcnt lgkmcnt(0)"); a("s_sub_u32 s20, s20, s22"); a("s_cmp_lt_i32 s20, 0"); a("s_cbranch_scc1 Lhold")
    a("s_endpgm")
dump_stamps(0, opt("sw", 0))
if "--dbg" in sys.argv:
    a("s_cmp_lg_u32 s2, 5"); a("s_cbranch_scc1 Lend")
    a(f"s_cmp_lg_u32 {WAVE}, 0"); a("s_cbranch_scc1 Lend")
    a("s_load_dwordx2 s[20:21], s[0:1], 72")
    a("s_waitcnt lgkmcnt(0)")
    for i in range(16):
        a(f"s_sub_u32 s57, s{70+2*i}, s70"); a(f"v_mov_b32 v{32+i}, s57")
    a("v_mov_b32 v2, 0")
    a("s_mov_b64 exec, 1")
    for i in range(4): a(f"global_store_dwordx4 v2, v[{32+4*i}:{35+4*i}], s[20:21] offset:{16*i}")
a.label("Lend")
a("s_endpgm")
while cold: cold.pop(0)()
a.label("Ltab")
a.label("Lcode_end")

a.fix()
print("layout (widened, nops, pads, bytes):", a.layout({"0": "Lwret", "1": "Lwret"} if WARM else {}), file=sys.stderr)
bad = a.check_edges()
slow = {l.text[:-1]: [1] for l in a.L if l.label and ((l.text.startswith("Lcs") and "_" not in l.text) or (l.text.startswith("Lpa") and not l.text.startswith("Lpad")))}
base = {}
for name, dec in (("gemmC", base), ("gemmC-slow", dict(slow, **base)),
                  ("helpC", dict(slow, **{"Lhelper":[1], "Lnopf":[1], "Lk0":[1], "Lnotag":[1]})),
                  ("gemmC-ext", {"Lext_slow":[1], "Lext_lp":[1,0]}),
                  ("aw", {"Lawld":[1]}),
                  ("awh", {"Lawld":[1], "Law_nocs":[1]}),
                  ("ldx", {"Lloader":[1], "Lld_ts":[1], "Lld_pf":[1], "Lld_issue":[1,1,1], "Lld_tail":[0,0,0,1], "Lld_noz":[0,1,1,1], "Lld_done":[0,0,0,1], "Lld_nx":[1,1,1]}),
                  ("ldw", dict(slow, **{"Lloader":[1], "Lld_w":[1], "Lld_ts":[1], "Lld_pf":[1], "Lld_issue":[1,1,1], "Lld_tail":[0,0,0,1], "Lld_noz":[0,1,1], "Lld_nx":[1,1,0]})),
                  ("ldh", {"Lloader":[1], "Lhelper_loader":[1]})):
    seq = a.path(dec)
    nb = sum(1 for i in seq if i.op == "s_barrier")
    print(name, "instrs", len(seq), "barriers", nb, file=sys.stderr)
    bad += a.check_waits(seq)
if bad: print("CHECK FAILURES:", bad, file=sys.stderr)
hdr = open("parallel_sum__spectral_gfnet__mixer_channel_mlp__prompt.s.ref").read().split("; Override")[0]
out = hdr + f"; @launch grid=(256,1,1) block=(512,1,1) lds={LDS_BYTES}\n"
out += '.amdgcn_target "amdgcn-amd-amdhsa--gfx950"\n.text\n'
out += f".globl {NAME}\n.p2align 8\n.type {NAME},@function\n{NAME}:\n" + a.text().replace("Ltab:\nLcode_end:", ".type Ltab,@object\nLtab:\n.long " + ", ".join(str(k) for k in range(16)) + "\nLcode_end:") + "\n"
out += f""".section .rodata,"a"
.p2align 6
.amdhsa_kernel {NAME}
  .amdhsa_next_free_vgpr 256
  .amdhsa_next_free_sgpr 102
  .amdhsa_accum_offset 256
  .amdhsa_group_segment_fixed_size 0
  .amdhsa_kernarg_size 88
  .amdhsa_user_sgpr_count 2
  .amdhsa_user_sgpr_kernarg_segment_ptr 1
  .amdhsa_system_sgpr_workgroup_id_x 1
.end_amdhsa_kernel
"""
fn = [x for x in sys.argv[1:] if not x.startswith("--")][0]
open(fn, "w").write(out)
```

```python
import sys, math, struct
sys.path.insert(0, "work")
from asmlib import *
NAME = "parallel_sum__spectral_gfnet__mixer_channel_mlp__prompt_kernel"
DEBUG = "--stamps" in sys.argv
CLK = "s_memtime" if "--cyc" in sys.argv else "s_memrealtime"
def opt(name, default):
    for x in sys.argv:
        if x.startswith("--" + name + "="): return int(x.split("=")[1], 0)
    return default
def f2u(x): return "0x%08x" % struct.unpack("<I", struct.pack("<f", x))[0]

TAG = 0x0
F1, FW, F2, F3, F4 = 0x1000, 0x3000, 0xA000, 0x6000, 0x8000
SB = 0x80000
STAMPS = 0x20000
CS2 = 0x18000
CSB = 0x40000
ZB, WT, YB, HB, PB = 0x100000, 0x340000, 0x580000, 0x800000, 0x1000000
GP = 8192 + opt('gpad', 128)
WS_BYTES = 0x1800000
XR = 131072
ST = XR + 8192
ST2 = ST + 8192
ST3 = ST2 + 8192
CT = ST2 + 4096
cFREE, cRWF, cREC = 16, 32, 64
cFULL = 256
WTL = 114688
LDS_BYTES = 163840
SPIN_MAX = opt('spin', 400000)

a = Asm()
sX, sW, sWS, sOUT = "s[4:7]", "s[8:11]", "s[12:15]", "s[16:19]"
sTAG = "s[42:43]"
XCD, IDX, WAVE, R_, JL, HF, RHO, KAP = "s44", "s45", "s46", "s47", "s48", "s49", "s50", "s51"
ONES = "s56"
VCT = 254
G1ST = "--g1st" in sys.argv or "--g2st" in sys.argv
if "--g2st" in sys.argv: sys.argv.append("--kst=99")
incw = [False]
def stamp(i, force=False):
    if G1ST and incw[0] and not force and i not in (2, 3, 15): return
    if DEBUG: a(f"{CLK} s[{70+2*i}:{71+2*i}]")
def dstamp(sreg, lo, hi, base):
    if not DEBUG or "--dst" not in sys.argv: return
    a("s_waitcnt lgkmcnt(0)")
    a(f"{CLK} s[52:53]")
    a("s_waitcnt lgkmcnt(0)")
    for k in range(lo, hi+1):
        i = base + k - lo
        a(f"s_cmp_eq_u32 {sreg}, {k}")
        a(f"s_cselect_b64 s[{70+2*i}:{71+2*i}], s[52:53], s[{70+2*i}:{71+2*i}]")
def dump_stamps(role, wave):
    if not DEBUG or opt("probe", -1) >= 0: return
    lbl = newlbl("ds")
    a(f"s_cmp_lg_u32 {WAVE}, {wave}")
    a(f"s_cbranch_scc1 {lbl}")
    a("s_waitcnt vmcnt(0) lgkmcnt(0)")
    for i in range(32): a(f"v_mov_b32 v{32+i}, s{70+i}")
    a("v_mov_b32 v2, 0")
    a(f"s_lshl_b32 s57, s2, 7")
    a(f"s_add_u32 s57, s57, {STAMPS + role*0x8000}")
    a("s_mov_b64 exec, 1")
    for i in range(8): a(f"buffer_store_dwordx4 v[{32+4*i}:{35+4*i}], v2, {sWS}, s57 offen offset:{16*i}")
    a("s_mov_b64 exec, -1")
    a.label(lbl)
WARM = opt("warm", 0)
wid = [0]
def warm(c):
    if not WARM: return
    wid[0] += 1
    a.label(f"Lwarm_on_{c}_{wid[0]}" if c is not None else f"Lwarm_off_{wid[0]}")
def vr(b, n): return f"v[{b}:{b+n-1}]"
uid = [0]
def newlbl(p): uid[0] += 1; return f"L{p}{uid[0]}"

cold = []
def flag_store(soff_reg, vtmp):
    a(f"v_mov_b32 v{vtmp}, s42"); a(f"v_mov_b32 v{vtmp+1}, s43"); a(f"v_mov_b32 v{vtmp+2}, 0")
    a("s_mov_b64 exec, 1")
    a(f"buffer_store_dwordx2 {vr(vtmp,2)}, v{vtmp+2}, {sWS}, {soff_reg} offen sc1")
    a("s_mov_b64 exec, -1")
def poll_issue(vaddr, soff, vd, n=2):
    a(f"buffer_load_dwordx{n} {vr(vd,n)}, v{vaddr}, {sWS}, {soff} offen sc1")
def poll_check(vaddr, soff, vd, vmwait, n=2, tags=None, sleep=2):
    again = newlbl("pa"); done = newlbl("pd")
    tags = tags or [n-2]
    def cmp():
        a(f"v_cmp_ne_u64 vcc, {sTAG}, {vr(vd+tags[0],2)}")
        if len(tags) > 1:
            a(f"v_cmp_ne_u64 s[52:53], {sTAG}, {vr(vd+tags[1],2)}")
            a("s_nop 0")
            a("s_or_b64 vcc, vcc, s[52:53]")
        else:
            a("s_nop 0")
            a("s_cmp_lg_u64 vcc, 0")
    a(f"s_waitcnt vmcnt({vmwait})")
    cmp()
    a(f"s_cbranch_scc1 {again}")
    a.label(done)
    def slow():
        lp = newlbl("pl")
        a.label(again)
        a("s_mov_b32 s58, 0")
        a.label(lp)
        a(f"s_sleep {sleep}")
        poll_issue(vaddr, soff, vd, n)
        a("s_add_u32 s58, s58, 1")
        a("s_waitcnt vmcnt(0)")
        a(f"s_cmp_ge_u32 s58, {SPIN_MAX}")
        a(f"s_cbranch_scc1 {done}")
        cmp()
        a(f"s_cbranch_scc1 {lp}")
        a(f"s_branch {done}")
    cold.append(slow)
def lds_spin(vaddr, off, nw, thr, vt, sleep=0):
    lp = newlbl("ls")
    a.label(lp)
    if sleep: a(f"s_sleep {sleep}")
    a({1: f"ds_read_b32 v{vt}, v{vaddr} offset:{off}", 2: f"ds_read2_b32 {vr(vt,2)}, v{vaddr} offset0:{off//4} offset1:{off//4+64}", 4: f"ds_read_b128 {vr(vt,4)}, v{vaddr} offset:{off}", 6: f"ds_read_b128 {vr(vt,4)}, v{vaddr} offset:{off}"}[nw])
    if nw == 6: a(f"ds_read_b64 {vr(vt+4,2)}, v{vaddr} offset:{off+16}")
    a("s_waitcnt lgkmcnt(0)")
    if nw == 2: a(f"v_min_u32 v{vt}, v{vt}, v{vt+1}")
    if nw == 4: a(f"v_min3_u32 v{vt}, v{vt}, v{vt+1}, v{vt+2}"); a(f"v_min_u32 v{vt}, v{vt}, v{vt+3}")
    if nw == 6: a(f"v_min3_u32 v{vt}, v{vt}, v{vt+1}, v{vt+2}"); a(f"v_min3_u32 v{vt+3}, v{vt+3}, v{vt+4}, v{vt+5}"); a(f"v_min_u32 v{vt}, v{vt}, v{vt+3}")
    a(f"v_readfirstlane_b32 s58, v{vt}")
    a("s_add_u32 s55, s55, 1")
    a("s_lshr_b32 s54, s55, 24")
    a("s_lshl_b32 s54, s54, 8")
    a("s_or_b32 s58, s58, s54")
    a(f"s_cmp_lt_u32 s58, {thr}")
    a(f"s_cbranch_scc1 {lp}")

def lds_check(vflag, thr, vaddr, off, nw, pre=None, post=None, enter=None, sleep=1):
    slow_l = newlbl("cs"); back = newlbl("cb")
    a(f"v_readfirstlane_b32 s58, v{vflag}")
    if pre: pre()
    a(f"s_cmp_lt_u32 s58, {thr}")
    a(f"s_cbranch_scc1 {slow_l}")
    a.label(back)
    def slow():
        a.label(slow_l)
        if enter: enter()
        lds_spin(vaddr, off, nw, thr, vflag, sleep=sleep)
        if post: post()
        a(f"s_branch {back}")
    cold.append(slow)


FT = 8
def Fre(o, t): return vr(FT + (2*o+t)*6 + 2, 4)
def Fim(o, t): return vr(FT + (2*o+t)*6, 4)
def Fx(ri, o, t): return Fre(o, t) if ri == 0 else Fim(o, t)
H16 = "s59"
MASKHI = "s3"
JG = "s62"
WSOFF = opt("wsoff", 0); CX = opt("cx", 4)
def wsadj():
    if WSOFF: a(f"s_add_u32 s40, s40, {WSOFF}"); a("s_addc_u32 s41, s41, 0")
def tag_fix(): a("s_add_u32 s42, s42, 0x9e3779b9"); a("s_addc_u32 s43, s43, 0x7f4a7c15")
def gen_fm_fn(e, FM, FN, c, g4, t0, t1):
    e(f"v_and_b32 v{c}, 15, v0")
    e(f"v_lshrrev_b32 v{g4}, 4, v0"); e(f"v_lshlrev_b32 v{g4}, 2, v{g4}")
    if FN is not None:
        e(f"v_add_u32 v{t0}, {H16}, v{c}"); e(f"v_xor_b32 v{t1}, 16, v{t0}")
        e(f"v_cvt_f32_u32 v{FN}, v{t0}"); e(f"v_cvt_f32_u32 v{FN+1}, v{t1}")
    e(f"v_add_u32 v{t0}, {H16}, v{g4}"); e(f"v_xor_b32 v{t1}, 16, v{t0}")
    e(f"v_cvt_f32_u32 v{FM}, v{t0}"); e(f"v_cvt_f32_u32 v{FM+4}, v{t1}")
    for t in range(2):
        e(f"v_add_f32 v{FM+4*t+1}, 1.0, v{FM+4*t}"); e(f"v_add_f32 v{FM+4*t+2}, 2.0, v{FM+4*t}"); e(f"v_add_f32 v{FM+4*t+3}, 1.0, v{FM+4*t+2}")
def gen_mat(dst, vn, vm, tmp):
    for e in range(4): a(f"v_mul_f32 v{tmp+e}, v{vn}, v{vm+e}")
    for e in range(4): a(f"v_cos_f32 v{tmp+4+e}, v{tmp+e}")
    for e in range(4): a(f"v_sin_f32 v{tmp+e}, v{tmp+e}")
    a(f"v_cvt_pk_bf16_f32 v{dst+2}, v{tmp+4}, v{tmp+5}"); a(f"v_cvt_pk_bf16_f32 v{dst+3}, v{tmp+6}, v{tmp+7}")
    a(f"v_cvt_pk_bf16_f32 v{dst+4}, v{tmp}, v{tmp+1}"); a(f"v_cvt_pk_bf16_f32 v{dst+5}, v{tmp+2}, v{tmp+3}")
    a(f"v_xor_b32 v{dst}, 0x80008000, v{dst+4}"); a(f"v_xor_b32 v{dst+1}, 0x80008000, v{dst+5}")
def gen_tw(e, dc, ds, vn, vm, n):
    for k in range(n): e(f"v_mul_f32 v{ds+k}, v{vn}, v{vm+k}")
    for k in range(n): e(f"v_cos_f32 v{dc+k}, v{ds+k}")
    for k in range(n): e(f"v_sin_f32 v{ds+k}, v{ds+k}")
def gen_zaddr(e, dst, sbase, c, g4, t):
    e(f"v_add_u32 v{t}, {H16}, v{c}")
    e(f"v_lshl_add_u32 v{t}, v{g4}, 5, v{t}")
    e(f"v_xor_b32 v{t+1}, 16, v{t}")
    e(f"v_lshrrev_b32 v{t+3}, 5, v0")
    e(f"v_lshlrev_b32 v{t+2}, 6, v{t+3}"); e(f"v_sub_u32 v{t+2}, 32, v{t+2}")
    e(f"v_mul_u32_u24 v{t+3}, 0x4004, v{t+3}")
    for o in range(2): e(f"v_mad_i32_i24 v{dst+4*o}, v{t+o}, v{t+2}, v{t+3}")
    e(f"v_lshlrev_b32 v{t+2}, 5, v{t+2}")
    for o in range(2): e(f"v_add3_u32 v{dst+4*o+1}, v{dst+4*o}, v{t+2}, {sbase}")
    for o in range(2):
        for r in range(2, 4): e(f"v_add_u32 v{dst+4*o+r}, v{dst+4*o+r-1}, v{t+2}")
    for o in range(2): e(f"v_and_b32 v{dst+4*o}, 0x1fff, v{dst+4*o}")
    for o in range(2): e(f"v_add_u32 v{dst+4*o}, {sbase}, v{dst+4*o}")
def twiddle(e, re, im, c, s, n, tmp, conj):
    for p in range(0, n, 2):
        e(f"v_pk_mul_f32 {vr(tmp+p,2)}, {vr(im+p,2)}, {vr(s+p,2)}")
        e(f"v_pk_mul_f32 {vr(tmp+n+p,2)}, {vr(re+p,2)}, {vr(s+p,2)}")
    ng = " neg_lo:[0,0,1] neg_hi:[0,0,1]"
    for p in range(0, n, 2):
        e(f"v_pk_fma_f32 {vr(tmp+p,2)}, {vr(re+p,2)}, {vr(c+p,2)}, {vr(tmp+p,2)}" + (ng if conj else ""))
        e(f"v_pk_fma_f32 {vr(tmp+n+p,2)}, {vr(im+p,2)}, {vr(c+p,2)}, {vr(tmp+n+p,2)}" + ("" if conj else ng))
def packfrag(e, dst, lo, hi):
    e(f"v_cvt_pk_bf16_f32 v{dst}, v{lo}, v{lo+1}"); e(f"v_cvt_pk_bf16_f32 v{dst+1}, v{lo+2}, v{lo+3}")
    e(f"v_cvt_pk_bf16_f32 v{dst+2}, v{hi}, v{hi+1}"); e(f"v_cvt_pk_bf16_f32 v{dst+3}, v{hi+2}, v{hi+3}")

a("s_load_dwordx16 s[20:35], s[0:1], 0")
a("s_load_dwordx2 s[40:41], s[0:1], 80")
a("s_load_dwordx2 s[36:37], s[0:1], 64")
if DEBUG:
    a(f"{CLK} s[70:71]")
    for i in range(72, 102, 2): a(f"s_mov_b64 s[{i}:{i+1}], 0")
a("s_cmp_ge_u32 s2, 256")
a("s_cbranch_scc1 Lend")
a("s_getpc_b64 s[52:53]")
a.label("Lpc")
a("v_lshrrev_b32 v2, 6, v0")
a("v_and_b32 v0, 63, v0")
a(f"s_and_b32 {XCD}, s2, 7")
a(f"v_readfirstlane_b32 {WAVE}, v2")
a(f"s_lshr_b32 {IDX}, s2, 3")
a(f"s_and_b32 {R_}, {IDX}, 3")
a("s_mov_b32 s54, Lcode_end-Lpc")
a("s_mov_b32 s55, 0x20000")
a(f"s_cmp_lg_u32 {WAVE}, 7")
a("s_cbranch_scc1 Lnopf")
a("v_lshlrev_b32 v2, 7, v0")
a(f"s_lshl_b32 s57, {R_}, 13")
a("buffer_load_dword v255, v2, s[52:55], s57 offen")
a.label("Lnopf")
a("v_lshlrev_b32 v1, 4, v0")
a(f"s_lshr_b32 {JL}, {IDX}, 2")
a(f"s_and_b32 {HF}, {XCD}, 1")
a(f"s_and_b32 s57, {XCD}, 6")
a(f"s_lshl_b32 s57, s57, 1")
a(f"s_add_u32 {R_}, {R_}, s57")
a(f"s_lshl_b32 {RHO}, {R_}, 4"); a(f"s_add_u32 {RHO}, {RHO}, {JL}"); a(f"s_lshl_b32 s57, {HF}, 3"); a(f"s_add_u32 {RHO}, {RHO}, s57")
a("s_mov_b32 s11, 0x20000")
a(f"s_mul_i32 {JG}, {HF}, 7"); a(f"s_add_u32 {JG}, {JG}, {JL}")
a(f"v_mov_b32 v{VCT}, {CT}")
a(f"s_and_b32 s57, {WAVE}, 6")
a("s_cmp_eq_u32 s57, 4")
a("s_cbranch_scc1 Lloader")
a(f"s_lshl_b32 {KAP}, {XCD}, 5")
a(f"s_add_u32 {KAP}, {KAP}, {IDX}")
a(f"s_mov_b32 s14, {WS_BYTES}"); a("s_mov_b32 s15, 0x20000")
a(f"s_mov_b32 {MASKHI}, 0xffff0000")
a(f"s_cmp_ge_u32 {WAVE}, 4")
a("s_cbranch_scc1 Lawld")
a(f"s_lshr_b32 s57, {RHO}, 5"); a("s_lshl_b32 s57, s57, 7"); a(f"s_and_b32 s58, {RHO}, 31"); a("s_add_u32 s57, s57, s58")
a(f"s_lshl_b32 s58, {WAVE}, 5"); a("s_add_u32 s57, s57, s58"); a("s_lshl_b32 s57, s57, 10")
a(f"s_lshl_b32 s61, {WAVE}, 11"); a(f"s_add_u32 s61, s61, {XR}")
a("s_mov_b32 m0, s61")
a("s_add_u32 s58, s57, 0xffc00")
a("s_mov_b32 s10, 2097152")
a("v_mov_b64 v[4:5], 0"); a("v_mov_b64 v[6:7], 0"); a(f"v_add_u32 v3, v1, v{VCT}")
a("ds_write_b128 v3, v[4:7]")
a("s_waitcnt lgkmcnt(0)")
a("s_mov_b32 s8, s20"); a("s_mov_b32 s9, s21")
for k in range(2): a(f"buffer_load_dwordx4 v1, {sW}, s{57+k} offen offset:{1024*k} lds")
a("s_mov_b32 s4, s30"); a("s_mov_b32 s5, s31"); a("s_mov_b32 s6, 3584"); a("s_mov_b32 s7, 0x20000")
a("v_lshlrev_b32 v2, 1, v0"); a(f"s_lshl_b32 s57, {JG}, 8"); a(f"s_and_b32 s58, {WAVE}, 1"); a("s_lshl_b32 s58, s58, 7"); a("s_add_u32 s57, s57, s58")
a(f"buffer_load_ushort v198, v2, {sX}, s57 offen")
wsadj()
a(f"s_load_dwordx2 {sTAG}, s[40:41], {TAG}")
a("s_barrier")
a("s_branch Lcw")
a.label("Lawld")
RR = "s63"
B1V = 218; VAW = 219; T0 = 220
a(f"s_and_b32 {RR}, {WAVE}, 1")
a("s_waitcnt lgkmcnt(0)")
wsadj()
if opt("ftouch", 1):
    a("s_mov_b32 s12, s40"); a("s_mov_b32 s13, s41")
    a(f"s_lshl_b32 s57, s2, 1"); a(f"s_add_u32 s57, s57, {RR}"); a("s_lshl_b32 s57, s57, 7")
    a("v_mov_b32 v4, 0")
    a(f"buffer_load_dword v253, v4, {sWS}, s57 offen sc1")
a(f"s_load_dwordx2 {sTAG}, s[40:41], {TAG}")
a("s_barrier")
a("s_branch Law")

a.label("Lloader")
a(f"s_and_b32 s57, {WAVE}, 1"); a("s_lshl_b32 s56, s57, 14")
a("s_lshl_b32 s38, s57, 8"); a(f"s_add_u32 s38, s38, {CT+cFULL}")
a("s_mov_b64 s[16:17], s[52:53]"); a("s_mov_b32 s18, s54"); a("s_mov_b32 s19, 0x20000")
a("v_mov_b32 v17, Ltab-Lpc"); a("v_mov_b64 v[14:15], 0"); a("v_mov_b32 v16, 0")
a(f"s_mov_b32 s14, {WS_BYTES}"); a("s_mov_b32 s15, 0x20000")
a(f"s_cmp_eq_u32 {JL}, 7")
a("s_cbranch_scc1 Lhelper_loader")
a(f"s_and_b32 s63, {IDX}, 3"); a("s_lshl_b32 s63, s63, 1"); a(f"s_add_u32 s63, s63, {JL}")
a(f"s_bfe_u32 s57, {XCD}, 0x10001"); a("s_add_u32 s63, s63, s57")
a(f"s_lshl_b32 s57, {HF}, 2"); a("s_add_u32 s63, s63, s57"); a("s_and_b32 s63, s63, 7")
a("s_mov_b32 s64, 8"); a("s_mov_b32 s65, 1"); a("s_mov_b32 s66, 0")
a(f"s_cmp_eq_u32 {WAVE}, 5")
a("s_cbranch_scc1 Lld_w")
a("v_lshrrev_b32 v6, 4, v0")
a("v_bfe_u32 v7, v0, 3, 1")
a("v_lshlrev_b32 v7, 20, v7")
a("v_lshl_add_u32 v7, v6, 15, v7")
a("v_and_b32 v8, 7, v0")
a("v_xor_b32 v8, v8, v6")
a("v_lshl_add_u32 v2, v8, 4, v7")
a("v_xor_b32 v3, 64, v2")
a("v_mov_b32 v4, v2"); a("v_mov_b32 v5, v3")
a(f"s_lshr_b32 s59, {R_}, 1"); a("s_lshl_b32 s59, s59, 17")
a(f"s_and_b32 s57, {R_}, 1"); a("s_lshl_b32 s57, s57, 14"); a("s_add_u32 s59, s59, s57")
a("s_mov_b32 s60, 128"); a("s_mov_b32 s61, 4096")
a("s_mov_b32 s10, 2097152")
a("s_waitcnt lgkmcnt(0)")
a("s_mov_b32 s8, s20"); a("s_mov_b32 s9, s21")
a("s_branch Lld_go")
a.label("Lld_w")
a("v_bfe_u32 v6, v0, 2, 2")
a("v_mul_u32_u24 v6, 3584, v6")
a("v_lshrrev_b32 v7, 4, v0")
a("v_lshl_add_u32 v6, v7, 6, v6")
a("v_and_b32 v7, 3, v0")
a("v_lshl_add_u32 v2, v7, 4, v6")
for j in range(1, 4): a(f"v_add_u32 v{2+j}, {j*(4*3584-1024)}, v2")
a(f"s_lshl_b32 s59, {JG}, 8")
a(f"s_mov_b32 s60, {64*3584}"); a(f"s_mov_b32 s61, {16*3584}")
a("s_mov_b32 s10, 1835008")
a("s_waitcnt lgkmcnt(0)")
a("s_mov_b32 s8, s28"); a("s_mov_b32 s9, s29")
a.label("Lld_go")
wsadj()
a("s_barrier")
stamp(1)
def grp(first=False):
    if not first:
        a("s_add_u32 s68, s68, 4096"); a("s_mov_b32 m0, s68"); a("s_add_u32 s67, s67, s61")
    for j in range(4): a(f"buffer_load_dwordx4 v{2+j}, {sW}, s67 offen offset:{1024*j} lds")
def issue():
    a("s_mul_i32 s67, s63, s60"); a("s_and_b32 s68, s66, 3"); a("s_lshl_b32 s68, s68, 15"); a("s_add_u32 s68, s68, s56")
    a("s_mov_b32 m0, s68"); a("s_add_u32 s67, s67, s59")
    grp(True)
    a("s_add_u32 s63, s63, s65"); a("s_sub_u32 s57, s63, s64"); a("s_cmp_ge_u32 s63, s64"); a("s_cselect_b32 s63, s57, s63")
    grp()
    a("s_add_u32 s66, s66, 1"); a("s_lshl_b32 s39, s66, 2")
    grp(); grp()
def dflag(val):
    a("s_mov_b32 m0, s38"); a("s_nop 0")
    a(f"buffer_load_dword v17, {sOUT}, {val} offen lds")
a.label("Lld_issue")
issue()
dflag("s39")
a("s_cmp_eq_u32 s66, 1")
a("s_cbranch_scc1 Lld_ts")
PFAT = opt("pfat", 4)
a(f"s_cmp_eq_u32 s66, {PFAT}")
a("s_cbranch_scc1 Lld_pf")
a.label("Lld_c")
a("s_cmp_lt_u32 s66, 4")
a("s_cbranch_scc1 Lld_issue")
a("s_cmp_eq_u32 s66, 8")
a("s_cbranch_scc1 Lld_tail")
a("s_barrier")
a("s_branch Lld_issue")
def tail_setup():
    a(f"s_load_dwordx2 {sTAG}, s[40:41], {TAG}")
    a("s_mov_b32 s12, s40"); a("s_mov_b32 s13, s41")
    a(f"s_lshr_b32 s57, s56, 4")
    a(f"s_lshl_b32 s21, {R_}, 11"); a("s_add_u32 s21, s21, s57"); a(f"s_add_u32 s21, s21, {SB}")
    a(f"s_add_u32 s22, s21, {0x8000-2048}")
    a(f"s_add_u32 s23, s57, {ST3}")
    a(f"s_lshl_b32 s24, {JG}, 14"); a(f"s_lshr_b32 s58, {R_}, 2"); a("s_lshl_b32 s58, s58, 12"); a("s_add_u32 s24, s24, s58")
    a("s_add_u32 s24, s24, s57"); a(f"s_add_u32 s24, s24, {CSB}")
    a(f"s_lshl_b32 {KAP}, {XCD}, 5"); a(f"s_add_u32 {KAP}, {KAP}, {IDX}")
    a(f"s_lshr_b32 s3, {KAP}, 7"); a("s_lshl_b32 s3, s3, 11"); a("s_add_u32 s3, s3, s57"); a(f"s_add_u32 s3, s3, {F1}")
    a("v_bfe_u32 v7, v0, 2, 2"); a("v_lshlrev_b32 v7, 10, v7")
    a("v_lshrrev_b32 v16, 5, v0"); a("v_lshl_add_u32 v7, v16, 12, v7")
    a("v_bfe_u32 v6, v0, 4, 1"); a("v_lshl_add_u32 v7, v6, 6, v7")
    a("v_and_b32 v6, 3, v0"); a("v_lshl_add_u32 v14, v6, 4, v7")
    a(f"s_mul_i32 s25, {HF}, {896*1024}")
    a(f"s_xor_b32 s58, {JL}, {CX}"); a(f"s_lshl_b32 s58, s58, 7"); a("s_add_u32 s25, s25, s58")
    a(f"s_and_b32 s27, {IDX}, 3"); a("s_lshl_b32 s27, s27, 1"); a(f"s_add_u32 s27, s27, {JL}"); a(f"s_and_b32 s57, {WAVE}, 1"); a("s_add_u32 s27, s27, s57")
    for _ in range(2): a("s_sub_u32 s57, s27, 7"); a("s_cmp_ge_u32 s27, 7"); a("s_cselect_b32 s27, s57, s27")
    a("v_lshlrev_b32 v16, 5, v16"); a("v_bfe_u32 v6, v0, 1, 4"); a("v_add_u32 v16, v16, v6")
    a(f"v_mul_u32_u24 v16, {GP}, v16"); a("v_and_b32 v6, 1, v0"); a("v_lshl_add_u32 v16, v6, 4, v16")
    a("s_lshr_b32 s20, s56, 7"); a(f"s_mul_i32 s20, s20, {GP}"); a(f"s_lshl_b32 s58, {KAP}, 5"); a("s_add_u32 s20, s20, s58"); a(f"s_add_u32 s20, s20, {ZB}")
    a("v_and_b32 v15, 31, v0"); a("v_lshlrev_b32 v15, 3, v15")
    a(f"s_lshr_b32 s26, {KAP}, 6"); a("s_lshl_b32 s26, s26, 8"); a(f"s_add_u32 s26, s26, {FW}")
a.label("Lld_ts")
tail_setup()
a(f"s_cmp_eq_u32 {JL}, 7")
a("s_cbranch_scc0 Lld_issue")
lds_spin(VCT, cFREE, 4, 8, 20, sleep=4)
a("s_mov_b32 s66, 8")
a("s_branch Lld_tail2")
a.label("Lld_pf")
a("s_mov_b32 s4, s32"); a("s_mov_b32 s5, s33"); a("s_mov_b32 s6, 1835008"); a("s_mov_b32 s7, 0x20000")
NPF = opt("npf", 3)
if NPF == 1:
    a("v_min_u32 v9, 31, v0"); a("v_lshlrev_b32 v9, 7, v9")
    a(f"s_mul_i32 s57, {XCD}, 28"); a(f"s_add_u32 s57, s57, {IDX}")
    a("s_lshl_b32 s58, s57, 13"); a("s_lshr_b32 s57, s56, 2"); a("s_add_u32 s58, s58, s57")
    a(f"buffer_load_dword v27, v9, {sX}, s58 offen")
if NPF >= 2:
    a("v_lshlrev_b32 v9, 7, v0")
    a(f"s_mul_i32 s57, {HF}, 28"); a(f"s_add_u32 s57, s57, {IDX}")
    a("s_lshl_b32 s58, s57, 15"); a("s_add_u32 s58, s58, s56")
    if NPF == 3:
        a(f"s_bfe_u32 s57, {XCD}, 0x10001"); a("s_lshl_b32 s57, s57, 13"); a("s_add_u32 s58, s58, s57")
    a(f"buffer_load_dword v27, v9, {sX}, s58 offen")
    if NPF == 2:
        a("s_add_u32 s58, s58, 8192")
        a(f"buffer_load_dword v26, v9, {sX}, s58 offen")
a("s_branch Lld_c")
a.label("Lld_tail")
stamp(2)
a("s_mov_b32 s12, s40"); a("s_mov_b32 s13, s41")
a("s_mov_b32 m0, s23"); a("s_add_u32 s23, s23, 4096")
a(f"buffer_load_dwordx4 v1, {sWS}, s21 offen sc1 lds")
a(f"buffer_load_dwordx4 v1, {sWS}, s22 offen offset:2048 sc1 lds")
a("s_mov_b32 m0, s23"); a("s_nop 0")
a(f"buffer_load_dwordx4 v1, {sWS}, s24 offen sc1 lds")
a(f"buffer_load_dwordx4 v1, {sWS}, s24 offen offset:2048 sc1 lds")
dflag(36)
a.label("Lld_tail2")
poll_issue(1, "s3", 8, 4)
a("v_mov_b32 v2, v14")
for j in range(1, 4): a(f"v_add_u32 v{2+j}, {j*(8192-1024)}, v2")
a("s_mov_b32 s8, s32"); a("s_mov_b32 s9, s33"); a("s_mov_b32 s10, 1835008")
a("s_mov_b32 s59, s25"); a(f"s_mov_b32 s60, {128*1024}"); a(f"s_mov_b32 s61, {32*1024}")
a("s_mov_b32 s63, s27"); a("s_mov_b32 s64, 7"); a("s_mov_b32 s65, 2")
a("s_waitcnt lgkmcnt(0)")
tag_fix()
a.label("Lld_w2")
issue()
a(f"s_cmp_lg_u32 s66, {opt('zat', 9)}")
a("s_cbranch_scc1 Lld_noz")
poll_check(1, "s3", 8, 16, 4, tags=[0, 2], sleep=8)
a("s_lshr_b32 s68, s56, 3"); a(f"s_add_u32 s68, s68, {ST}")
for k in range(4):
    a(f"s_add_u32 m0, s68, {1024*(k>>1) + 4096*(k&1)}")
    a(f"s_add_u32 s57, s20, {(16*(k>>1) + 64*(k&1))*GP}")
    a(f"buffer_load_dwordx4 v16, {sWS}, s57 offen sc1 lds")
dflag(40)
stamp(3)
a.label("Lld_noz")
a("s_cmp_eq_u32 s66, 12")
a("s_cbranch_scc1 Lld_done")
a("s_sub_u32 s39, s66, 3")
a(f"s_add_u32 s57, s66, {WAVE}")
a("s_cmp_lg_u32 s57, 16")
a("s_cbranch_scc1 Lld_nx")
poll_issue(15, "s26", 12, 2)
lds_spin(VCT, cFREE, 4, "s39", 20, sleep=1)
poll_check(15, "s26", 12, 0, 2, sleep=8)
a(f"s_mul_i32 s67, {KAP}, {GP}"); a(f"s_add_u32 s67, s67, {WT}")
for g in range(2):
    a(f"s_mov_b32 m0, {WTL + 4096*g}"); a("s_nop 0")
    for j in range(4): a(f"buffer_load_dwordx4 v1, {sWS}, s67 offen offset:{1024*j} sc1 lds")
    if g == 0: a("s_add_u32 s67, s67, 4096")
a("s_branch Lld_done")
a.label("Lld_nx")
lds_spin(VCT, cFREE, 4, "s39", 20, sleep=1)
a("s_branch Lld_w2")
a.label("Lld_done")
dflag(44)
stamp(5)
a("s_barrier")
a("s_barrier")
a("s_barrier")
a("s_waitcnt vmcnt(0) lgkmcnt(0)")
stamp(4)
dump_stamps(1, 4)
dump_stamps(3, 5)
a("s_endpgm")
def helper_loader():
    a.label("Lhelper_loader")
    a("v_mov_b64 v[2:3], 0"); a("v_mov_b64 v[4:5], 0")
    a(f"s_lshl_b32 s67, {XCD}, 2"); a(f"s_and_b32 s57, {IDX}, 3"); a("s_add_u32 s67, s67, s57")
    a("s_mul_i32 s67, s67, 32896")
    a("s_mov_b32 s10, 1052672")
    a(f"s_cmp_eq_u32 {WAVE}, 5")
    a("s_cselect_b32 s68, 36864, 0")
    a("s_waitcnt lgkmcnt(0)")
    a("s_cselect_b32 s8, s24, s22"); a("s_cselect_b32 s9, s25, s23")
    wsadj()
    a("s_barrier")
    stamp(1)
    a("s_mov_b32 s69, 9")
    a.label("Lig2")
    a("s_mov_b32 m0, s68")
    a("s_add_u32 s68, s68, 4096")
    for j in range(4): a(f"buffer_load_dwordx4 v1, {sW}, s67 offen offset:{1024*j} lds")
    a("s_add_u32 s67, s67, 4096")
    a("s_sub_u32 s69, s69, 1")
    a("s_cmp_lg_u32 s69, 0")
    a("s_cbranch_scc1 Lig2")
    dflag(4)
    a("s_branch Lld_ts")
helper_loader()

a.label("Law")
if WARM:
    a("s_mov_b64 exec, 0")
    a(f"s_cmp_eq_u32 {RR}, 0")
    a("s_cbranch_scc1 Lchain_0")
    a("s_branch Lchain_1")
    a.label("Lwret")
    a("s_mov_b64 exec, -1")
    stamp(11)
a(f"s_setprio {opt('awprio', 3)}")
a("s_mov_b32 s12, s40"); a("s_mov_b32 s13, s41")
RC = 72
a(f"s_lshl_b32 s60, {RR}, 12"); a(f"s_add_u32 s64, s60, {ST3}"); a("v_add_u32 v7, s64, v1")
a(f"s_mul_i32 s66, {RHO}, {GP}"); a("s_add_u32 s66, s66, s60"); a(f"s_add_u32 s66, s66, {ZB}")
a(f"s_lshl_b32 s60, {RR}, 11"); a(f"s_lshl_b32 s58, {RHO}, 3"); a("s_add_u32 s60, s60, s58"); a(f"s_add_u32 s60, s60, {F1}")
a("v_and_b32 v5, 7, v0"); a(f"v_lshl_add_u32 v6, v5, 3, v{VCT}")
a(f"s_lshl_b32 s67, {RHO}, 7"); a(f"s_lshl_b32 s58, {RR}, 15"); a("s_add_u32 s67, s67, s58"); a(f"s_add_u32 s67, s67, {SB}")
a("s_waitcnt lgkmcnt(0)")
tag_fix()
a(f"v_mov_b32 v{RC+2}, s42"); a(f"v_mov_b32 v{RC+3}, s43")
stamp(2)
lds_spin(VCT, cRWF, 4, 1, 20, sleep=1)
STV = 100; EB = 104; KC = 108; t = 112
a(f"ds_read_b64 {vr(STV,2)}, v6 offset:{cREC}")
C0 = -2*math.sqrt(2/math.pi)*math.log2(math.e); C1 = C0*0.044715
a(f"v_mov_b32 v{EB+3}, s42")
a("s_waitcnt lgkmcnt(0)")
a(f"v_rcp_f32 v{KC+2}, v{STV+1}")
a(f"v_mul_f32 v{KC}, v{STV+1}, v{STV+1}")
a(f"v_cvt_pk_bf16_f32 v{EB+1}, v{STV}, v{KC+2}")
a(f"v_mul_f32 v{KC+1}, {f2u(C0)}, v{STV+1}"); a(f"v_mul_f32 v{KC}, v{KC}, v{STV+1}")
a(f"v_lshlrev_b32 v{t+1}, 16, v{EB+1}"); a(f"v_and_b32 v{t+2}, {MASKHI}, v{EB+1}")
a(f"v_sub_f32 v{t+1}, v{STV}, v{t+1}"); a(f"v_sub_f32 v{t+2}, v{KC+2}, v{t+2}")
a(f"v_mul_f32 v{KC}, {f2u(C1)}, v{KC}")
a(f"v_cvt_pk_bf16_f32 v{EB}, v{STV}, v{t+1}"); a(f"v_cvt_pk_bf16_f32 v{EB+2}, v{t+2}, 0")
a(f"s_cmp_eq_u32 {RR}, 0"); a("s_cselect_b64 vcc, 0, -1")
for k in range(3): a(f"v_cndmask_b32 v{EB+k}, v{EB+k}, v{KC+k}, vcc")
lds_spin(VCT, cRWF, 4, 2, 20, sleep=1)
for k in range(4): a(f"ds_read_b128 {vr(80+4*k,4)}, v7 offset:{1024*k}")
stamp(3)
ZFIRST = opt("zfirst", 1)
def zstores():
    a("s_mov_b64 exec, 0xff")
    a(f"buffer_store_dwordx4 {vr(EB,4)}, v1, {sWS}, s67 offen sc1")
    a("s_mov_b64 exec, -1")
    a("s_waitcnt lgkmcnt(0)")
    for k in range(4): a(f"buffer_store_dwordx4 {vr(80+4*k,4)}, v1, {sWS}, s66 offen offset:{1024*k} sc1")
    stamp(5)
if ZFIRST: zstores()
a(f"s_cmp_eq_u32 {JL}, 7")
a("s_cbranch_scc1 Law_nocs")
if opt("wpf", 0):
    a("v_min_u32 v8, 37, v0"); a("v_lshlrev_b32 v8, 7, v8")
    a(f"s_mul_i32 s57, {XCD}, 28"); a(f"s_add_u32 s57, s57, {IDX}"); a(f"s_mul_i32 s57, s57, {37*128}")
    a(f"s_cmp_eq_u32 {RR}, 1")
    a("s_cselect_b32 s8, s24, s22"); a("s_cselect_b32 s9, s25, s23"); a("s_mov_b32 s10, 1052672")
    a(f"buffer_load_dword v252, v8, {sW}, s57 offen")
a("v_lshrrev_b32 v9, 4, v0"); a("v_lshlrev_b32 v9, 11, v9")
a("v_bfe_u32 v5, v0, 2, 2"); a("v_lshl_add_u32 v9, v5, 6, v9"); a("v_and_b32 v5, 3, v0"); a("v_lshl_add_u32 v9, v5, 3, v9")
a(f"s_lshl_b32 s58, {RR}, 9"); a("s_add_u32 s57, s58, 16384")
a("v_add_u32 v9, s57, v9")
a(f"s_lshl_b32 s68, {JG}, 14"); a("s_add_u32 s68, s68, s58"); a(f"s_add_u32 s68, s68, {CSB}")
a(f"s_lshl_b32 s58, {R_}, 10"); a("s_add_u32 s68, s68, s58")
a("v_cmp_gt_u32 vcc, 16, v0")
for k in range(4): a(f"v_mov_b32 v{24+k}, 0x3f803f80")
for st in range(2):
    lds_spin(VCT, cFULL+256, 1, st + 1, 20, sleep=1)
    for kk in range(2):
        for fb in range(4):
            for j in range(2): a(f"ds_read_b64_tr_b16 {vr(128+16*kk+4*fb+2*j,2)}, v9 offset:{st*32768 + kk*8192 + j*1024 + (fb>>1)*256 + (fb&1)*32}")
    for kk in range(2):
        a(f"s_waitcnt lgkmcnt({8-8*kk})")
        for fb in range(4):
            d = vr(112+4*fb, 4)
            a(f"v_mfma_f32_16x16x32_bf16 {d}, v[24:27], {vr(128+16*kk+4*fb,4)}, {'0' if st+kk == 0 else d}")
a(f"v_cndmask_b32 v{RC}, v120, v112, vcc"); a(f"v_cndmask_b32 v{RC+1}, v124, v116, vcc")
stamp(7)
a("s_mov_b32 exec_hi, 0")
a(f"buffer_store_dwordx4 {vr(RC,4)}, v1, {sWS}, s68 offen sc1")
a("s_mov_b64 exec, -1")
a("s_waitcnt vmcnt(1)")
flag_store("s60", T0)
stamp(4)
for _ in range(opt("awb", 4 if DEBUG else 2)): a("s_barrier")
a("s_branch Law_end")
a.label("Law_nocs")
a("s_waitcnt vmcnt(0)")
flag_store("s60", T0)
stamp(6)
a.label("Law_end")
dump_stamps(2, 6)
a("s_endpgm")

a.label("Lcw")
incw[0] = True
ACC = 64
TW1c, TW1s = 152, 160
TW2c, TW2s = 168, 172
UVa, UVb = 176, 180
WIN = 200
FM, FN = 208, 216
VW, VY, VFR, VPK = 129, 130, 131, 128
FLG = 138
a("s_setprio 2")
a(f"s_mov_b32 {ONES}, 0x3f803f80")
a(f"s_and_b32 {H16}, {WAVE}, 1"); a(f"s_lshl_b32 {H16}, {H16}, 4")
a("s_mov_b32 s18, 2097152"); a("s_mov_b32 s19, 0x20000")
a("s_mov_b32 s12, s40"); a("s_mov_b32 s13, s41")
a("s_mov_b32 s16, s36"); a("s_mov_b32 s17, s37")
a(f"s_lshr_b32 s64, {WAVE}, 1")
a(f"s_lshl_b32 s58, {WAVE}, 2"); a(f"v_add_u32 v{VFR}, s58, v{VCT}")
gen_fm_fn(a, FM, FN, 132, 133, 4, 5)
a(f"v_mul_f32 v6, {f2u(1/32)}, v{FN}"); a(f"v_mul_f32 v7, {f2u(1/32)}, v{FN+1}")
for o in range(2):
    for t in range(2): gen_mat(FT + (2*o+t)*6, 6+o, FM+4*t, T0)
G16, TWRc, TWRs, ZA = 32, 40, 48, 56
a(f"v_cvt_f32_u32 v{T0+8}, v133")
a(f"v_add_f32 v{T0+9}, 1.0, v{T0+8}"); a(f"v_add_f32 v{T0+10}, 2.0, v{T0+8}"); a(f"v_add_f32 v{T0+11}, 1.0, v{T0+10}")
a("v_cvt_f32_u32 v6, v132"); a(f"v_mul_f32 v6, {f2u(1/16)}, v6")
gen_mat(G16, 6, T0+8, T0)
for o in range(2):
    a(f"v_mul_f32 v6, {f2u(1/512)}, v{FN+o}")
    gen_tw(a, TWRc+4*o, TWRs+4*o, 6, T0+8, 4)
a(f"s_lshl_b32 s57, {WAVE}, 3"); a(f"s_add_u32 s57, s57, {ST3}")
gen_zaddr(a, ZA, "s57", 132, 133, 4)
warm(0)
XF, SS, XU, D1, D2 = 64, 72, 80, 96, 112
a("v_lshlrev_b32 v4, 3, v0")
a(f"s_lshl_b32 s58, {H16}, 5"); a("s_add_u32 s58, s58, s61")
a("v_add_u32 v4, s58, v4"); a("v_xor_b32 v5, 512, v4")
for k in range(4): a(f"v_mov_b32 v{SS+k}, 0")
a("v_bfe_u32 v6, v0, 4, 1"); a(f"s_lshl_b32 s58, {WAVE}, 4"); a(f"s_add_u32 s58, s58, {CT+cREC}"); a("v_lshl_add_u32 v6, v6, 3, s58")
a("v_mov_b32 v7, 1")
if G1ST and not opt('kst', 0): stamp(1, True)
a("s_waitcnt vmcnt(0) lgkmcnt(0)")
for t in range(2):
    a(f"ds_read_b64_tr_b16 {vr(XF+4*t,2)}, v{4+t}")
    a(f"ds_read_b64_tr_b16 {vr(XF+4*t+2,2)}, v{4+t} offset:1024")
tag_fix()
if G1ST and not opt('kst', 0): stamp(13, True)
a("s_waitcnt lgkmcnt(0)")
for t in range(2):
    for d in range(2):
        for u in range(2):
            x = XF + 4*t + 2*u + d
            a(f"v_dot2c_f32_bf16 v{SS+u}, {ONES}, v{x}")
            a(f"v_dot2c_f32_bf16 v{SS+2+u}, v{x}, v{x}")
unl = []
for k in range(8):
    unl.append(f"v_lshlrev_b32 v{XU+2*k}, 16, v{XF+k}"); unl.append(f"v_and_b32 v{XU+2*k+1}, {MASKHI}, v{XF+k}")
def un(n):
    for _ in range(n):
        if unl: a(unl.pop(0))
un(3)
for b in (SS, SS+2): a(f"v_permlane16_swap_b32 v{b}, v{b+1}")
for b in (SS, SS+2): a(f"v_add_f32 v{b}, v{b}, v{b+1}")
for b in (SS, SS+2): a(f"v_mov_b32 v{b+1}, v{b}")
un(1)
for b in (SS, SS+2): a(f"v_permlane32_swap_b32 v{b}, v{b+1}")
for b in (SS, SS+2): a(f"v_add_f32 v{b}, v{b}, v{b+1}")
for sh in (8, 4, 2, 1):
    un(1)
    for b in (SS, SS+2): a(f"v_add_f32_dpp v{b}, v{b}, v{b} row_ror:{sh} row_mask:0xf bank_mask:0xf")
RC = 76
a(f"v_mul_f32 v{RC}, {f2u(-1/512)}, v{SS}")
a(f"v_mul_f32 v{SS+2}, {f2u(1/512)}, v{SS+2}")
a(f"v_fma_f32 v{SS+2}, -v{RC}, v{RC}, v{SS+2}")
a(f"v_max_f32 v{SS+2}, 0, v{SS+2}")
a(f"v_add_f32 v{SS+1}, {f2u(1e-5)}, v{SS+2}")
a(f"v_mov_b32 v{SS}, {f2u(1e-10)}")
a(f"v_rsq_f32 v{SS+1}, v{SS+1}")
a(f"v_fmac_f32 v{SS}, {f2u(1+1e-5)}, v{SS+2}")
a(f"v_rsq_f32 v{RC+1}, v{SS}")
a(f"v_mul_f32 v{SS+3}, v{RC}, v{SS+1}")
un(2)
a(f"ds_write_b64 v6, {vr(RC,2)}")
a(f"ds_write_b32 v{VFR}, v7 offset:{cRWF}")
for k in range(2):
    a(f"v_readlane_b32 s{20+2*k}, v{SS+1}, {16*k}"); a(f"v_readlane_b32 s{21+2*k}, v{SS+3}, {16*k}")
un(99)
for k in range(8):
    sp = 20 + 2*((k >> 1) & 1)
    a(f"v_pk_fma_f32 {vr(XU+2*k,2)}, {vr(XU+2*k,2)}, s[{sp}:{sp+1}], s[{sp}:{sp+1}] op_sel:[0,0,1] op_sel_hi:[1,0,1]")
for k in range(8): a(f"v_cvt_pk_bf16_f32 v{XF+k}, v{XU+2*k}, v{XU+2*k+1}")
for o in range(2):
    for t in range(2):
        for ri in range(2):
            d = vr(D1 + 8*o + 4*ri, 4)
            a(f"v_mfma_f32_16x16x32_bf16 {d}, {vr(XF+4*t,4)}, {Fx(ri,o,t)}, {'0' if t == 0 else d}")
a(f"v_mul_f32 v6, {f2u(1/1024)}, v{FN}"); a(f"v_mul_f32 v195, {f2u(1/1024)}, v{FN+1}")
for o in range(2):
    twiddle(a, D1+8*o, D1+8*o+4, TWRc+4*o, TWRs+4*o, 4, XU+8*o, False)
    packfrag(a, XF+4*o, XU+8*o, XU+8*o+4)
    if o == 1 or True:
        pass
for o in range(2):
    a(f"v_mfma_f32_16x16x32_bf16 {vr(D2+8*o,4)}, {vr(G16+2,4)}, {vr(XF+4*o,4)}, 0")
    a(f"v_mfma_f32_16x16x32_bf16 {vr(D2+8*o+4,4)}, {vr(G16,4)}, {vr(XF+4*o,4)}, 0")
for k in range(8): a(f"v_mul_f32 v{TW1s+k}, v6, v{FM+k}")
for o in range(2):
    for r in range(4): a(f"v_cvt_pk_bf16_f32 v{XU+4*o+r}, v{D2+8*o+r}, v{D2+8*o+4+r}")
a(f"v_readlane_b32 s20, v{XU}, 32"); a(f"v_readlane_b32 s21, v{XU+4}, 32"); a(f"v_readlane_b32 s22, v{XU}, 0"); a(f"v_readlane_b32 s23, v{XU+4}, 0")
for k in (1, 2, 3, 5, 6, 7): a(f"ds_write_b32 v{ZA+k}, v{XU+k}")
a(f"s_cmp_eq_u32 {H16}, 0"); a("s_cselect_b32 s20, s20, s22"); a("s_cselect_b32 s21, s23, s21")
a("v_mov_b32 v4, 2")
a(f"v_writelane_b32 v{XU}, s20, 0"); a(f"v_writelane_b32 v{XU+4}, s21, 0")
for k in (0, 4): a(f"ds_write_b32 v{ZA+k}, v{XU+k}")
a(f"ds_write_b32 v{VFR}, v4 offset:{cRWF}")
if G1ST and not opt('kst', 0): stamp(14, True)
VTG = 250
def late_setup(e, FM=208):
    for k in range(8): e(f"v_cos_f32 v{TW1c+k}, v{TW1s+k}")
    for k in range(8): e(f"v_sin_f32 v{TW1s+k}, v{TW1s+k}")
    gen_tw(e, TW2c, TW2s, 195, FM, 4)
    e("v_lshrrev_b32 v192, 5, v0"); e("v_lshlrev_b32 v192, 7, v192")
    e("v_bfe_u32 v193, v0, 1, 4"); e("v_add_u32 v192, v192, v193")
    e("v_and_b32 v193, 1, v0"); e("v_lshl_add_u32 v192, v193, 6, v192")
    e("s_lshl_b32 s53, s64, 9"); e(f"s_add_u32 s53, s53, {H16}")
    e("v_add_u32 v192, s53, v192"); e("v_cvt_f32_u32 v192, v192"); e(f"v_mul_f32 v{T0}, {f2u(1/2048)}, v192")
    for n in range(1, 4): e(f"v_add_f32 v{T0+n}, {f2u((256*(n>>1) + 32*(n&1))/2048)}, v{T0}")
    for n in range(4): e(f"v_cos_f32 v{T0+4+n}, v{T0+n}")
    for n in range(4): e(f"v_sin_f32 v{T0+n}, v{T0+n}")
    for n in range(4): e(f"v_add_f32 v{T0+8+n}, v{T0+4+n}, v{T0+n}")
    for n in range(4): e(f"v_sub_f32 v{T0+n}, v{T0+4+n}, v{T0+n}")
    for n in range(4):
        e(f"v_cvt_pk_bf16_f32 v{UVa+n}, v{T0+8+n}, v{T0+n}"); e(f"v_cvt_pk_bf16_f32 v{UVb+n}, v{T0+n}, v{T0+8+n}")
    e("v_lshrrev_b32 v193, 5, v0"); e("v_lshlrev_b32 v193, 5, v193"); e("v_bfe_u32 v194, v0, 1, 4"); e("v_add_u32 v193, v193, v194")
    e(f"v_lshlrev_b32 v{VY}, 5, v193"); e("v_and_b32 v194, 1, v0"); e(f"v_lshl_add_u32 v{VY}, v194, 4, v{VY}")
    e("v_lshrrev_b32 v193, 1, v0"); e("v_lshlrev_b32 v193, 4, v193"); e("v_lshl_add_u32 v190, v194, 3, v193")
    e(f"s_lshl_b32 s53, {WAVE}, 10"); e(f"s_add_u32 s52, s53, {ST}"); e("v_add_u32 v190, s52, v190")
    e(f"s_add_u32 s52, s53, {ST2}"); e("v_add_u32 v188, s52, v1"); e("v_xor_b32 v189, 1024, v188")
    e("s_lshl_b32 s53, s64, 12"); e(f"s_mul_i32 s52, {H16}, 192"); e("s_add_u32 s52, s53, s52"); e(f"s_add_u32 s52, s52, {ST}")
    e("v_add_u32 v184, s52, v1")
    for k in range(1, 4): e(f"v_xor_b32 v{184+k}, {1024*k}, v184")
    e("v_lshl_add_u32 v196, v194, 2, v193")
    e(f"s_lshl_b32 s53, {WAVE}, 10"); e(f"s_add_u32 s52, s53, {ST}"); e("v_add_u32 v196, s52, v196"); e("v_add_u32 v197, 4096, v196"); e(f"v_add_u32 v{VPK}, s52, v1")
    e("v_lshlrev_b32 v194, 8, v133"); e(f"v_lshl_add_u32 v{VW}, v132, 2, v194")
    e(f"s_lshl_b32 s52, {H16}, 8"); e(f"s_lshl_b32 s53, {WAVE}, 6"); e("s_add_u32 s53, s53, s52"); e(f"s_add_u32 s53, s53, {WTL}")
    e(f"v_add_u32 v{VW}, s53, v{VW}"); e(f"v_xor_b32 v191, 4096, v{VW}")
    e("s_lshl_b32 s53, s64, 7"); e(f"s_add_u32 s66, s53, {H16}"); e("s_lshl_b32 s66, s66, 5")
    e(f"s_mul_i32 s53, {KAP}, {GP}"); e("s_add_u32 s66, s66, s53"); e(f"s_add_u32 s66, s66, {YB}")
    e(f"s_lshl_b32 s63, {R_}, 2"); e(f"s_add_u32 s63, s63, {WAVE}")
    e(f"s_mul_i32 s65, s63, {112*1024}"); e(f"s_mul_i32 s53, {HF}, {56*1024}"); e("s_add_u32 s65, s65, s53"); e(f"s_add_u32 s65, s65, {HB}")
    e(f"s_and_b32 s52, {IDX}, 3"); e("s_lshl_b32 s52, s52, 1"); e(f"s_add_u32 s52, s52, {JL}")
    e("s_sub_u32 s53, s52, 7"); e("s_cmp_ge_u32 s52, 7\ns_cselect_b32 s52, s53, s52")
    for n in range(7):
        e("s_lshl_b32 s53, s52, 13"); e(f"s_add_u32 s{20+2*n}, s65, s53"); e(f"s_add_u32 s{21+2*n}, s{20+2*n}, 4096")
        if n < 6: e("s_add_u32 s52, s52, 1"); e("s_cmp_eq_u32 s52, 7\ns_cselect_b32 s52, 0, s52")
    e(f"s_lshl_b32 s61, {R_}, 1"); e(f"s_add_u32 s61, s61, {HF}"); e("s_lshl_b32 s61, s61, 1"); e("s_add_u32 s61, s61, s64")
    e("s_lshl_b32 s61, s61, 8"); e(f"s_add_u32 s61, s61, {F2}")
    e(f"s_lshl_b32 s53, {JL}, 4"); e("s_add_u32 s60, s61, s53"); e(f"s_lshr_b32 s53, {H16}, 1"); e("s_add_u32 s60, s60, s53")
    e("v_min_u32 v132, 13, v0"); e("v_lshlrev_b32 v132, 3, v132")
    e(f"v_mov_b32 v{VTG}, s42"); e(f"v_mov_b32 v{VTG+1}, s43"); e(f"v_mov_b32 v{VTG-1}, 0")
def flag_c(soff, off=0):
    a("s_mov_b64 exec, 1")
    a(f"buffer_store_dwordx2 {vr(VTG,2)}, v{VTG-1}, {sWS}, {soff} offen offset:{off} sc1")
    a("s_mov_b64 exec, -1")
a(f"s_cmp_eq_u32 {JL}, 7")
a("s_cbranch_scc1 Lhelper")

AX, AW = 2, 6
a("v_and_b32 v7, 31, v0")
a("v_lshrrev_b32 v2, 5, v0"); a("v_bfe_u32 v3, v0, 1, 3"); a("v_xor_b32 v2, v2, v3")
a("v_lshlrev_b32 v2, 4, v2"); a("v_lshl_add_u32 v2, v7, 7, v2")
a("s_lshl_b32 s58, s64, 13")
a("v_add_u32 v2, s58, v2")
for ks in range(1, 4): a(f"v_xor_b32 v{2+ks}, {ks*32}, v2")
a("v_lshrrev_b32 v6, 5, v0"); a("v_lshlrev_b32 v6, 11, v6")
a("v_bfe_u32 v7, v0, 2, 2"); a("v_lshl_add_u32 v6, v7, 6, v6")
a("v_bfe_u32 v7, v0, 4, 1"); a("v_lshl_add_u32 v6, v7, 5, v6")
a("v_and_b32 v7, 3, v0"); a("v_lshl_add_u32 v6, v7, 3, v6")
a(f"s_lshl_b32 s58, {H16}, 5"); a("s_add_u32 s58, s58, 16384")
a("v_add_u32 v6, s58, v6")
fill1 = []; e = fill1.append
e("v_and_b32 v134, 31, v0"); e("v_lshlrev_b32 v134, 4, v134")
e("s_lshl_b32 s53, s64, 10"); e(f"s_add_u32 s53, s53, {ST3}"); e("v_add_u32 v135, s53, v1"); e("v_add_u32 v139, s53, v134") if False else None
e("v_add_u32 v134, s53, v134")
e("v_lshrrev_b32 v136, 5, v0"); e("v_and_b32 v199, 15, v0"); e("v_lshl_add_u32 v136, v136, 4, v199"); e("v_lshlrev_b32 v199, 4, v136"); e(f"s_lshl_b32 s52, {H16}, 5"); e(f"s_add_u32 s52, s52, {ST3+4096}"); e("v_add_u32 v136, s52, v199")
e(f"s_lshl_b32 s67, {R_}, 2"); e(f"s_and_b32 s53, {WAVE}, 2"); e("s_add_u32 s67, s67, s53")
e(f"s_lshl_b32 s52, {JG}, 13"); e(f"s_lshl_b32 s53, {H16}, 8"); e("s_add_u32 s52, s52, s53"); e(f"s_add_u32 s52, s52, {HB}")
e(f"s_mul_i32 s67, s67, {112*1024}"); e("s_add_u32 s67, s67, s52"); e(f"s_add_u32 s68, s67, {112*1024}")
late_setup(e)
if opt("nofill", 0):
    while fill1: a(fill1.pop(0))
def f1(n):
    for _ in range(n):
        if fill1: a(fill1.pop(0))
FR = 32
def rdA(buf, fb, slot, ks):
    b = FR + 16*buf + 4*fb
    for j in range(2): a(f"ds_read_b64_tr_b16 {vr(b+2*j,2)}, v{AW} offset:{slot*32768 + ks*4096 + j*1024 + fb*256}")
def rdB(buf, tb, slot, ks):
    a(f"ds_read_b128 {vr(FR+16*buf+8+4*tb,4)}, v{AX+ks} offset:{slot*32768 + tb*4096}")
def acc(fb, tb): return vr(ACC + 32*fb + 16*tb, 16)
def g1_mfma(buf, fb, tb, first=False):
    b = FR + 16*buf
    a(f"v_mfma_f32_32x32x16_bf16 {acc(fb,tb)}, {vr(b+4*fb,4)}, {vr(b+8+4*tb,4)}, {'0' if first else acc(fb,tb)}")
a("s_mov_b32 s69, 0x10000")
lds_spin(VCT, cFULL, 2, 1, FLG, sleep=1)
if G1ST: stamp(3)
for n in range(2): rdA(n, 0, 0, n); rdB(n, 0, 0, n); rdB(n, 1, 0, n); rdA(n, 1, 0, n)
EB, KC, CR, EAM = 140, 144, 204, 220
def flag_rd(): a(f"ds_read2_b32 {vr(FLG,2)}, v{VCT} offset0:{cFULL//4} offset1:{cFULL//4+64}")
def ext_reads():
    for k in range(4): a(f"ds_read_b128 {vr(CR+4*k,4)}, v136 offset:{1024*k}")
    a(f"ds_read_b128 {vr(EB,4)}, v135")
    for tb in range(2): a(f"ds_read_b128 {vr(KC+4*tb,4)}, v134 offset:{2048+512*tb}")
def g1_step(N):
    n = N & 7; st = N >> 2
    ks = n & 3; buf = n & 1; f = (N == 0)
    nn = (n + 2) & 7; ns, nk = nn >> 2, nn & 3
    KS0 = opt("kst", 0)
    if KS0 and KS0 <= N < KS0 + 12: stamp(1 + N - KS0 + (2 if N - KS0 >= 1 else 0), True)
    a(f"s_waitcnt lgkmcnt({7 if (ks == 0 and st >= 6) else 6})")
    g1_mfma(buf, 0, 0, f)
    if ks == 2:
        a(f"v_min_u32 v{FLG}, v{FLG}, v{FLG+1}")
        if st >= 5: a(f"v_mov_b32 v137, {st+1}")
        def pre():
            if n == 6 and N != 30:
                for r in list(range(AX, AX+4)) + [AW]: a(f"v_xor_b32 v{r}, s69, v{r}")
        lds_check(FLG, st + 2, VCT, cFULL, 2, pre=pre, sleep=opt("csleep", 1))
        if G1ST and not KS0: stamp(4 + st, True)
        if N == 30: return
    if ks == 1: flag_rd()
    if ks == 3:
        if 1 <= st < 5: a("s_barrier")
        elif st >= 5: a(f"ds_write_b32 v{VFR}, v137 offset:{cFREE}")
    if ks != 2: f1(3)
    g1_mfma(buf, 0, 1, f)
    rdA(buf, 0, ns, nk); f1(2)
    g1_mfma(buf, 1, 0, f)
    rdB(buf, 0, ns, nk); f1(3)
    g1_mfma(buf, 1, 1, f)
    rdB(buf, 1, ns, nk)
    rdA(buf, 1, ns, nk); f1(1)
for N in range(31): g1_step(N)
assert not fill1
ext_reads()
g1_mfma(0, 0, 1)
a("v_cmp_gt_u32 s[52:53], 32, v0"); a("v_and_b32 v2, 16, v0"); a("v_cmp_eq_u32 s[36:37], 0, v2")
for k in range(4): a(f"v_mov_b32 v{EAM+4*k+3}, 0")
g1_mfma(0, 1, 0); g1_mfma(0, 1, 1)
a("s_waitcnt lgkmcnt(0)")
a(f"ds_write_b32 v{VFR}, v137 offset:{cFREE}")
g1_mfma(1, 0, 0)
def ext_cmp():
    for r in (EB+3, KC+3, KC+7, CR+2, CR+6, CR+10, CR+14): a(f"v_xor_b32 v{r}, s42, v{r}")
    a(f"v_or3_b32 v{FLG}, v{EB+3}, v{KC+3}, v{KC+7}"); a(f"v_or3_b32 v{FLG}, v{FLG}, v{CR+2}, v{CR+6}"); a(f"v_or3_b32 v{FLG}, v{FLG}, v{CR+10}, v{CR+14}")
    a(f"v_cmp_ne_u32 vcc, 0, v{FLG}")
ext_cmp()
g1_mfma(1, 0, 1)
a("s_cmp_lg_u64 vcc, 0")
a("s_cbranch_scc1 Lext_slow")
a.label("Lext_ok")
def ext_slow():
    a.label("Lext_slow")
    stamp(2, True)
    a("v_and_b32 v2, 31, v0"); a("v_lshlrev_b32 v2, 4, v2")
    a(f"s_lshl_b32 s57, {R_}, 11"); a("s_lshl_b32 s58, s64, 10"); a("s_add_u32 s57, s57, s58"); a(f"s_add_u32 s38, s57, {SB}"); a(f"s_add_u32 s39, s38, 0x8000")
    a(f"s_lshl_b32 s57, {JG}, 14"); a(f"s_lshr_b32 s58, {R_}, 2"); a("s_lshl_b32 s58, s58, 12"); a("s_add_u32 s57, s57, s58")
    a(f"s_lshl_b32 s58, {H16}, 5"); a("s_add_u32 s57, s57, s58"); a(f"s_add_u32 s57, s57, {CSB}")
    a("s_mov_b32 s58, 0")
    a.label("Lext_lp")
    a("s_sleep 4")
    a(f"buffer_load_dwordx4 {vr(EB,4)}, v1, {sWS}, s38 offen sc1")
    for k in range(2): a(f"buffer_load_dwordx4 {vr(KC+4*k,4)}, v2, {sWS}, s39 offen offset:{512*k} sc1")
    for k in range(4): a(f"buffer_load_dwordx4 {vr(CR+4*k,4)}, v199, {sWS}, s57 offen offset:{1024*k} sc1")
    a("s_add_u32 s58, s58, 1")
    a("s_waitcnt vmcnt(0)")
    ext_cmp()
    a(f"s_cmp_ge_u32 s58, {SPIN_MAX}")
    a("s_cbranch_scc1 Lext_ok")
    a("s_cmp_lg_u64 vcc, 0")
    a("s_cbranch_scc1 Lext_lp")
    a("s_branch Lext_ok")
cold.append(ext_slow)
stamp(6)
if G1ST and not opt('kst', 0): stamp(12, True)
a(f"v_pk_add_f32 {vr(CR,2)}, {vr(CR,2)}, {vr(CR+4,2)}"); a(f"v_pk_add_f32 {vr(CR+8,2)}, {vr(CR+8,2)}, {vr(CR+12,2)}")
a(f"v_pk_add_f32 {vr(CR,2)}, {vr(CR,2)}, {vr(CR+8,2)}")
g1_mfma(1, 1, 0)
a(f"v_cndmask_b32 v{CR}, v{CR+1}, v{CR}, s[36:37]")
a(f"v_cvt_pk_bf16_f32 v{CR+4}, v{CR}, v{CR}")
a(f"v_and_b32 v{CR+1}, {MASKHI}, v{CR+4}"); a(f"v_sub_f32 v{CR+1}, v{CR}, v{CR+1}")
a(f"v_cvt_pk_bf16_f32 v{CR+5}, v{CR+1}, 0")
g1_mfma(1, 1, 1)
a(f"v_lshl_or_b32 v{CR+5}, v198, 16, v{CR+5}"); a(f"v_mov_b32 v{CR+6}, v198")
for k in range(3): a(f"v_cndmask_b32 v{EAM+k}, 0, v{CR+4+k}, s[52:53]")
def ext(fb, tb): a(f"v_mfma_f32_32x32x16_bf16 {acc(fb,tb)}, {vr(EAM+8*fb+4*tb,4)}, {vr(EB,4)}, {acc(fb,tb)}")
for k in range(3): a(f"v_cndmask_b32 v{EAM+12+k}, v{CR+4+k}, 0, s[52:53]")
ext(0, 0)
for k in range(3): a(f"v_mov_b32 v{EAM+4+k}, v{EAM+12+k}"); a(f"v_mov_b32 v{EAM+8+k}, v{EAM+k}")
for k in range(3): a(f"v_permlane32_swap_b32 v{EAM+4+k}, v{EAM+8+k}")
late = [lambda: ext(0, 1), lambda: ext(1, 0), lambda: ext(1, 1)]
GT = 32; AF = 220; ZIN = 240
def z_reads():
    a(f"ds_read_b128 {vr(ZIN,4)}, v{VPK}"); a(f"ds_read_b128 {vr(ZIN+4,4)}, v{VPK} offset:4096")
cnt = 0
FA_AT = opt("fa_at", 7); HDELAY = opt("hdelay", 0); pend = []
for fb in range(2):
    for tb in range(2):
        for th in range(2):
            x = ACC + 32*fb + 16*tb + 8*th; k = KC + 4*tb; o = x if HDELAY else 40 + 4*(cnt & 1)
            if cnt == 7:
                flag_rd(); z_reads()
            def lt():
                if late: late.pop(0)()
            if cnt == 0: lt()
            for p in range(0, 8, 2): a(f"v_pk_mul_f32 {vr(GT+p,2)}, {vr(x+p,2)}, {vr(x+p,2)}")
            for p in range(0, 8, 2): a(f"v_pk_fma_f32 {vr(GT+p,2)}, {vr(GT+p,2)}, {vr(k,2)}, {vr(k,2)} op_sel:[0,0,1] op_sel_hi:[1,0,1]")
            lt()
            for p in range(0, 8, 2): a(f"v_pk_mul_f32 {vr(GT+p,2)}, {vr(GT+p,2)}, {vr(x+p,2)}")
            for p in range(8): a(f"v_exp_f32 v{GT+p}, v{GT+p}")
            lt()
            for p in range(0, 8, 2): a(f"v_pk_fma_f32 {vr(GT+p,2)}, {vr(GT+p,2)}, {vr(k+2,2)}, {vr(k+2,2)} op_sel_hi:[1,0,0]")
            for p in range(8): a(f"v_rcp_f32 v{GT+p}, v{GT+p}")
            for p in range(0, 8, 2): a(f"v_pk_mul_f32 {vr(GT+p,2)}, {vr(GT+p,2)}, {vr(x+p,2)}")
            for p in range(4): a(f"v_cvt_pk_bf16_f32 v{o+p}, v{GT+2*p}, v{GT+2*p+1}")
            pend.append(f"buffer_store_dwordx4 {vr(o,4)}, v1, {sWS}, s{67+tb} offen offset:{2048*fb+1024*th} sc1")
            if cnt >= HDELAY:
                while pend: a(pend.pop(0))
            if cnt == FA_AT and HDELAY < 4:
                a(f"s_waitcnt vmcnt({FA_AT-3})")
                flag_c("s60")
                stamp(7)
            cnt += 1
a("s_waitcnt lgkmcnt(0)")
def helper_code():
    a.label("Lhelper")
    a(f"s_lshl_b32 s67, {XCD}, 2"); a(f"s_and_b32 s58, {IDX}, 3"); a("s_add_u32 s67, s67, s58")
    a("v_bfe_u32 v2, v0, 3, 1"); a("v_bfe_u32 v3, v0, 2, 1"); a("v_lshl_add_u32 v2, v3, 5, v2")
    a("v_and_b32 v3, 3, v0"); a("v_lshl_add_u32 v2, v3, 3, v2"); a("v_mul_u32_u24 v2, 514, v2")
    a("v_lshrrev_b32 v3, 4, v0"); a(f"s_lshl_b32 s58, {WAVE}, 6"); a("v_add_u32 v3, s58, v3")
    a("v_lshl_add_u32 v4, v3, 1, v2")
    a("v_cmp_eq_u32 vcc, 0, v3"); a("v_add_u32 v5, 512, v4"); a("v_cndmask_b32 v5, v4, v5, vcc")
    a(f"v_mul_u32_u24 v3, {GP}, v3"); a("v_and_b32 v6, 15, v0"); a("v_lshl_add_u32 v3, v6, 4, v3")
    a("s_lshl_b32 s68, s67, 8"); a(f"s_add_u32 s68, s68, {WT}")
    late_setup(a)
    stamp(2)
    lds_spin(VCT, cFULL, 2, 1, FLG, sleep=2)
    stamp(7)
    def hrd(u):
        for tt in range(4):
            ad = "v5" if u == 0 else "v4"
            a(f"ds_read_u16 v{32+8*(u%3)+tt}, {ad} offset:{u*8 + tt*1028}")
            a(f"ds_read_u16 v{36+8*(u%3)+tt}, {ad} offset:{36864 + u*8 + tt*1028}")
    hrd(0)
    for u in range(16):
        if u < 15: hrd(u + 1)
        a(f"s_waitcnt lgkmcnt({8 if u < 15 else 0})")
        for tt in range(4): a(f"v_lshl_or_b32 v{64+4*(u&3)+tt}, v{36+8*(u%3)+tt}, 16, v{32+8*(u%3)+tt}")
        a(f"buffer_store_dwordx4 {vr(64+4*(u&3),4)}, v3, {sWS}, s68 offen sc1")
        a(f"s_add_u32 s68, s68, {4*GP}")
    a(f"s_lshl_b32 s68, {WAVE}, 8"); a("s_lshl_b32 s67, s67, 3"); a("s_add_u32 s68, s68, s67"); a(f"s_add_u32 s68, s68, {FW}")
    a("s_waitcnt vmcnt(0)")
    flag_c("s68")
    a("v_mov_b32 v2, 8")
    a(f"ds_write_b32 v{VFR}, v2 offset:{cFREE}")
    stamp(6)
    a(f"v_mov_b64 {vr(FLG,2)}, 0")
    a("s_branch Lcol")
cold.append(helper_code)

warm(1)
a.label("Lcol")
stamp(8)
a(f"v_min_u32 v{FLG}, v{FLG}, v{FLG+1}")
def post_z():
    z_reads(); a("s_waitcnt lgkmcnt(0)")
lds_check(FLG, 10, VCT, cFULL, 2, post=post_z)
EE = 32
for n in range(4):
    P = ZIN + 4*(n >> 1) + 2*(n & 1); M = P + 1
    a(f"v_dot2_f32_bf16 v{EE+n}, v{P}, {ONES}, 0")
    a(f"v_dot2_f32_bf16 v{EE+4+n}, v{P}, {ONES}, 0 neg_lo:[0,1,0]")
    a(f"v_dot2_f32_bf16 v{EE+8+n}, v{P}, v{UVa+n}, 0 neg_hi:[0,1,0]")
    a(f"v_dot2_f32_bf16 v{EE+12+n}, v{P}, v{UVb+n}, 0")
    a(f"v_dot2_f32_bf16 v{EE+n}, v{M}, {ONES}, v{EE+n}")
    a(f"v_dot2_f32_bf16 v{EE+4+n}, v{M}, {ONES}, v{EE+4+n} neg_hi:[0,1,0]")
    a(f"v_dot2_f32_bf16 v{EE+8+n}, v{M}, v{UVb+n}, v{EE+8+n} neg_hi:[0,1,0]")
    a(f"v_dot2_f32_bf16 v{EE+12+n}, v{M}, v{UVa+n}, v{EE+12+n} neg_lo:[0,1,0] neg_hi:[0,1,0]")
for j in range(2):
    for cpt in range(4): a(f"v_cvt_pk_bf16_f32 v{48+2*cpt+j}, v{EE+4*cpt+2*j}, v{EE+4*cpt+2*j+1}")
    for eo in range(2): a(f"ds_write2_b32 v{196+eo}, v{48+4*eo+j}, v{48+4*eo+2+j} offset0:{128*j} offset1:{128*j+2}")
a("s_waitcnt lgkmcnt(0)")
a("s_barrier")
for k in (0, 2, 1, 3): a(f"ds_read_b128 {vr(AF+4*k,4)}, v{184+k}")
def w_reads():
    for o in range(2):
        for r in range(0, 4, 2): a(f"ds_read2_b32 {vr(WIN+4*o+r,2)}, v{VW if o == 0 else 191} offset0:{64*r} offset1:{64*r+64}")
if not G1ST: stamp(3)
D1 = 64; TT = 80; TF = 48; D2 = 96; WU = 112
for be in range(2):
    a(f"s_waitcnt lgkmcnt({2 - 2*be})")
    for tau in range(2):
        for ri in range(2):
            d = vr(D1 + 8*be + 4*ri, 4)
            a(f"v_mfma_f32_16x16x32_bf16 {d}, {vr(AF+8*tau+4*be,4)}, {Fx(ri,0,tau)}, {'0' if tau == 0 else d}")
a(f"ds_read_b32 v{FLG}, v{VCT} offset:{cFULL+256}")
w_reads()
for be in range(2):
    twiddle(a, D1+8*be, D1+8*be+4, TW1c+4*be, TW1s+4*be, 4, TT+8*be, False)
    packfrag(a, TF+4*be, TT+8*be, TT+8*be+4)
    if be == 0:
        a("s_nop 0")
        for o in range(2):
            for ri in range(2): a(f"v_mfma_f32_16x16x32_bf16 {vr(D2+8*o+4*ri,4)}, {Fx(ri,o,0)}, {vr(TF,4)}, 0")
a("s_waitcnt lgkmcnt(0)")
def post_w():
    w_reads(); a("s_waitcnt lgkmcnt(0)")
lds_check(FLG, 11, VCT, cFULL+256, 1, post=post_w)
for o in range(2):
    for ri in range(2):
        d = vr(D2+8*o+4*ri, 4)
        a(f"v_mfma_f32_16x16x32_bf16 {d}, {Fx(ri,o,1)}, {vr(TF+4,4)}, {d}")
for k in range(8): a(f"v_lshlrev_b32 v{WU+k}, 16, v{WIN+k}")
for k in range(8): a(f"v_and_b32 v{WU+8+k}, {MASKHI}, v{WIN+k}")
FB_POS = opt("fbpos", 1)
vmq = ["st"]
def young(tag): return len(vmq) - 1 - vmq.index(tag)
RING = [140, 144, 148, 208, 212, 216, 220, 224, 228, 232, 236, 240, 244, 152, 156, 160]
NR = len(RING); PF = opt("pf", 13); NK = 56
HLF = {0: "", 1: " sc1", 2: " nt", 3: " sc0"}[opt("hlf", 1)]
def kpos(m):
    ph, r = divmod(m, 28); return r >> 1, ph, r & 1
def hload(m):
    n, ph, th = kpos(m)
    a(f"buffer_load_dwordx4 {vr(RING[m%NR],4)}, v1, {sWS}, s{20+n} offen offset:{ph*2048+th*1024}{HLF}"); vmq.append(("h", m))
def flagB():
    poll_issue(132, "s61", 252); vmq.append("pollA")
    stamp(9)
EARLYH = opt("earlyh", 8)
def early():
    poll_check(132, "s61", 252, young("pollA"))
    flag_c("s60", 128); vmq.append("fB")
    stamp(5)
    if "--g2st" in sys.argv: stamp(1, True)
    for m in range(EARLYH): hload(m)
EPOS = opt("epos", 1)
if FB_POS == 0: flagB()
for o in range(2):
    twiddle(a, D2+8*o, D2+8*o+4, WU+4*o, WU+8+4*o, 4, TT+8*o, True)
    packfrag(a, TF+4*o, TT+8*o+4, TT+8*o)
    if o == 0:
        a("s_nop 0")
        for oo in (1, 0):
            for ri in range(2): a(f"v_mfma_f32_16x16x32_bf16 {vr(D1+8*oo+4*ri,4)}, {vr(TF,4)}, {Fx(ri,oo,0)}, 0")
for oo in (1, 0):
    for ri in range(2):
        d = vr(D1+8*oo+4*ri, 4)
        a(f"v_mfma_f32_16x16x32_bf16 {d}, {vr(TF+4,4)}, {Fx(ri,oo,1)}, {d}")
if FB_POS == 1: flagB()
twiddle(a, D1+12, D1+8, TW2c, TW2s, 4, TT+8, True)
packfrag(a, TF+8, TT+12, TT+8)
a(f"ds_write_b128 v188, {vr(TF+8,4)}")
twiddle(a, D1+4, D1, TW1c, TW1s, 4, TT, True)
packfrag(a, TF, TT+4, TT)
if FB_POS == 2: flagB()
a("s_waitcnt lgkmcnt(0)")
a("s_barrier")
a(f"ds_read_b128 {vr(TF+8,4)}, v189")
stamp(4)
if EPOS == 0: early()
for o in range(2):
    for ri in range(2):
        a(f"v_mfma_f32_16x16x32_bf16 {vr(D2+8*o+4*ri,4)}, {Fx(ri,o,0)}, {vr(TF,4)}, 0")
a("v_lshrrev_b32 v2, 5, v0"); a("v_lshlrev_b32 v2, 9, v2")
a("v_bfe_u32 v3, v0, 2, 2"); a("v_lshl_add_u32 v2, v3, 6, v2")
a("v_bfe_u32 v3, v0, 4, 1"); a("v_lshl_add_u32 v2, v3, 5, v2")
a("v_and_b32 v3, 3, v0"); a("v_lshl_add_u32 v2, v3, 3, v2")
a("v_add_u32 v3, 0x10000, v2")
a("s_waitcnt lgkmcnt(0)")
for o in range(2):
    for ri in range(2):
        d = vr(D2+8*o+4*ri, 4)
        a(f"v_mfma_f32_16x16x32_bf16 {d}, {Fx(ri,o,1)}, {vr(TF+8,4)}, {d}")
for o in range(2):
    for r in range(4): a(f"v_cvt_pk_bf16_f32 v{TF+4*o+r}, v{D2+8*o+4+r}, v{D2+8*o+r}")
    a(f"ds_write_b128 v{184 if o == 0 else 186}, {vr(TF+4*o,4)}")
a("v_mov_b32 v5, v132")
if EPOS == 1: early()
a("s_waitcnt lgkmcnt(0)")
a("s_barrier")
EP = 64
for j in range(2):
    a(f"ds_read_b64 {vr(EP+2*j,2)}, v190 offset:{512*j}"); a(f"ds_read_b64 {vr(EP+4+2*j,2)}, v190 offset:{4096+512*j}")
def g2_rd(m, db):
    n, ph, th = kpos(m); b = 32 + 8*(m & 3) + 4*db
    off = n*8192 + ph*4096 + th*2048 + db*256
    for j in range(2): a(f"ds_read_b64_tr_b16 {vr(b+2*j,2)}, v{2 + (off >> 16)} offset:{(off & 0xffff) + j*1024}")
if EPOS == 2: early()
a("s_waitcnt lgkmcnt(0)")
for m in range(4):
    for db in range(2):
        if (m, db) != (3, 1): g2_rd(m, db)
RO = 72; RA = 88
for n in range(4):
    a(f"v_dot2_f32_bf16 v{RA+n}, v{EP+n}, {ONES}, 0 neg_hi:[0,1,0]")
    a(f"v_dot2_f32_bf16 v{RA+4+n}, v{EP+n}, {ONES}, 0")
for n in range(4):
    O = EP + 4 + n
    a(f"v_dot2_f32_bf16 v{RO+4*n}, v{O}, v{UVa+n}, v{RA+n}")
    a(f"v_dot2_f32_bf16 v{RO+4*n+1}, v{O}, v{UVb+n}, v{RA+4+n} neg_lo:[0,1,0]")
    a(f"v_dot2_f32_bf16 v{RO+4*n+2}, v{O}, v{UVb+n}, v{RA+4+n} neg_hi:[0,1,0]")
    a(f"v_dot2_f32_bf16 v{RO+4*n+3}, v{O}, v{UVa+n}, v{RA+n} neg_lo:[0,1,0] neg_hi:[0,1,0]")
g2_rd(3, 1)
a(f"s_cmp_eq_u32 {KAP}, 0")
a("s_cbranch_scc1 Lk0")
a.label("Lnk0")
def k0_code():
    a.label("Lk0")
    for n in range(4):
        a(f"v_pk_add_f32 {vr(RO+4*n+2,2)}, {vr(RO+4*n+2,2)}, {vr(RO+4*n,2)}")
        a(f"v_pk_mul_f32 {vr(RO+4*n+2,2)}, {vr(RO+4*n+2,2)}, 0.5 op_sel_hi:[1,0]")
        a(f"v_mov_b64 {vr(RO+4*n,2)}, 0")
    a("s_branch Lnk0")
cold.append(k0_code)
YO = 96
for n in range(4):
    a(f"v_cvt_pk_bf16_f32 v{YO+2*n}, v{RO+4*n}, v{RO+4*n+1}"); a(f"v_cvt_pk_bf16_f32 v{YO+1+2*n}, v{RO+4*n+2}, v{RO+4*n+3}")
a(f"buffer_store_dwordx4 {vr(YO,4)}, v{VY}, {sWS}, s66 offen sc1"); vmq.append("Y0")
a(f"buffer_store_dwordx4 {vr(YO+4,4)}, v{VY}, {sWS}, s66 offen offset:2048 sc1"); vmq.append("Y1")
stamp(10)

for m in range(EARLYH, PF): hload(m)
ZA = 164; B16 = 172; TIc = 180; TIs = 188; FM = 104; VC, VG4 = 196, 197; VB2 = 198; VYG = 200; VYW = 201; VXR = 202; FT0 = 112
fill = []; fe = fill.append
a("s_add_u32 s61, s61, 128")
fe(f"s_lshl_b32 s60, {WAVE}, 11"); fe(f"s_lshl_b32 s53, {KAP}, 3"); fe("s_add_u32 s60, s60, s53"); fe(f"s_add_u32 s60, s60, {F3}")
fe(f"s_lshr_b32 s65, {RHO}, 7"); fe("s_lshl_b32 s65, s65, 1"); fe(f"s_bfe_u32 s53, {RHO}, 0x10004"); fe("s_add_u32 s65, s65, s53")
fe("s_lshl_b32 s65, s65, 11"); fe(f"s_lshl_b32 s53, {WAVE}, 9"); fe("s_add_u32 s65, s65, s53"); fe(f"s_add_u32 s65, s65, {F3}")
fe("v_lshlrev_b32 v7, 3, v0")
fe(f"s_mul_i32 s66, {WAVE}, {64*GP}"); fe(f"s_lshl_b32 s53, {RHO}, 5"); fe("s_add_u32 s66, s66, s53"); fe(f"s_add_u32 s66, s66, {YB}")
fe(f"s_add_u32 s67, s66, {32*GP}")
fe(f"s_lshl_b32 s68, {WAVE}, 3"); fe(f"s_add_u32 s68, s68, {ST2}")
fe(f"s_mov_b32 s69, {f2u(2.0**-21)}")
fe(f"s_lshl_b32 s36, {H16}, 5")
fe(f"s_lshl_b32 s37, {WAVE}, 11"); fe(f"s_add_u32 s38, s37, {XR}"); fe(f"s_add_u32 s37, s37, {ST2}")
fe("s_mov_b32 s8, s34"); fe("s_mov_b32 s9, s35"); fe("s_mov_b32 s10, 1024")
gen_fm_fn(fe, FM, None, VC, VG4, FT0, FT0+1)
fe(f"v_lshrrev_b32 v{VYG}, 1, v0"); fe(f"v_mul_u32_u24 v{VYG}, {GP}, v{VYG}"); fe(f"v_and_b32 v{FT0}, 1, v0"); fe(f"v_lshl_add_u32 v{VYG}, v{FT0}, 4, v{VYG}")
fe(f"v_lshlrev_b32 v{VB2}, 5, v{VC}"); fe(f"v_lshl_add_u32 v{VB2}, v{VG4}, 1, v{VB2}"); fe(f"v_add_u32 v{VB2}, s36, v{VB2}"); fe(f"v_xor_b32 v{VB2+1}, 512, v{VB2}")
fe(f"v_add_u32 v{VYW}, s37, v1")
for o in range(2): fe(f"v_add_u32 v{VXR+o}, s38, v{VB2+o}")
gen_zaddr(fe, ZA, "s68", VC, VG4, FT0)
fe(f"v_cvt_f32_u32 v{FT0+8}, v{VG4}")
fe(f"v_add_f32 v{FT0+9}, 1.0, v{FT0+8}"); fe(f"v_add_f32 v{FT0+10}, 2.0, v{FT0+8}"); fe(f"v_add_f32 v{FT0+11}, 1.0, v{FT0+10}")
fe(f"v_cvt_f32_u32 v{FT0+12}, v{VC}"); fe(f"v_mul_f32 v{FT0+13}, {f2u(1/16)}, v{FT0+12}")
gen_tw(fe, FT0, FT0+4, FT0+13, FT0+8, 4)
fe(f"v_mul_f32 v{FT0+13}, {f2u(1/512)}, v{FT0+12}")
for j in range(4):
    fe(f"v_cvt_pk_bf16_f32 v{B16+j}, v{FT0+j}, -v{FT0+4+j}"); fe(f"v_cvt_pk_bf16_f32 v{B16+4+j}, v{FT0+4+j}, v{FT0+j}")
gen_tw(fe, TIc, TIs, FT0+13, FM, 8)
for k in range(16): fe(f"v_mul_f32 v{TIc+k}, s69, v{TIc+k}")
for _ in range(opt("prefill", 4)): a(fill.pop(0))
POLL_AT, CHK_AT = opt("pollat", 43), opt("chkat", 56)
PB_AT = opt("pbat", 4)
YG = 240; B2 = 96
def ygather():
    stamp(1)
    poll_check(7, "s65", 252, young("poll"))
    a(f"buffer_load_dwordx4 {vr(YG,4)}, v{VYG}, {sWS}, s66 offen sc1"); vmq.append("yg0")
    a(f"buffer_load_dwordx4 {vr(YG+4,4)}, v{VYG}, {sWS}, s67 offen sc1"); vmq.append("yg1")
for m in range(NK):
    b = 32 + 8*(m & 3)
    for db in range(2):
        rem = min(7, (NK - 1 - m)*2 + (1 - db))
        w = f"lgkmcnt({2*rem})"
        if m == 4 and db == 0:
            a("s_waitcnt lgkmcnt(14)")
            a("v_min_u32 v128, v128, v129")
            lds_check(128, 11, VCT, cFULL, 2)
        if db == 0: w = f"vmcnt({young(('h', m))}) " + w
        a(f"s_waitcnt {w}")
        d = vr(ACC+16*db, 16)
        a(f"v_mfma_f32_32x32x16_bf16 {d}, {vr(b+4*db,4)}, {vr(RING[m%NR],4)}, {'0' if m == 0 else d}")
        if m == 0 and db == 0: a(f"ds_read2_b32 v[128:129], v{VCT} offset0:{cFULL//4} offset1:{cFULL//4+64}")
        if "--g2st" in sys.argv and db == 0 and m % 7 == 0: stamp(4 + m // 7, True)
        if m + 4 < NK: g2_rd(m + 4, db)
        if db == 0 and m == EARLYH: flag_c("s60"); vmq.append("f3")
        if db == 0 and m + PF == 28: poll_check(5, "s61", 252, young("pollB"))
        if db == 0 and m + PF < NK: hload(m + PF)
        if db == 1 and m == PB_AT: poll_issue(5, "s61", 252); vmq.append("pollB")
        if db == 1 and m == POLL_AT: poll_issue(7, "s65", 252); vmq.append("poll")
        if db == 1 and m == POLL_AT:
            for o in range(2): a(f"buffer_load_dwordx2 {vr(B2+2*o,2)}, v{VB2+o}, {sW}, 0 offen"); vmq.append(f"b2{o}")
        if db == 1 and m == CHK_AT: ygather()
        for _ in range(2):
            if fill: a(fill.pop(0))
assert not fill
stamp(11)
if "--g2st" in sys.argv: stamp(12, True)
a(f"s_lshl_b32 s57, {HF}, 6"); a("s_add_u32 s57, s57, s63"); a("s_lshl_b32 s57, s57, 15"); a(f"s_xor_b32 {JL}, {JL}, {CX}"); a(f"s_lshl_b32 s58, {JL}, 12"); a("s_add_u32 s57, s57, s58")
a(f"s_add_u32 s57, s57, {PB}")
for k in range(4):
    o = 32 + 4*k
    for p in range(4): a(f"v_cvt_pk_bf16_f32 v{o+p}, v{ACC+8*k+2*p}, v{ACC+8*k+2*p+1}")
    a(f"buffer_store_dwordx4 {vr(o,4)}, v1, {sWS}, s57 offen offset:{1024*k} sc1"); vmq.append(("p", k))
YLATE = CHK_AT >= NK
def f4flag():
    a(f"s_lshl_b32 s60, s63, 7"); a(f"s_lshl_b32 s58, {JL}, 4"); a("s_add_u32 s60, s60, s58"); a(f"s_lshl_b32 s58, {HF}, 3"); a("s_add_u32 s60, s60, s58"); a(f"s_add_u32 s60, s60, {F4}")
    a(f"s_waitcnt vmcnt({young(('p', 3))})")
    flag_c("s60"); vmq.append("f4")
    stamp(12)
if YLATE: ygather(); f4flag()
a(f"s_waitcnt vmcnt({young('yg1')})")
a(f"ds_write_b128 v{VYW}, {vr(YG,4)}"); a(f"ds_write_b128 v{VYW}, {vr(YG+4,4)} offset:1024")
XV = 136
for o in range(2):
    for u in range(2): a(f"ds_read_b64 {vr(XV+4*o+2*u,2)}, v{VXR+o} offset:{1024*u}")
D1 = 64; TT = 80; TF = 96; D2 = 104
for o in range(2):
    for k in range(2):
        a(f"v_lshlrev_b32 v{120+4*o+2*k}, 16, v{B2+2*o+k}"); a(f"v_and_b32 v{121+4*o+2*k}, 0xffff0000, v{B2+2*o+k}")
a("s_waitcnt lgkmcnt(0)")
a("s_barrier")
YA = 128
for k in range(8): a(f"ds_read_b32 v{YA+k}, v{ZA+k}")
for o in range(2):
    for ri in range(2):
        u = 1 - ri; d = D2 + 8*o + 4*ri
        for k in range(2):
            a(f"v_lshlrev_b32 v{d+2*k}, 16, v{XV+4*o+2*u+k}"); a(f"v_and_b32 v{d+2*k+1}, 0xffff0000, v{XV+4*o+2*u+k}")
        for k in range(2): a(f"v_pk_add_f32 {vr(d+2*k,2)}, {vr(d+2*k,2)}, {vr(120+4*o+2*k,2)}")
a("s_waitcnt lgkmcnt(0)")
for tau in range(2):
    for ri in range(2):
        a(f"v_mfma_f32_16x16x32_bf16 {vr(D1+8*tau+4*ri,4)}, {vr(YA+4*tau,4)}, {vr(B16+4*ri,4)}, 0")
APITCH = 2064
if not YLATE: f4flag()
a(f"s_mul_i32 s58, {WAVE}, {2*APITCH}")
for o in range(2): a(f"v_lshlrev_b32 v{146+o}, 1, v{VB2+o}")
for o in range(2): a(f"v_add_u32 v{146+o}, s58, v{146+o}")
for tau in range(2): twiddle(a, D1+8*tau, D1+8*tau+4, TIc+4*tau, TIs+4*tau, 4, TT+8*tau, True)
for tau in range(2): packfrag(a, TF+4*tau, TT+8*tau+4, TT+8*tau)
for tau in range(2):
    for o in range(2):
        for ri in range(2):
            d = vr(D2+8*o+4*ri, 4)
            a(f"v_mfma_f32_16x16x32_bf16 {d}, {vr(TF+4*tau,4)}, {Fx(ri,o,tau)}, {d}")
a("v_and_b32 v2, 7, v0"); a("v_lshrrev_b32 v3, 4, v0"); a("v_bfe_u32 v4, v0, 3, 1")
a("v_lshlrev_b32 v5, 10, v3"); a("v_lshl_add_u32 v5, v4, 9, v5"); a("v_lshl_add_u32 v5, v2, 4, v5")
a("v_lshlrev_b32 v6, 4, v3"); a("v_lshl_add_u32 v6, v4, 2, v6")
a(f"v_mul_u32_u24 v7, {APITCH}, v2"); a("v_lshl_add_u32 v7, v6, 2, v7"); a(f"s_lshl_b32 s58, {WAVE}, 9"); a("v_add_u32 v7, s58, v7")
for o in range(2):
    for ri in range(2): a(f"ds_write_b128 v{146+o}, {vr(D2+8*o+4*ri,4)} offset:{(1-ri)*APITCH}")
OPITCH = 272
a(f"v_mul_u32_u24 v148, {OPITCH}, v2"); a("v_lshl_add_u32 v148, v6, 1, v148")
a(f"s_mul_i32 s58, {WAVE}, {8*OPITCH}"); a(f"s_add_u32 s58, s58, 32768"); a("v_add_u32 v148, s58, v148")
a(f"v_mul_u32_u24 v149, {OPITCH}, v3"); a("v_and_b32 v6, 15, v0"); a("v_lshl_add_u32 v149, v6, 4, v149"); a("v_add_u32 v149, s58, v149")
a("v_lshrrev_b32 v150, 5, v0"); a("v_lshlrev_b32 v150, 15, v150"); a("v_bfe_u32 v4, v0, 4, 1"); a("v_lshl_add_u32 v150, v4, 20, v150"); a("v_lshl_add_u32 v150, v6, 4, v150")
a("v_and_b32 v2, 3, v0"); a("v_lshlrev_b32 v2, 3, v2")
a(f"s_lshr_b32 s63, {RHO}, 2")
a("s_lshl_b32 s60, s63, 7"); a(f"s_lshl_b32 s58, {WAVE}, 5"); a("s_add_u32 s60, s60, s58"); a(f"s_add_u32 s60, s60, {F4}")
poll_issue(2, "s60", 252)
a("s_lshl_b32 s57, s63, 15"); a(f"s_lshl_b32 s58, {WAVE}, 13"); a("s_add_u32 s57, s57, s58")
a(f"s_and_b32 s58, {RHO}, 3"); a("s_lshl_b32 s58, s58, 7"); a("s_add_u32 s57, s57, s58"); a(f"s_add_u32 s20, s57, {PB}")
for k in range(1, 4): a(f"s_add_u32 s{20+k}, s20, {(k>>1)*64*32768 + (k&1)*4096}")
a(f"s_lshr_b32 s57, {RHO}, 5"); a("s_lshl_b32 s57, s57, 7"); a(f"s_and_b32 s58, {RHO}, 31"); a("s_add_u32 s57, s57, s58"); a("s_lshl_b32 s57, s57, 10")
a(f"s_lshl_b32 s58, {WAVE}, 8"); a("s_add_u32 s28, s57, s58"); a(f"s_add_u32 s29, s28, {64*1024}")
a("s_mov_b32 s30, 0x00003f80"); a("s_mov_b32 s31, 0x3f800000")
a("s_waitcnt lgkmcnt(0)")
a("s_barrier")
FA = 64
for u in range(2):
    for k in range(2): a(f"ds_read_b128 {vr(FA+8*u+4*k,4)}, v7 offset:{u*256 + k*32}")
stamp(13)
poll_check(2, "s60", 252, 0)
stamp(14)
PL = 80
for k in range(4): a(f"buffer_load_dwordx4 {vr(PL+4*k,4)}, v5, {sWS}, s{20+k} offen sc1")
a("s_waitcnt lgkmcnt(0)")
for k in range(4):
    a(f"s_waitcnt vmcnt({3-k})")
    u = k & 1
    for d in range(4):
        a(f"v_dot2c_f32_bf16 v{FA+8*u+2*d}, s30, v{PL+4*k+d}"); a(f"v_dot2c_f32_bf16 v{FA+8*u+2*d+1}, s31, v{PL+4*k+d}")
for u in range(2):
    for d in range(4): a(f"v_cvt_pk_bf16_f32 v{112+4*u+d}, v{FA+8*u+2*d}, v{FA+8*u+2*d+1}")
    a(f"ds_write2_b64 v148, {vr(112+4*u,2)}, {vr(114+4*u,2)} offset0:{16*u} offset1:{16*u+2}")
a("s_waitcnt lgkmcnt(0)")
a(f"ds_read_b128 {vr(120,4)}, v149"); a(f"ds_read_b128 {vr(124,4)}, v149 offset:{4*OPITCH}")
a("s_waitcnt lgkmcnt(1)")
OF = {0: "", 1: " sc1", 2: " nt", 3: " sc0 sc1"}[opt("outf", 1)]
a(f"buffer_store_dwordx4 {vr(120,4)}, v150, {sOUT}, s28 offen{OF}")
a("s_waitcnt lgkmcnt(0)")
a(f"buffer_store_dwordx4 {vr(124,4)}, v150, {sOUT}, s29 offen{OF}")
a("s_or_b32 s57, s2, s46")
a("s_cmp_lg_u32 s57, 0")
a("s_cbranch_scc1 Lnotag")
a(f"s_mov_b32 s60, {TAG}")
flag_c("s60")
a.label("Lnotag")
warm(None)
if DEBUG:
    a("s_waitcnt vmcnt(0)")
    stamp(15)
if opt("probe", -1) >= 0:
    pi = opt("probe", -1)
    if opt("pw", -1) >= 0:
        a(f"s_cmp_lg_u32 s2, {opt('pw', -1)}"); a("s_cbranch_scc1 Lend")
    else:
        a(f"s_cmp_ge_u32 s2, 224"); a("s_cbranch_scc1 Lend")
    a("s_waitcnt lgkmcnt(0)")
    a(f"s_add_u32 s22, s{70+2*pi}, 3000")
    a.label("Lhold")
    a("s_sleep 4")
    a("s_memrealtime s[20:21]"); a("s_waitcnt lgkmcnt(0)"); a("s_sub_u32 s20, s20, s22"); a("s_cmp_lt_i32 s20, 0"); a("s_cbranch_scc1 Lhold")
    a("s_endpgm")
dump_stamps(0, opt("sw", 0))
if "--dbg" in sys.argv:
    a("s_cmp_lg_u32 s2, 5"); a("s_cbranch_scc1 Lend")
    a(f"s_cmp_lg_u32 {WAVE}, 0"); a("s_cbranch_scc1 Lend")
    a("s_load_dwordx2 s[20:21], s[0:1], 72")
    a("s_waitcnt lgkmcnt(0)")
    for i in range(16):
        a(f"s_sub_u32 s57, s{70+2*i}, s70"); a(f"v_mov_b32 v{32+i}, s57")
    a("v_mov_b32 v2, 0")
    a("s_mov_b64 exec, 1")
    for i in range(4): a(f"global_store_dwordx4 v2, v[{32+4*i}:{35+4*i}], s[20:21] offset:{16*i}")
a.label("Lend")
a("s_endpgm")
while cold: cold.pop(0)()
a.label("Ltab")
a.label("Lcode_end")

a.fix()
print("layout (widened, nops, pads, bytes):", a.layout({"0": "Lwret", "1": "Lwret"} if WARM else {}), file=sys.stderr)
bad = a.check_edges()
slow = {l.text[:-1]: [1] for l in a.L if l.label and ((l.text.startswith("Lcs") and "_" not in l.text) or (l.text.startswith("Lpa") and not l.text.startswith("Lpad")))}
base = {}
for name, dec in (("gemmC", base), ("gemmC-slow", dict(slow, **base)),
                  ("helpC", dict(slow, **{"Lhelper":[1], "Lnopf":[1], "Lk0":[1], "Lnotag":[1]})),
                  ("gemmC-ext", {"Lext_slow":[1], "Lext_lp":[1,0]}),
                  ("aw", {"Lawld":[1]}),
                  ("awh", {"Lawld":[1], "Law_nocs":[1]}),
                  ("ldx", {"Lloader":[1], "Lld_ts":[1], "Lld_pf":[0,0,1], "Lld_issue":[1,1,1], "Lld_tail":[0,0,0,0,1], "Lld_noz":[0,1,1,1], "Lld_done":[0,0,0,1], "Lld_nx":[1,1,1]}),
                  ("ldw", dict(slow, **{"Lloader":[1], "Lld_w":[1], "Lld_ts":[1], "Lld_pf":[0,0,1], "Lld_issue":[1,1,1], "Lld_tail":[0,0,0,0,1], "Lld_noz":[0,1,1], "Lld_nx":[1,1,0]})),
                  ("ldh", {"Lloader":[1], "Lhelper_loader":[1]})):
    seq = a.path(dec)
    nb = sum(1 for i in seq if i.op == "s_barrier")
    print(name, "instrs", len(seq), "barriers", nb, file=sys.stderr)
    bad += a.check_waits(seq)
if bad: print("CHECK FAILURES:", bad, file=sys.stderr)
hdr = open("parallel_sum__spectral_gfnet__mixer_channel_mlp__prompt.s.ref").read().split("; Override")[0]
out = hdr + f"; @launch grid=(256,1,1) block=(512,1,1) lds={LDS_BYTES}\n"
out += '.amdgcn_target "amdgcn-amd-amdhsa--gfx950"\n.text\n'
out += f".globl {NAME}\n.p2align 8\n.type {NAME},@function\n{NAME}:\n" + a.text().replace("Ltab:\nLcode_end:", ".type Ltab,@object\nLtab:\n.long " + ", ".join(str(k) for k in range(16)) + "\nLcode_end:") + "\n"
out += f""".section .rodata,"a"
.p2align 6
.amdhsa_kernel {NAME}
  .amdhsa_next_free_vgpr 256
  .amdhsa_next_free_sgpr 102
  .amdhsa_accum_offset 256
  .amdhsa_group_segment_fixed_size 0
  .amdhsa_kernarg_size 88
  .amdhsa_user_sgpr_count 2
  .amdhsa_user_sgpr_kernarg_segment_ptr 1
  .amdhsa_system_sgpr_workgroup_id_x 1
.end_amdhsa_kernel
"""
fn = [x for x in sys.argv[1:] if not x.startswith("--")][0]
open(fn, "w").write(out)
```
